```python
import torch

def _softmax(x, axis=-1):
    return torch.softmax(x, dim=axis)
def _gelu(x):
    return torch.nn.functional.gelu(x, approximate="tanh")
def _silu(x):
    return torch.nn.functional.silu(x)
def _sigmoid(x):
    return torch.sigmoid(x)
def _layernorm(x, axis=-1, eps=1e-5):
    m = x.mean(dim=axis, keepdim=True)
    v = x.var(dim=axis, keepdim=True, unbiased=False)
    return (x - m) / torch.sqrt(v + eps)
def _scatter_add(tgt, idx, src, axis=0):
    return tgt.clone().index_add_(axis, idx, src)
def _segment_sum(src, seg, n):
    out = torch.zeros((n,) + src.shape[1:], dtype=src.dtype)
    return out.index_add_(0, seg, src)
def _pad(x, pw):
    flat = tuple(v for pair in reversed(pw) for v in pair)
    return torch.nn.functional.pad(x, flat)

kernel_name = 'parallel_sum__gqa_block_cached__glu_gated_geglu__decode'

def setup_inputs():

    _w = (lambda a: (lambda t: t.to(torch.bfloat16) if t.is_floating_point() else t)(torch.as_tensor(a)))
    def _A_setup():
        B, Sq, D = 4, 1, 512
        Hq, Hkv, Sk, Dh = 32, 8, 4096, 128
        assert Hq % Hkv == 0, (Hq, Hkv)
        return {
            "x": _w((lambda *s: torch.randn(*s, dtype=torch.bfloat16) * 0.05)(B, Sq, D)),
            "k_cache": _w((lambda *s: torch.randn(*s, dtype=torch.bfloat16) * 1.6)(B, Hkv, Sk, Dh)),
            "v_cache": _w((lambda *s: torch.randn(*s, dtype=torch.bfloat16) * 0.8)(B, Hkv, Sk, Dh)),
            "wq": _w((lambda *s: torch.randn(*s, dtype=torch.bfloat16) * 1.6)(D, Hq * Dh) * (D ** -0.5)),
            "wo": _w((lambda *s: torch.randn(*s, dtype=torch.bfloat16) * 0.8)(Hq * Dh, D) * ((Hq * Dh) ** -0.5)),
        }
    _A_in = _A_setup()

    def _B_setup():
        B, S, Dm, Df = 4, 1, 512, 1792
        return {
            "x": _w((lambda *s: torch.randn(*s, dtype=torch.bfloat16) * 0.05)(B, S, Dm)),
            "w_gate": _w((lambda *s: torch.randn(*s, dtype=torch.bfloat16) * 0.4)(Dm, Df) * (Dm ** -0.5)),
            "w_up": _w((lambda *s: torch.randn(*s, dtype=torch.bfloat16) * 0.4)(Dm, Df) * (Dm ** -0.5)),
            "w_down": _w((lambda *s: torch.randn(*s, dtype=torch.bfloat16) * 0.4)(Df, Dm) * (Df ** -0.5)),
        }
    _B_in = _B_setup()

    return {
        "A_x": _A_in["x"],
        "A_k_cache": _A_in["k_cache"],
        "A_v_cache": _A_in["v_cache"],
        "A_wq": _A_in["wq"],
        "A_wo": _A_in["wo"],
        "B_x": _B_in["x"],
        "B_w_gate": _B_in["w_gate"],
        "B_w_up": _B_in["w_up"],
        "B_w_down": _B_in["w_down"],
    }

def reference(A_x, A_k_cache, A_v_cache, A_wq, A_wo, B_x, B_w_gate, B_w_up, B_w_down):
    def _A_ref(x, k_cache, v_cache, wq, wo):
        B, Sq, D = x.shape
        Hq, Dh = 32, 128
        Hkv = k_cache.shape[1]
        rep = Hq // Hkv
        q = (lambda x, *d: x.permute(*d))((x @ wq).reshape(B, Sq, Hq, Dh), 0, 2, 1, 3)
        k = (lambda x, n, axis: torch.repeat_interleave(x, n, dim=axis))(k_cache, rep, axis=1)
        v = (lambda x, n, axis: torch.repeat_interleave(x, n, dim=axis))(v_cache, rep, axis=1)
        scores = torch.einsum("bhqd,bhkd->bhqk", q, k) * (Dh ** -0.5)
        p = _softmax(scores, axis=-1)
        o = torch.einsum("bhqk,bhkd->bhqd", p, v)
        return (lambda x, *d: x.permute(*d))(o, 0, 2, 1, 3).reshape(B, Sq, Hq * Dh) @ wo

    def _B_ref(x, w_gate, w_up, w_down):
        g = torch.einsum("bsd,df->bsf", x, w_gate)
        u = torch.einsum("bsd,df->bsf", x, w_up)
        h = _gelu(g) * u
        return torch.einsum("bsf,fd->bsd", h, w_down)

    x = A_x
    xn = _layernorm(x, axis=-1)
    return x + _A_ref(xn, A_k_cache, A_v_cache, A_wq, A_wo) + _B_ref(xn, B_w_gate, B_w_up, B_w_down)
```

```python
NAME = "parallel_sum__gqa_block_cached__glu_gated_geglu__decode"

HEADER_COMMENT = """; Kernarg layout for this problem (96 bytes, ptrs only, base s[0:1]):
"""

class Asm:
    def __init__(self):
        self.lines = []
    def __call__(self, s=""):
        for l in s.split("\n"):
            self.lines.append("    " + l.strip() if l.strip() and not l.strip().endswith(":") else l.strip())
    def label(self, name):
        self.lines.append(name + ":")
    def comment(self, s):
        self.lines.append("    ; " + s)
    def text(self):
        return "\n".join(self.lines) + "\n"

def kernel_begin(a, name):
    a.lines.append(".globl %s" % name)
    a.lines.append(".p2align 8")
    a.lines.append(".type %s,@function" % name)
    a.lines.append("%s:" % name)

def descriptor(name, vgpr, sgpr, accum=None):
    if accum is None:
        accum = (vgpr + 3) // 4 * 4
    return """.amdhsa_kernel %s
  .amdhsa_next_free_vgpr %d
  .amdhsa_next_free_sgpr %d
  .amdhsa_accum_offset %d
  .amdhsa_group_segment_fixed_size 0
  .amdhsa_kernarg_size 96
  .amdhsa_user_sgpr_count 2
  .amdhsa_user_sgpr_kernarg_segment_ptr 1
  .amdhsa_system_sgpr_workgroup_id_x 1
.end_amdhsa_kernel
""" % (name, vgpr, sgpr, accum)

def file_text(launch_lines, body, descs):
    return (HEADER_COMMENT + "".join("; @launch %s\n" % l for l in launch_lines)
            + '.amdgcn_target "amdgcn-amd-amdhsa--gfx950"\n.text\n' + body
            + '.section .rodata,"a"\n.p2align 6\n' + "\n.p2align 6\n".join(descs))
```

```python
import sys
from asmlib import *

QP_OFF = 0x000000
GU_OFF = 0x040000
AP_OFF = 0x080000
ML_OFF = 0x100000
OP_OFF = 0x110000
EP_OFF = 0x1F0000
WS_SIZE = 0x200000
STAMP_OFF = 268435456 - (1 << 20)
TAGMASK = 0xFF

P_STR = 1040
Q_STR = 272
H_STR = 144
L_FL = 0
L_P = 64
L_XQ = L_P + 4 * P_STR
L_XG = L_XQ + 4 * Q_STR
L_Q = L_XG + 4 * Q_STR
L_OB = L_Q + 4 * Q_STR
L_H = L_OB + 4 * Q_STR
L_WM = L_H + 4 * H_STR
L_WL = L_WM + 256
L_SMALL_END = L_WL + 256
assert L_SMALL_END <= 10240
L_T0 = 10240
L_RING = L_T0 + 16384
L_END = L_RING + 131072
L_GUT = L_RING + 98304
L_DNT = L_GUT + 16384
F_LPROG, F_CB, F_R3, F_T0 = 0, 16, 20, 24

LOG2E = 0x3FB8AA3B
SCALE = 0x3DB504F3
POLL_LIMIT = 20000
SPIN_LIMIT = 200000

S_WAVE, S_B, S_HKV, S_S, S_H = 28, 29, 30, 31, 32
T0, T1, T2, T3, T4, T5, T6 = 33, 34, 35, 36, 37, 38, 39
R_X, R_K, R_V, R_WQ, R_GU, R_DN, R_WO, R_WS, R_OUT = 40, 44, 48, 52, 56, 60, 64, 68, 76
S_EP = 72
M_H4 = 80
M_16 = 82
M_T = 84
S_CNT = 86
S_SP = 87
STAMP_REGS = [90, 92, 94, 96, 98, 100, 4, 6, 8, 10, 12, 14, 16, 18, 20, 22]
NSTAMP = 16

def srd(r): return f"s[{r}:{r+3}]"
def vr(a, n): return f"v[{a}:{a+n-1}]"

def gen(stamps=False, nt=True, cfg=None):
    cfg = cfg or {}
    a = Asm()
    kn = NAME + "_kernel"
    NT = " nt" if nt else ""
    D = int(cfg.get("D", 12))
    order = cfg.get("order", "WQ,GU,DN,V0,V1,V2,V3,WO").split(",")
    early_at = int(cfg.get("early", 16))
    cprio = int(cfg.get("cprio", 2))
    pidx = {p: i + 1 for i, p in enumerate(order)}
    nstamp = [0]; uid = [0]
    def lab(p):
        uid[0] += 1
        return f"L_{p}_{uid[0]}"
    def stamp():
        if stamps:
            i = nstamp[0]; nstamp[0] += 1
            assert i < NSTAMP
            r = STAMP_REGS[i]
            a(f"s_memrealtime s[{r}:{r+1}]")
    def xor16(op, v, t):
        a(f"v_mov_b32 v{t}, v{v}\ns_nop 1\nv_permlane16_swap_b32 v{v}, v{t}\ns_nop 0\n{op} v{v}, v{v}, v{t}")
    def xor32(op, v, t):
        a(f"v_mov_b32 v{t}, v{v}\ns_nop 1\nv_permlane32_swap_b32 v{v}, v{t}\ns_nop 0\n{op} v{v}, v{v}, v{t}")
    def xorN(kind, op, regs, tmps):
        for v, t in zip(regs, tmps): a(f"v_mov_b32 v{t}, v{v}")
        a("s_nop 1")
        for v, t in zip(regs, tmps): a(f"v_permlane{kind}_swap_b32 v{v}, v{t}")
        a("s_nop 0")
        for v, t in zip(regs, tmps): a(f"{op} v{v}, v{v}, v{t}")
    def wave_sum(v, t):
        for ctl in ["quad_perm:[1,0,3,2]", "quad_perm:[2,3,0,1]", "row_half_mirror", "row_mirror"]:
            a(f"s_nop 1\nv_add_f32_dpp v{v}, v{v}, v{v} {ctl} row_mask:0xf bank_mask:0xf")
        a("s_nop 0")
        xor16("v_add_f32", v, t)
        xor32("v_add_f32", v, t)
    def rne(dst, src):
        a(f"v_cvt_pk_bf16_f32 v{dst}, v{src}, v{src}\nv_lshlrev_b32 v{dst}, 16, v{dst}")

    VF, VONE, VS = 14, 15, 252
    VTAG, VMSK = 6, 7
    def spin_ge(off, val, four=False):
        l0, l1 = lab("sp"), lab("spd")
        a(f"s_mov_b32 s{S_SP}, 0")
        a.label(l0)
        if four:
            a(f"ds_read_b128 {vr(VS,4)}, v{VF} offset:{off}\ns_waitcnt lgkmcnt(0)")
            a(f"v_min_u32 v{VS}, v{VS}, v{VS+1}\nv_min3_u32 v{VS}, v{VS}, v{VS+2}, v{VS+3}")
        else:
            a(f"ds_read_b32 v{VS}, v{VF} offset:{off}\ns_waitcnt lgkmcnt(0)")
        a(f"""
        s_nop 0
        v_readfirstlane_b32 s{T6}, v{VS}
        s_add_u32 s{S_SP}, s{S_SP}, 1
        s_cmp_ge_u32 s{T6}, {val}
        s_cbranch_scc1 {l1}
        s_cmp_ge_u32 s{S_SP}, {SPIN_LIMIT}
        s_cbranch_scc1 {l1}
        s_sleep 1
        s_branch {l0}
        """)
        a.label(l1)
    def flag_add(off):
        a(f"s_mov_b64 exec, 1\nds_add_u32 v{VF}, v{VONE} offset:{off}\ns_mov_b64 exec, -1")
    ncb = [0]
    def cb_arrive():
        ncb[0] += 1
        flag_add(F_CB)
        return ncb[0]
    def cb_wait(n):
        spin_ge(F_CB, 4 * n)
    def cbarrier():
        cb_wait(cb_arrive())
    def wait_piece(p):
        spin_ge(F_LPROG, pidx[p], four=True)
    def tag(regs):
        for r in regs: a(f"v_bfi_b32 v{r}, v{VMSK}, v{VTAG}, v{r}")
    def poll(name, regs, loads, acc, first_wait):
        a(f"s_mov_b32 s{S_CNT}, 0\n{first_wait}")
        a.label(f"L_{name}_chk")
        a(f"v_xor_b32 v{acc}, v{regs[0]}, v{VTAG}")
        for r in regs[1:]:
            a(f"v_bitop3_b32 v{acc}, v{acc}, v{r}, v{VTAG} bitop3:0xf6")
        a(f"""
        v_and_b32 v{acc}, v{acc}, v{VMSK}
        v_cmp_ne_u32 vcc, 0, v{acc}
        s_cbranch_vccz L_{name}_ok
        s_add_u32 s{S_CNT}, s{S_CNT}, 1
        s_cmp_ge_u32 s{S_CNT}, {POLL_LIMIT}
        s_cbranch_scc1 L_{name}_ok
        """)
        loads()
        a(f"s_waitcnt vmcnt(0)\ns_branch L_{name}_chk")
        a.label(f"L_{name}_ok")

    kernel_begin(a, kn)
    a(f"""
    s_cmp_ge_u32 s2, 256
    s_cbranch_scc1 L_exit
    s_load_dwordx16 s[4:19], s[0:1], 0
    s_load_dwordx8 s[20:27], s[0:1], 64
    """)
    stamp()
    a(f"""
    v_and_b32 v1, 63, v0
    v_lshrrev_b32 v32, 6, v0
    v_and_b32 v2, 15, v1
    v_readfirstlane_b32 s{S_WAVE}, v32
    v_lshrrev_b32 v3, 4, v1
    v_and_b32 v4, 3, v1
    v_mov_b32 v{VF}, {L_FL}
    v_mov_b32 v{VONE}, 1
    s_lshr_b32 s{S_B}, s2, 6
    s_bfe_u32 s{S_HKV}, s2, 0x30003
    s_and_b32 s{S_S}, s2, 7
    s_lshl_b32 s{S_H}, s{S_HKV}, 2
    s_add_u32 s{S_H}, s{S_H}, s{S_B}
    s_cmp_lg_u32 s{S_WAVE}, 0
    s_cbranch_scc1 L_noinit
    v_lshlrev_b32 v32, 2, v1
    v_mov_b32 v33, 0
    s_mov_b64 exec, 0xFFFF
    ds_write_b32 v32, v33 offset:{L_FL}
    s_mov_b64 exec, -1
    s_waitcnt lgkmcnt(0)
    """)
    a.label("L_noinit")
    a(f"""
    s_barrier
    s_cmp_ge_u32 s{S_WAVE}, 4
    s_cbranch_scc0 L_cwave
    """)
    a(f"s_sub_u32 s{S_WAVE}, s{S_WAVE}, 4")
    a(f"""
    v_lshrrev_b32 v32, 3, v1
    v_and_b32 v33, 7, v1
    v_lshlrev_b32 v33, 4, v33
    v_lshl_add_u32 v22, v32, 13, v33
    s_lshl_b32 s{T0}, s{S_B}, 20
    s_lshl_b32 s{T1}, s{S_HKV}, 10
    s_add_u32 s{T0}, s{T0}, s{T1}
    s_lshl_b32 s{T1}, s{S_S}, 7
    s_add_u32 s{T4}, s{T0}, s{T1}
    s_waitcnt lgkmcnt(0)
    s_add_u32 s{R_WQ}, s10, s{T4}
    s_addc_u32 s{R_WQ+1}, s11, 0
    s_mov_b32 s{R_WQ+2}, {127*8192+128}
    s_mov_b32 s{R_WQ+3}, 0x20000
    """)
    def late_setup():
        for v in range(2):
            a(f"v_lshlrev_b32 v34, 1, v3\nv_add_u32 v34, {8*v}, v34\nv_xor_b32 v{20+v}, v2, v34\nv_lshlrev_b32 v{20+v}, 4, v{20+v}\nv_lshl_add_u32 v{20+v}, v3, 8, v{20+v}")
        a(f"""
        v_mul_u32_u24 v23, 3584, v32
        v_add_u32 v23, v23, v33
        v_lshl_add_u32 v24, v32, 10, v33
        s_lshl_b32 s{T4}, s{S_WAVE}, 2
        s_add_u32 s{T4}, s{T4}, {L_FL}
        v_mov_b32 v25, s{T4}
        s_lshl_b32 s{T0}, s2, 17
        s_add_u32 s{R_V}, s8, s{T0}
        s_addc_u32 s{R_V+1}, s9, 0
        s_mov_b32 s{R_V+2}, 131072
        s_mov_b32 s{R_V+3}, 0x20000
        s_and_b32 s{T0}, s{S_S}, 1
        s_cmp_eq_u32 s{T0}, 0
        s_cselect_b32 s{T2}, s16, s18
        s_cselect_b32 s{T3}, s17, s19
        s_lshr_b32 s{T0}, s{S_S}, 1
        s_mul_i32 s{T0}, s{T0}, {128*3584}
        s_lshl_b32 s{T1}, s{S_H}, 7
        s_add_u32 s{T0}, s{T0}, s{T1}
        s_add_u32 s{R_GU}, s{T2}, s{T0}
        s_addc_u32 s{R_GU+1}, s{T3}, 0
        s_cmp_lt_u32 s{S_H}, 28
        s_cselect_b32 s{R_GU+2}, {127*3584+128}, 0
        s_mov_b32 s{R_GU+3}, 0x20000
        s_lshl_b32 s{T0}, s{S_H}, 16
        s_lshl_b32 s{T1}, s{S_S}, 7
        s_add_u32 s{T0}, s{T0}, s{T1}
        s_add_u32 s{R_DN}, s20, s{T0}
        s_addc_u32 s{R_DN+1}, s21, 0
        s_cmp_lt_u32 s{S_H}, 28
        s_cselect_b32 s{R_DN+2}, {63*1024+128}, 0
        s_mov_b32 s{R_DN+3}, 0x20000
        s_lshl_b32 s{T0}, s{S_H}, 17
        s_lshl_b32 s{T1}, s{S_S}, 7
        s_add_u32 s{T0}, s{T0}, s{T1}
        s_add_u32 s{R_WO}, s12, s{T0}
        s_addc_u32 s{R_WO+1}, s13, 0
        s_mov_b32 s{R_WO+2}, {127*1024+128}
        s_mov_b32 s{R_WO+3}, 0x20000
        """)
    def piece_instrs(p):
        out = []
        if p in ("WQ", "GU", "WO", "DN"):
            n_per = 2 if p == "DN" else 4
            stride = {"WQ": 8192, "GU": 3584, "WO": 1024, "DN": 1024}[p]
            vo = {"WQ": 22, "GU": 23, "WO": 24, "DN": 24}[p]
            R = {"WQ": R_WQ, "GU": R_GU, "WO": R_WO, "DN": R_DN}[p]
            LB = {"WQ": L_T0, "GU": L_GUT, "WO": L_T0, "DN": L_DNT}[p]
            for q in range(n_per):
                def f(q=q, LB=LB, stride=stride, vo=vo, R=R, n_per=n_per):
                    if q == 0:
                        a(f"""
                        s_mul_i32 s{T1}, s{S_WAVE}, {n_per*8*stride}
                        s_mul_i32 s{T0}, s{S_WAVE}, {n_per*1024}
                        s_add_u32 s{T0}, s{T0}, {LB}
                        """)
                    else:
                        a(f"s_add_u32 s{T1}, s{T1}, {8*stride}\ns_add_u32 s{T0}, s{T0}, 1024")
                    a(f"""
                    s_mov_b32 m0, s{T0}
                    s_nop 0
                    buffer_load_dwordx4 v{vo}, {srd(R)}, s{T1} offen{NT} lds
                    """)
                out.append(f)
        else:
            st = int(p[1])
            for q in range(8):
                def f(q=q, st=st):
                    if q % 4 == 0:
                        a(f"""
                        s_lshl_b32 s{T0}, s{S_WAVE}, 13
                        s_add_u32 s{T0}, s{T0}, {st*32768 + (q//4)*4096}
                        s_add_u32 s{T1}, s{T0}, {L_RING}
                        s_mov_b32 m0, s{T1}
                        s_nop 0
                        """)
                    a(f"buffer_load_dwordx4 v{20 + q % 2}, {srd(R_V)}, s{T0} offen offset:{(q%4)*1024}{NT} lds")
                out.append(f)
        return out
    seq = []
    for p in order:
        ins = piece_instrs(p)
        for k, f in enumerate(ins):
            seq.append((p, k == 0, k == len(ins) - 1, f))
    total = len(seq)
    ends = {}
    for i, (p, first, last, f) in enumerate(seq):
        if last: ends[p] = i + 1
    def signal(p):
        a(f"v_mov_b32 v26, {pidx[p]}\nds_write_b32 v25, v26")
    signaled = []
    early = [p for p in order if ends[p] <= early_at - 4]
    for i, (p, first, last, f) in enumerate(seq):
        if first:
            if p == "WO": spin_ge(F_T0, 4)
            if p == "V3": spin_ge(F_R3, 4)
        f()
        issued = i + 1
        if issued == ends[order[0]]:
            late_setup()
        if issued == early_at:
            for q in early:
                a(f"s_waitcnt vmcnt({issued - ends[q]})")
                signal(q); signaled.append(q)
        for q in order:
            if q not in signaled and q not in early and ends[q] + D <= issued:
                a(f"s_waitcnt vmcnt({issued - ends[q]})")
                signal(q); signaled.append(q)
    for q in order:
        if q not in signaled:
            a(f"s_waitcnt vmcnt({total - ends[q]})")
            signal(q); signaled.append(q)
    a("s_waitcnt lgkmcnt(0)\ns_branch L_exit")

    a.label("L_cwave")
    a(f"s_setprio {cprio}")
    a(f"""
    v_lshlrev_b32 v5, 4, v1                       ; l*16
    v_mov_b32 v33, 0
    s_lshl_b32 s{T0}, s{S_WAVE}, 10
    s_waitcnt lgkmcnt(0)
    s_mov_b32 s{R_X}, s4
    s_mov_b32 s{R_X+1}, s5
    s_mov_b32 s{R_X+2}, 4096
    s_mov_b32 s{R_X+3}, 0x20000
    buffer_load_dwordx4 v[20:23], v5, {srd(R_X)}, s{T0} offen
    s_mov_b32 s{R_WS}, s26
    s_mov_b32 s{R_WS+1}, s27
    s_mov_b32 s{R_WS+2}, {WS_SIZE}
    s_mov_b32 s{R_WS+3}, 0x20000
    s_mov_b32 s{T1}, {EP_OFF}
    buffer_load_dword v{VTAG}, v33, {srd(R_WS)}, s{T1} offen sc1
    s_mov_b32 s{M_H4}, 0x000F000F
    s_mov_b32 s{M_H4+1}, 0x000F000F
    s_mov_b32 s{M_16}, 0xFFFF
    s_mov_b32 s{M_16+1}, 0
    s_mov_b32 s{R_OUT}, s22
    s_mov_b32 s{R_OUT+1}, s23
    s_mov_b32 s{R_OUT+2}, 4096
    s_mov_b32 s{R_OUT+3}, 0x20000
    s_lshl_b32 s{T0}, s2, 17
    s_add_u32 s{R_K}, s6, s{T0}
    s_addc_u32 s{R_K+1}, s7, 0
    s_mov_b32 s{R_K+2}, 131072
    s_mov_b32 s{R_K+3}, 0x20000
    """)
    SQP, SGU, SAP, SOP, SML = 64, 65, 66, 67, 60
    a(f"""
    s_lshl_b32 s{SQP}, s{S_B}, 16
    s_lshl_b32 s{T1}, s{S_HKV}, 11
    s_add_u32 s{SQP}, s{SQP}, s{T1}
    s_lshl_b32 s{T1}, s{S_S}, 8
    s_add_u32 s{SQP}, s{SQP}, s{T1}
    s_add_u32 s{SQP}, s{SQP}, {QP_OFF}
    s_lshl_b32 s{SGU}, s{S_H}, 13
    s_lshl_b32 s{T1}, s{S_S}, 10
    s_add_u32 s{SGU}, s{SGU}, s{T1}
    s_add_u32 s{SGU}, s{SGU}, {GU_OFF}
    s_lshl_b32 s{SAP}, s{S_HKV}, 16
    s_lshl_b32 s{T1}, s{S_B}, 12
    s_add_u32 s{SAP}, s{SAP}, s{T1}
    s_lshl_b32 s{T1}, s{S_S}, 9
    s_add_u32 s{SAP}, s{SAP}, s{T1}
    s_add_u32 s{SAP}, s{SAP}, {AP_OFF}
    s_lshl_b32 s{SOP}, s{S_S}, 15
    s_lshl_b32 s{T1}, s{S_H}, 8
    s_add_u32 s{SOP}, s{SOP}, s{T1}
    s_add_u32 s{SOP}, s{SOP}, {OP_OFF}
    s_lshl_b32 s{SML}, s{S_HKV}, 11
    s_lshl_b32 s{T1}, s{S_B}, 9
    s_add_u32 s{SML}, s{SML}, s{T1}
    s_lshl_b32 s{T1}, s{S_S}, 6
    s_add_u32 s{SML}, s{SML}, s{T1}
    s_add_u32 s{SML}, s{SML}, {ML_OFF}
    s_lshl_b32 s{T1}, s{S_WAVE}, 6                ; t*64
    v_lshlrev_b32 v11, 14, v2
    v_lshl_add_u32 v11, v3, 4, v11
    v_add_u32 v11, s{T1}, v11
    v_lshlrev_b32 v12, 8, v2
    v_lshl_add_u32 v12, v3, 4, v12
    v_add_u32 v12, s{T1}, v12                     ; GU lane part
    v_lshlrev_b32 v13, 13, v2
    v_lshl_add_u32 v13, v3, 4, v13
    v_add_u32 v13, s{T1}, v13
    s_lshl_b32 s{T0}, s{S_WAVE}, 15
    v_lshlrev_b32 v16, 8, v2
    v_lshl_add_u32 v16, v3, 4, v16
    v_add_u32 v16, s{T0}, v16                     ; K voffset
    v_lshrrev_b32 v32, 2, v2
    v_lshl_add_u32 v32, v3, 3, v32
    v_lshlrev_b32 v32, 7, v32
    v_lshl_add_u32 v34, v4, 3, v32
    s_lshl_b32 s{T3}, s{S_WAVE}, 5
    s_add_u32 s{T3}, s{T3}, {L_T0}
    v_add_u32 v34, s{T3}, v34                     ; T0 + (8g+r)*128 + t*32 + c4*8
    v_mul_u32_u24 v35, {Q_STR}, v4
    v_lshl_add_u32 v35, v3, 4, v35                ; (l&3)*272 + g*16
    v_add_u32 v17, {L_GUT - L_T0}, v34
    v_add_u32 v18, {L_DNT - L_T0}, v34
    v_mov_b32 v{VMSK}, {TAGMASK}
    s_waitcnt vmcnt(0)
    """)
    stamp()
    a(f"""
    v_readfirstlane_b32 s{S_EP}, v{VTAG}
    v_add_u32 v{VTAG}, 1, v{VTAG}
    v_and_b32 v{VTAG}, {TAGMASK}, v{VTAG}
    """)
    for e in range(4):
        a(f"v_lshlrev_b32 v{24+2*e}, 16, v{20+e}\nv_and_b32 v{25+2*e}, 0xffff0000, v{20+e}")
    a(f"""
    v_add_f32 v32, v24, v25
    v_add_f32 v33, v26, v27
    v_add_f32 v36, v28, v29
    v_add_f32 v37, v30, v31
    v_add_f32 v32, v32, v33
    v_add_f32 v36, v36, v37
    v_add_f32 v32, v32, v36
    """)
    wave_sum(32, 33)
    a("v_mul_f32 v32, 0x3b000000, v32")
    for e in range(8):
        a(f"v_sub_f32 v{36+e}, v{24+e}, v32")
    a("v_mul_f32 v33, v36, v36")
    for e in range(1, 8):
        a(f"v_fmac_f32 v33, v{36+e}, v{36+e}")
    wave_sum(33, 44)
    a("v_mul_f32 v33, 0x3b000000, v33")
    rne(32, 32); rne(33, 33)
    a("v_add_f32 v33, 0x3727c5ac, v33")
    rne(33, 33)
    a("v_sqrt_f32 v33, v33\ns_nop 0")
    rne(33, 33)
    a("v_rcp_f32 v33, v33")
    for e in range(8):
        a(f"v_sub_f32 v{36+e}, v{24+e}, v32")
    for e in range(0, 8, 2):
        a(f"v_cvt_pk_bf16_f32 v44, v{36+e}, v{37+e}\nv_lshlrev_b32 v{36+e}, 16, v44\nv_and_b32 v{37+e}, 0xffff0000, v44")
    for e in range(8):
        a(f"v_mul_f32 v{36+e}, v{36+e}, v33")
    for e in range(4):
        a(f"v_cvt_pk_bf16_f32 v{44+e}, v{36+2*e}, v{37+2*e}")
    a(f"""
    s_mul_i32 s{T0}, s{S_WAVE}, {Q_STR}
    v_lshlrev_b32 v32, 4, v2
    v_add_u32 v32, s{T0}, v32
    v_cmp_eq_u32 vcc, s{S_B}, v3
    s_and_saveexec_b64 s[{M_T}:{M_T+1}], vcc
    ds_write_b128 v32, v[44:47] offset:{L_XQ}
    s_mov_b64 exec, -1
    s_lshr_b32 s{T1}, s{S_S}, 1
    v_cmp_eq_u32 vcc, s{T1}, v3
    s_and_saveexec_b64 s[{M_T}:{M_T+1}], vcc
    ds_write_b128 v32, v[44:47] offset:{L_XG}
    s_mov_b64 exec, -1
    """)
    cbarrier()
    stamp()
    WF, XF, DA = 48, 224, 240
    def p1(xoff, voff, sbase, first, areg):
        for kk in range(4):
            a(f"ds_read_b128 {vr(XF+4*kk,4)}, v35 offset:{xoff+kk*64}")
        for kk in range(4):
            a(f"ds_read_b64_tr_b16 {vr(WF+4*kk,2)}, v{areg} offset:{kk*4096}")
            a(f"ds_read_b64_tr_b16 {vr(WF+4*kk+2,2)}, v{areg} offset:{kk*4096+512}")
        if first: flag_add(F_T0)
        a("s_waitcnt lgkmcnt(0)")
        for kk in range(4):
            c = "0" if kk == 0 else vr(DA,4)
            a(f"v_mfma_f32_16x16x32_bf16 {vr(DA,4)}, {vr(WF+4*kk,4)}, {vr(XF+4*kk,4)}, {c}")
        a("s_nop 7")
        tag(range(DA, DA+4))
        a(f"""
        s_mov_b64 exec, s[{M_H4}:{M_H4+1}]
        buffer_store_dwordx4 {vr(DA,4)}, v{voff}, {srd(R_WS)}, s{sbase} offen sc1
        s_mov_b64 exec, -1
        """)
    KB = 64
    def kload(T):
        if T == 0: so = "0"
        else:
            a(f"s_mov_b32 s{T0}, {T*4096}"); so = f"s{T0}"
        for j in range(4):
            r = KB + (T * 4 + j) * 4
            a(f"buffer_load_dwordx4 {vr(r,4)}, v16, {srd(R_K)}, {so} offen offset:{j*64}{NT}")
    wait_piece("WQ")
    stamp()
    p1(L_XQ, 11, SQP, True, 34)
    stamp()
    kload(0); kload(1)
    wait_piece("GU")
    p1(L_XG, 12, SGU, False, 17)
    DF = 240; DN_ACC = 248
    wait_piece("DN")
    a("s_nop 1")
    for kk in range(2):
        a(f"ds_read_b64_tr_b16 {vr(DF+4*kk,2)}, v18 offset:{kk*4096}")
        a(f"ds_read_b64_tr_b16 {vr(DF+4*kk+2,2)}, v18 offset:{kk*4096+512}")
    flag_add(F_R3)
    stamp()
    QG, GG = 224, 232
    a(f"""
    s_lshl_b32 s{T0}, s{S_B}, 14
    s_lshl_b32 s{T1}, s{S_HKV}, 11
    s_add_u32 s{T0}, s{T0}, s{T1}
    s_lshl_b32 s{T1}, s{S_WAVE}, 9
    s_add_u32 s{T5}, s{T0}, s{T1}
    s_add_u32 s{T5}, s{T5}, {QP_OFF}
    v_lshlrev_b32 v38, 16, v3
    v_lshl_add_u32 v38, v2, 4, v38
    s_lshl_b32 s{T4}, s{S_H}, 13
    s_lshl_b32 s{T1}, s{S_WAVE}, 8
    s_add_u32 s{T4}, s{T4}, s{T1}
    s_add_u32 s{T4}, s{T4}, {GU_OFF}
    v_lshlrev_b32 v39, 10, v3
    v_lshl_add_u32 v39, v2, 4, v39
    v_add_u32 v40, 4096, v39
    """)
    def qloads():
        a(f"buffer_load_dwordx4 {vr(QG,4)}, v38, {srd(R_WS)}, s{T5} offen sc1")
        a(f"buffer_load_dwordx4 {vr(QG+4,4)}, v38, {srd(R_WS)}, s{T5} offen offset:256 sc1")
    def gloads():
        a(f"buffer_load_dwordx4 {vr(GG,4)}, v39, {srd(R_WS)}, s{T4} offen sc1")
        a(f"buffer_load_dwordx4 {vr(GG+4,4)}, v40, {srd(R_WS)}, s{T4} offen sc1")
    kload(2); kload(3)
    qloads()
    kload(4); kload(5)
    gloads()
    kload(6); kload(7)
    poll("q", list(range(QG, QG+8)), qloads, 41, "s_waitcnt vmcnt(18)")
    stamp()
    xorN(16, "v_add_f32", list(range(QG, QG+8)), list(range(41, 49 ))[:8])
    xorN(32, "v_add_f32", list(range(QG, QG+8)), list(range(41, 49))[:8])
    a(f"""
    v_cvt_pk_bf16_f32 v42, v{QG}, v{QG+1}
    v_cvt_pk_bf16_f32 v43, v{QG+2}, v{QG+3}
    v_cvt_pk_bf16_f32 v44, v{QG+4}, v{QG+5}
    v_cvt_pk_bf16_f32 v45, v{QG+6}, v{QG+7}
    s_mul_i32 s{T0}, s{S_WAVE}, {Q_STR}
    s_add_u32 s{T0}, s{T0}, {L_Q}
    v_lshlrev_b32 v41, 3, v2
    v_add_u32 v41, s{T0}, v41
    s_mov_b64 exec, s[{M_16}:{M_16+1}]
    ds_write_b64 v41, v[42:43]
    ds_write_b64 v41, v[44:45] offset:128
    s_mov_b64 exec, -1
    """)
    cb_arrive()
    poll("g", list(range(GG, GG+8)), gloads, 44, "s_waitcnt vmcnt(8)")
    for e in range(4):
        a(f"v_add_f32 v{GG+e}, v{GG+e}, v{GG+4+e}")
    xorN(32, "v_add_f32", list(range(GG, GG+4)), [44,45,46,47])
    for e in range(4):
        a(f"v_mov_b32 v{GG+4+e}, v{GG+e}")
    a("s_nop 1")
    for e in range(4):
        a(f"v_permlane16_swap_b32 v{GG+e}, v{GG+4+e}")
    a("s_nop 0")
    for e in range(4):
        rne(GG+e, GG+e); rne(GG+4+e, GG+4+e)
    for e in range(4):
        g = GG + e
        a(f"""
        v_mul_f32 v44, v{g}, v{g}
        v_mul_f32 v44, v44, v{g}
        v_mul_f32 v44, 0x3d372713, v44
        v_add_f32 v44, v44, v{g}
        v_mul_f32 v44, 0xc0135761, v44
        v_exp_f32 v44, v44
        s_nop 0
        v_add_f32 v44, 1.0, v44
        v_rcp_f32 v44, v44
        s_nop 0
        v_mul_f32 v{g}, v{g}, v44
        """)
        rne(g, g)
        a(f"v_mul_f32 v{g}, v{g}, v{GG+4+e}")
    a(f"""
    v_cvt_pk_bf16_f32 v42, v{GG}, v{GG+1}
    v_cvt_pk_bf16_f32 v43, v{GG+2}, v{GG+3}
    s_mul_i32 s{T0}, s{S_WAVE}, {H_STR}
    v_lshlrev_b32 v44, 3, v2
    v_add_u32 v44, s{T0}, v44
    s_mov_b64 exec, s[{M_16}:{M_16+1}]
    ds_write_b64 v44, v[42:43] offset:{L_H}
    s_mov_b64 exec, -1
    """)
    cbarrier()
    a(f"""
    v_mul_u32_u24 v44, {H_STR}, v4
    v_lshl_add_u32 v44, v3, 4, v44
    """)
    HF = 224
    QF, SS = 48, 192
    for kk in range(2):
        a(f"ds_read_b128 {vr(HF+4*kk,4)}, v44 offset:{L_H+kk*64}")
    for j in range(4):
        a(f"ds_read_b128 {vr(QF+4*j,4)}, v35 offset:{L_Q+j*64}")
    a("s_waitcnt lgkmcnt(4)")
    for kk in range(2):
        c = "0" if kk == 0 else vr(DN_ACC,4)
        a(f"v_mfma_f32_16x16x32_bf16 {vr(DN_ACC,4)}, {vr(DF+4*kk,4)}, {vr(HF+4*kk,4)}, {c}")
    stamp()
    a("s_waitcnt vmcnt(0) lgkmcnt(0)")
    stamp()
    for j in range(4):
        for T in range(8):
            c = "0" if j == 0 else vr(SS+4*T,4)
            a(f"v_mfma_f32_16x16x32_bf16 {vr(SS+4*T,4)}, {vr(KB+(T*4+j)*4,4)}, {vr(QF+4*j,4)}, {c}")
    a("s_nop 7")
    for p in range(16):
        x0, x1 = SS + 2*p, SS + 2*p + 1
        a(f"""
        v_cvt_pk_bf16_f32 v41, v{x0}, v{x1}
        v_lshlrev_b32 v{x0}, 16, v41
        v_and_b32 v{x1}, 0xffff0000, v41
        v_mul_f32 v{x0}, 0x{SCALE:x}, v{x0}
        v_mul_f32 v{x1}, 0x{SCALE:x}, v{x1}
        v_cvt_pk_bf16_f32 v41, v{x0}, v{x1}
        v_lshlrev_b32 v{x0}, 16, v41
        v_and_b32 v{x1}, 0xffff0000, v41
        """)
    a(f"v_max3_f32 v41, v{SS}, v{SS+1}, v{SS+2}")
    for p in range(3, 31, 2):
        a(f"v_max3_f32 v41, v41, v{SS+p}, v{SS+p+1}")
    a(f"v_max_f32 v41, v41, v{SS+31}")
    xor16("v_max_f32", 41, 42)
    xor32("v_max_f32", 41, 42)
    a(f"""
    s_lshl_b32 s{T0}, s{S_WAVE}, 6
    v_lshlrev_b32 v43, 2, v2
    v_add_u32 v44, s{T0}, v43
    s_mov_b64 exec, s[{M_16}:{M_16+1}]
    ds_write_b32 v44, v41 offset:{L_WM}
    s_mov_b64 exec, -1
    """)
    cbarrier()
    for w in range(4):
        a(f"ds_read_b32 v{48+w}, v43 offset:{L_WM+w*64}")
    a(f"""
    s_waitcnt lgkmcnt(0)
    v_max3_f32 v46, v48, v49, v50
    v_max_f32 v46, v46, v51
    s_mov_b32 s{T1}, 0x{LOG2E:x}
    v_mul_f32 v47, s{T1}, v46
    """)
    for p in range(32):
        a(f"v_fma_f32 v{SS+p}, v{SS+p}, s{T1}, -v47")
    for p in range(32):
        a(f"v_exp_f32 v{SS+p}, v{SS+p}")
    a("s_nop 0")
    a(f"v_add_f32 v41, v{SS}, v{SS+1}\nv_add_f32 v42, v{SS+2}, v{SS+3}")
    for p in range(4, 32, 2):
        a(f"v_add_f32 v41, v41, v{SS+p}\nv_add_f32 v42, v42, v{SS+p+1}")
    a("v_add_f32 v41, v41, v42")
    PP = 224
    for p in range(16):
        a(f"v_cvt_pk_bf16_f32 v{PP+p}, v{SS+2*p}, v{SS+2*p+1}")
    xor16("v_add_f32", 41, 42)
    xor32("v_add_f32", 41, 42)
    a(f"""
    s_lshl_b32 s{T0}, s{S_WAVE}, 8
    v_mul_u32_u24 v45, {P_STR}, v2
    v_lshl_add_u32 v45, v3, 4, v45
    v_add_u32 v45, s{T0}, v45
    s_mov_b64 exec, s[{M_16}:{M_16+1}]
    ds_write_b32 v44, v41 offset:{L_WL}
    s_mov_b64 exec, s[{M_H4}:{M_H4+1}]
    """)
    for st in range(4):
        a(f"ds_write_b128 v45, {vr(PP+4*st,4)} offset:{L_P+st*64}")
    a("s_mov_b64 exec, -1")
    cb_p = cb_arrive()
    stamp()
    a(f"""
    v_mul_u32_u24 v41, {P_STR}, v4
    v_lshl_add_u32 v41, v3, 4, v41
    v_add_u32 v41, {L_P}, v41
    v_lshrrev_b32 v42, 2, v2
    v_lshl_add_u32 v42, v3, 2, v42                ; key_local
    v_and_b32 v43, 7, v42
    v_lshlrev_b32 v43, 1, v43
    v_lshrrev_b32 v44, 1, v4
    s_lshl_b32 s{T0}, s{S_WAVE}, 2
    v_add_u32 v44, s{T0}, v44
    v_xor_b32 v45, v44, v43
    v_lshlrev_b32 v45, 4, v45
    v_lshl_add_u32 v45, v42, 8, v45
    v_and_b32 v40, 1, v4
    v_lshl_add_u32 v16, v40, 3, v45
    v_add_u32 v16, {L_RING}, v16
    v_add_u32 v17, 65536, v16
    v_add_u32 v44, 2, v44
    v_xor_b32 v45, v44, v43
    v_lshlrev_b32 v45, 4, v45
    v_lshl_add_u32 v45, v42, 8, v45
    v_lshl_add_u32 v18, v40, 3, v45
    v_add_u32 v18, {L_RING}, v18
    v_add_u32 v19, 65536, v18
    v_lshlrev_b32 v44, 2, v2
    """)
    cb_wait(cb_p)
    for w in range(4):
        a(f"ds_read_b32 v{48+w}, v44 offset:{L_WL+w*64}")
    a(f"""
    s_waitcnt lgkmcnt(0)
    v_add_f32 v47, v48, v49
    v_add_f32 v48, v50, v51
    v_add_f32 v47, v47, v48
    v_mov_b32 v20, v46
    v_mov_b32 v21, v47
    v_mov_b32 v22, v46
    v_mov_b32 v23, v47
    """)
    tag([20, 21, 22, 23])
    a(f"""
    s_cmp_lg_u32 s{S_WAVE}, 0
    s_cbranch_scc1 L_ml_done
    s_mov_b64 exec, 15
    buffer_store_dwordx4 v[20:23], v5, {srd(R_WS)}, s{SML} offen sc1
    s_mov_b64 exec, -1
    """)
    a.label("L_ml_done")
    ACC = 184
    firstpv = [True]
    def pv(st):
        wait_piece(f"V{st}")
        for q in range(4):
            kb = 4 * st + q
            off = (kb % 8) * 8192
            b0, b1 = (16, 18) if kb < 8 else (17, 19)
            r = 64 + 12 * q
            a(f"ds_read_b128 {vr(r,4)}, v41 offset:{kb*64}")
            a(f"ds_read_b64_tr_b16 {vr(r+4,2)}, v{b0} offset:{off}")
            a(f"ds_read_b64_tr_b16 {vr(r+6,2)}, v{b0} offset:{off+4096}")
            a(f"ds_read_b64_tr_b16 {vr(r+8,2)}, v{b1} offset:{off}")
            a(f"ds_read_b64_tr_b16 {vr(r+10,2)}, v{b1} offset:{off+4096}")
        for q in range(4):
            r = 64 + 12 * q
            a(f"s_waitcnt lgkmcnt({15 - 5 * q})")
            for dt in range(2):
                c = "0" if firstpv[0] else vr(ACC+4*dt,4)
                a(f"v_mfma_f32_16x16x32_bf16 {vr(ACC+4*dt,4)}, {vr(r+4+4*dt,4)}, {vr(r,4)}, {c}")
            firstpv[0] = False
    pv(0); pv(1); pv(2)
    stamp()
    pv(3)
    a(f"""
    s_lshl_b32 s{T1}, s{S_WAVE}, 6
    v_add_u32 v45, s{T1}, v11
    s_nop 6
    """)
    tag(range(ACC, ACC+8))
    a(f"""
    s_mov_b64 exec, s[{M_H4}:{M_H4+1}]
    buffer_store_dwordx4 {vr(ACC,4)}, v45, {srd(R_WS)}, s{SAP} offen sc1
    buffer_store_dwordx4 {vr(ACC+4,4)}, v45, {srd(R_WS)}, s{SAP} offen offset:64 sc1
    s_mov_b64 exec, -1
    """)
    stamp()
    AG, MG, WOF = 64, 80, 96
    a(f"""
    s_lshl_b32 s{T0}, s{S_H}, 14
    s_lshl_b32 s{T1}, s{S_WAVE}, 12
    s_add_u32 s{T0}, s{T0}, s{T1}
    s_add_u32 s{T0}, s{T0}, {AP_OFF}
    s_lshl_b32 s{T1}, s{S_HKV}, 11
    s_lshl_b32 s{T2}, s{S_WAVE}, 9
    s_add_u32 s{T1}, s{T1}, s{T2}
    s_lshl_b32 s{T2}, s{S_B}, 4
    s_add_u32 s{T1}, s{T1}, s{T2}
    s_add_u32 s{T1}, s{T1}, {ML_OFF}
    v_lshrrev_b32 v33, 5, v1
    v_lshlrev_b32 v33, 6, v33
    """)
    def hop1_loads():
        for m in range(4):
            a(f"buffer_load_dwordx4 {vr(AG+4*m,4)}, v5, {srd(R_WS)}, s{T0} offen offset:{m*1024} sc1")
        for m in range(4):
            a(f"buffer_load_dwordx2 {vr(MG+2*m,2)}, v33, {srd(R_WS)}, s{T1} offen offset:{m*128} sc1")
    hop1_loads()
    wait_piece("WO")
    for kk in range(4):
        a(f"ds_read_b64_tr_b16 {vr(WOF+4*kk,2)}, v34 offset:{kk*4096}")
        a(f"ds_read_b64_tr_b16 {vr(WOF+4*kk+2,2)}, v34 offset:{kk*4096+512}")
    poll("h1", list(range(AG, AG+16)) + list(range(MG, MG+8)), hop1_loads, 36, "s_waitcnt vmcnt(0)")
    stamp()
    ms = [MG + 2*m for m in range(4)]
    ls = [MG + 2*m + 1 for m in range(4)]
    a(f"""
    v_max3_f32 v36, v{ms[0]}, v{ms[1]}, v{ms[2]}
    v_max_f32 v36, v36, v{ms[3]}
    """)
    xor32("v_max_f32", 36, 37)
    a(f"s_mov_b32 s{T2}, 0x{LOG2E:x}")
    for m in range(4):
        a(f"v_sub_f32 v{ms[m]}, v{ms[m]}, v36")
    for m in range(4):
        a(f"v_mul_f32 v{ms[m]}, s{T2}, v{ms[m]}")
    for m in range(4):
        a(f"v_exp_f32 v{ms[m]}, v{ms[m]}")
    a("s_nop 0")
    a(f"v_mul_f32 v48, v{ms[0]}, v{ls[0]}")
    for m in range(1, 4):
        a(f"v_fmac_f32 v48, v{ms[m]}, v{ls[m]}")
    for e in range(4):
        a(f"v_mul_f32 v{44+e}, v{ms[0]}, v{AG+e}")
    for m in range(1, 4):
        for e in range(4):
            a(f"v_fmac_f32 v{44+e}, v{ms[m]}, v{AG+4*m+e}")
    xorN(32, "v_add_f32", [44,45,46,47,48], [36,37,38,39,40])
    a("v_rcp_f32 v48, v48\ns_nop 0")
    for e in range(4):
        a(f"v_mul_f32 v{44+e}, v{44+e}, v48")
    a(f"""
    v_cvt_pk_bf16_f32 v42, v44, v45
    v_cvt_pk_bf16_f32 v43, v46, v47
    s_mul_i32 s{T2}, s{S_WAVE}, {Q_STR}
    v_lshlrev_b32 v41, 3, v1
    v_add_u32 v41, s{T2}, v41
    s_mov_b32 exec_lo, -1
    s_mov_b32 exec_hi, 0
    ds_write_b64 v41, v[42:43] offset:{L_OB}
    s_mov_b64 exec, -1
    """)
    cbarrier()
    OF = 112
    for kk in range(4):
        a(f"ds_read_b128 {vr(OF+4*kk,4)}, v35 offset:{L_OB+kk*64}")
    a("s_waitcnt lgkmcnt(0)")
    for kk in range(4):
        a(f"v_mfma_f32_16x16x32_bf16 {vr(DN_ACC,4)}, {vr(WOF+4*kk,4)}, {vr(OF+4*kk,4)}, {vr(DN_ACC,4)}")
    a("s_nop 7")
    tag(range(DN_ACC, DN_ACC+4))
    a(f"""
    s_mov_b64 exec, s[{M_H4}:{M_H4+1}]
    buffer_store_dwordx4 {vr(DN_ACC,4)}, v13, {srd(R_WS)}, s{SOP} offen sc1
    s_mov_b64 exec, -1
    """)
    stamp()
    a(f"""
    s_cmp_lg_u32 s{S_HKV}, 0
    s_cbranch_scc1 L_end
    s_cmp_lg_u32 s{S_WAVE}, 0
    s_cbranch_scc1 L_end
    s_lshl_b32 s{T0}, s{S_S}, 2
    s_add_u32 s{T0}, s{T0}, s{S_B}
    s_lshl_b32 s{T0}, s{T0}, 13
    s_add_u32 s{T0}, s{T0}, {OP_OFF}
    s_add_u32 s{T1}, s{T0}, 4096
    s_lshl_b32 s{T2}, s{S_B}, 10
    s_lshl_b32 s{T3}, s{S_S}, 7
    s_add_u32 s{T2}, s{T2}, s{T3}
    v_lshlrev_b32 v33, 3, v2
    buffer_load_dwordx2 v[36:37], v33, {srd(R_X)}, s{T2} offen
    """)
    FG = 64
    def fin_loads():
        for m in range(8):
            so = T0 if m < 4 else T1
            a(f"buffer_load_dwordx4 {vr(FG+4*m,4)}, v5, {srd(R_WS)}, s{so} offen offset:{(m%4)*1024} sc1")
    fin_loads()
    poll("fin", list(range(FG, FG+32)), fin_loads, 38, "s_waitcnt vmcnt(0)")
    for m in range(1, 8):
        for e in range(4):
            a(f"v_add_f32 v{FG+e}, v{FG+e}, v{FG+4*m+e}")
    xorN(16, "v_add_f32", [FG, FG+1, FG+2, FG+3], [38,39,40,41])
    xorN(32, "v_add_f32", [FG, FG+1, FG+2, FG+3], [38,39,40,41])
    a(f"""
    v_lshlrev_b32 v40, 16, v36
    v_and_b32 v41, 0xffff0000, v36
    v_lshlrev_b32 v42, 16, v37
    v_and_b32 v43, 0xffff0000, v37
    v_add_f32 v40, v40, v{FG}
    v_add_f32 v41, v41, v{FG+1}
    v_add_f32 v42, v42, v{FG+2}
    v_add_f32 v43, v43, v{FG+3}
    v_cvt_pk_bf16_f32 v40, v40, v41
    v_cvt_pk_bf16_f32 v41, v42, v43
    s_mov_b64 exec, s[{M_16}:{M_16+1}]
    buffer_store_dwordx2 v[40:41], v33, {srd(R_OUT)}, s{T2} offen
    s_mov_b64 exec, -1
    s_cmp_lg_u32 s2, 0
    s_cbranch_scc1 L_end
    s_add_u32 s{S_EP}, s{S_EP}, 1
    v_mov_b32 v40, s{S_EP}
    v_mov_b32 v41, 0
    s_mov_b32 s{T1}, {EP_OFF}
    s_mov_b64 exec, 1
    buffer_store_dword v40, v41, {srd(R_WS)}, s{T1} offen sc1
    s_mov_b64 exec, -1
    """)
    a.label("L_end")
    if stamps:
        a(f"s_cmp_lg_u32 s{S_WAVE}, 0\ns_cbranch_scc1 L_exit")
        while nstamp[0] < NSTAMP:
            stamp()
        a(f"""
        s_waitcnt lgkmcnt(0)
        s_add_u32 s{R_WS}, s{R_WS}, {STAMP_OFF}
        s_addc_u32 s{R_WS+1}, s{R_WS+1}, 0
        s_mul_i32 s{T0}, s2, {NSTAMP*8}
        v_mov_b32 v2, s{T0}
        s_mov_b64 exec, 1
        """)
        if cfg.get("dbg"):
            a(f"""
            s_load_dwordx2 s[{R_K}:{R_K+1}], s[0:1], 80
            s_waitcnt lgkmcnt(0)
            s_mov_b32 s{R_K+2}, 256
            s_mov_b32 s{R_K+3}, 0x20000
            v_mov_b32 v2, 0
            s_not_b32 s{STAMP_REGS[0]}, s{STAMP_REGS[0]}
            """)
            for i in range(NSTAMP):
                r = STAMP_REGS[i]
                a(f"v_mov_b32 v4, s{r}\nbuffer_atomic_umax v4, v2, {srd(R_K)}, 0 offen offset:{i*4}\ns_nop 1")
        else:
          for i in range(NSTAMP):
            r = STAMP_REGS[i]
            a(f"v_mov_b32 v4, s{r}\nv_mov_b32 v5, s{r+1}\nbuffer_store_dwordx2 v[4:5], v2, {srd(R_WS)}, 0 offen offset:{i*8}\ns_nop 1")
    a.label("L_exit")
    a("s_endpgm")
    launch = f"grid=(256,1,1) block=(512,1,1) lds={L_END}"
    return file_text([launch], a.text(), [descriptor(kn, 256, 102)])

if __name__ == "__main__":
    out = sys.argv[1] if len(sys.argv) > 1 else "cdna_kernels/" + NAME + ".s"
    cfg = dict(kv.split("=") for kv in sys.argv[2:] if "=" in kv)
    open(out, "w").write(gen(stamps=("stamps" in sys.argv), cfg=cfg))
    print("wrote", out, "LDS", L_END)
```

```python
import sys
from asmlib import *

QP_OFF = 0x000000
GU_OFF = 0x040000
AP_OFF = 0x080000
ML_OFF = 0x100000
OP_OFF = 0x110000
EP_OFF = 0x1F0000
WS_SIZE = 0x200000
STAMP_OFF = 268435456 - (1 << 20)
TAGMASK = 0xFF

P_STR = 1040
Q_STR = 272
H_STR = 144
L_FL = 0
L_P = 64
L_XQ = L_P + 4 * P_STR
L_XG = L_XQ + 4 * Q_STR
L_Q = L_XG + 4 * Q_STR
L_OB = L_Q + 4 * Q_STR
L_H = L_OB + 4 * Q_STR
L_WM = L_H + 4 * H_STR
L_WL = L_WM + 256
L_SMALL_END = L_WL + 256
assert L_SMALL_END <= 10240
L_T0 = 10240
L_RING = L_T0 + 16384
L_END = L_RING + 131072
L_GUT = L_RING + 98304
L_DNT = L_GUT + 16384
F_LPROG, F_CB, F_R3, F_T0 = 0, 16, 20, 24

LOG2E = 0x3FB8AA3B
SCALE = 0x3DB504F3
POLL_LIMIT = 20000
SPIN_LIMIT = 200000

S_WAVE, S_B, S_HKV, S_S, S_H = 28, 29, 30, 31, 32
T0, T1, T2, T3, T4, T5, T6 = 33, 34, 35, 36, 37, 38, 39
R_X, R_K, R_V, R_WQ, R_GU, R_DN, R_WO, R_WS, R_OUT = 40, 44, 48, 52, 56, 60, 64, 68, 76
S_EP = 72
M_H4 = 80
M_16 = 82
M_T = 84
S_CNT = 86
S_SP = 87
STAMP_REGS = [90, 92, 94, 96, 98, 100, 4, 6, 8, 10, 12, 14, 16, 18, 20, 22]
NSTAMP = 16

def srd(r): return f"s[{r}:{r+3}]"
def vr(a, n): return f"v[{a}:{a+n-1}]"

def gen(stamps=False, nt=True, cfg=None):
    cfg = cfg or {}
    a = Asm()
    kn = NAME + "_kernel"
    NT = " nt" if nt else ""
    D = int(cfg.get("D", 12))
    order = cfg.get("order", "WQ,GU,DN,V0,V1,V2,V3,WO").split(",")
    early_at = int(cfg.get("early", 16))
    cprio = int(cfg.get("cprio", 2))
    pidx = {p: i + 1 for i, p in enumerate(order)}
    nstamp = [0]; uid = [0]
    def lab(p):
        uid[0] += 1
        return f"L_{p}_{uid[0]}"
    def stamp():
        if stamps:
            i = nstamp[0]; nstamp[0] += 1
            assert i < NSTAMP
            r = STAMP_REGS[i]
            a(f"s_memrealtime s[{r}:{r+1}]")
    def xor16(op, v, t):
        a(f"v_mov_b32 v{t}, v{v}\ns_nop 1\nv_permlane16_swap_b32 v{v}, v{t}\ns_nop 0\n{op} v{v}, v{v}, v{t}")
    def xor32(op, v, t):
        a(f"v_mov_b32 v{t}, v{v}\ns_nop 1\nv_permlane32_swap_b32 v{v}, v{t}\ns_nop 0\n{op} v{v}, v{v}, v{t}")
    def xorN(kind, op, regs, tmps):
        for v, t in zip(regs, tmps): a(f"v_mov_b32 v{t}, v{v}")
        a("s_nop 1")
        for v, t in zip(regs, tmps): a(f"v_permlane{kind}_swap_b32 v{v}, v{t}")
        a("s_nop 0")
        for v, t in zip(regs, tmps): a(f"{op} v{v}, v{v}, v{t}")
    def wave_sum(v, t):
        for ctl in ["quad_perm:[1,0,3,2]", "quad_perm:[2,3,0,1]", "row_half_mirror", "row_mirror"]:
            a(f"s_nop 1\nv_add_f32_dpp v{v}, v{v}, v{v} {ctl} row_mask:0xf bank_mask:0xf")
        a("s_nop 0")
        xor16("v_add_f32", v, t)
        xor32("v_add_f32", v, t)
    def rne(dst, src):
        a(f"v_cvt_pk_bf16_f32 v{dst}, v{src}, v{src}\nv_lshlrev_b32 v{dst}, 16, v{dst}")

    VF, VONE, VS = 14, 15, 252
    VTAG, VMSK = 6, 7
    def spin_ge(off, val, four=False):
        l0, l1 = lab("sp"), lab("spd")
        a(f"s_mov_b32 s{S_SP}, 0")
        a.label(l0)
        if four:
            a(f"ds_read_b128 {vr(VS,4)}, v{VF} offset:{off}\ns_waitcnt lgkmcnt(0)")
            a(f"v_min_u32 v{VS}, v{VS}, v{VS+1}\nv_min3_u32 v{VS}, v{VS}, v{VS+2}, v{VS+3}")
        else:
            a(f"ds_read_b32 v{VS}, v{VF} offset:{off}\ns_waitcnt lgkmcnt(0)")
        a(f"""
        s_nop 0
        v_readfirstlane_b32 s{T6}, v{VS}
        s_add_u32 s{S_SP}, s{S_SP}, 1
        s_cmp_ge_u32 s{T6}, {val}
        s_cbranch_scc1 {l1}
        s_cmp_ge_u32 s{S_SP}, {SPIN_LIMIT}
        s_cbranch_scc1 {l1}
        s_sleep 1
        s_branch {l0}
        """)
        a.label(l1)
    def flag_add(off):
        a(f"s_mov_b64 exec, 1\nds_add_u32 v{VF}, v{VONE} offset:{off}\ns_mov_b64 exec, -1")
    ncb = [0]
    def cb_arrive():
        ncb[0] += 1
        flag_add(F_CB)
        return ncb[0]
    def cb_wait(n):
        spin_ge(F_CB, 4 * n)
    def cbarrier():
        cb_wait(cb_arrive())
    def wait_piece(p):
        spin_ge(F_LPROG, pidx[p], four=True)
    def tag(regs):
        for r in regs: a(f"v_bfi_b32 v{r}, v{VMSK}, v{VTAG}, v{r}")
    def poll(name, regs, loads, acc, first_wait):
        a(f"s_mov_b32 s{S_CNT}, 0\n{first_wait}")
        a.label(f"L_{name}_chk")
        a(f"v_xor_b32 v{acc}, v{regs[0]}, v{VTAG}")
        for r in regs[1:]:
            a(f"v_bitop3_b32 v{acc}, v{acc}, v{r}, v{VTAG} bitop3:0xf6")
        a(f"""
        v_and_b32 v{acc}, v{acc}, v{VMSK}
        v_cmp_ne_u32 vcc, 0, v{acc}
        s_cbranch_vccz L_{name}_ok
        s_add_u32 s{S_CNT}, s{S_CNT}, 1
        s_cmp_ge_u32 s{S_CNT}, {POLL_LIMIT}
        s_cbranch_scc1 L_{name}_ok
        """)
        loads()
        a(f"s_waitcnt vmcnt(0)\ns_branch L_{name}_chk")
        a.label(f"L_{name}_ok")

    kernel_begin(a, kn)
    a(f"""
    s_cmp_ge_u32 s2, 256
    s_cbranch_scc1 L_exit
    s_load_dwordx16 s[4:19], s[0:1], 0
    s_load_dwordx8 s[20:27], s[0:1], 64
    """)
    stamp()
    a(f"""
    v_and_b32 v1, 63, v0
    v_lshrrev_b32 v32, 6, v0
    v_and_b32 v2, 15, v1
    v_readfirstlane_b32 s{S_WAVE}, v32
    v_lshrrev_b32 v3, 4, v1
    v_and_b32 v4, 3, v1
    v_mov_b32 v{VF}, {L_FL}
    v_mov_b32 v{VONE}, 1
    s_lshr_b32 s{S_B}, s2, 6
    s_bfe_u32 s{S_HKV}, s2, 0x30003
    s_and_b32 s{S_S}, s2, 7
    s_lshl_b32 s{S_H}, s{S_HKV}, 2
    s_add_u32 s{S_H}, s{S_H}, s{S_B}
    s_cmp_lg_u32 s{S_WAVE}, 0
    s_cbranch_scc1 L_noinit
    v_lshlrev_b32 v32, 2, v1
    v_mov_b32 v33, 0
    s_mov_b64 exec, 0xFFFF
    ds_write_b32 v32, v33 offset:{L_FL}
    s_mov_b64 exec, -1
    s_waitcnt lgkmcnt(0)
    """)
    a.label("L_noinit")
    a(f"""
    s_barrier
    s_cmp_ge_u32 s{S_WAVE}, 4
    s_cbranch_scc0 L_cwave
    """)
    a(f"s_sub_u32 s{S_WAVE}, s{S_WAVE}, 4")
    a(f"""
    v_lshrrev_b32 v32, 3, v1
    v_and_b32 v33, 7, v1
    v_lshlrev_b32 v33, 4, v33
    v_lshl_add_u32 v22, v32, 13, v33
    s_lshl_b32 s{T0}, s{S_B}, 20
    s_lshl_b32 s{T1}, s{S_HKV}, 10
    s_add_u32 s{T0}, s{T0}, s{T1}
    s_lshl_b32 s{T1}, s{S_S}, 7
    s_add_u32 s{T4}, s{T0}, s{T1}
    s_waitcnt lgkmcnt(0)
    s_add_u32 s{R_WQ}, s10, s{T4}
    s_addc_u32 s{R_WQ+1}, s11, 0
    s_mov_b32 s{R_WQ+2}, {127*8192+128}
    s_mov_b32 s{R_WQ+3}, 0x20000
    """)
    def late_setup():
        for v in range(2):
            a(f"v_lshlrev_b32 v34, 1, v3\nv_add_u32 v34, {8*v}, v34\nv_xor_b32 v{20+v}, v2, v34\nv_lshlrev_b32 v{20+v}, 4, v{20+v}\nv_lshl_add_u32 v{20+v}, v3, 8, v{20+v}")
        a(f"""
        v_mul_u32_u24 v23, 3584, v32
        v_add_u32 v23, v23, v33
        v_lshl_add_u32 v24, v32, 10, v33
        s_lshl_b32 s{T4}, s{S_WAVE}, 2
        s_add_u32 s{T4}, s{T4}, {L_FL}
        v_mov_b32 v25, s{T4}
        s_lshl_b32 s{T0}, s2, 17
        s_add_u32 s{R_V}, s8, s{T0}
        s_addc_u32 s{R_V+1}, s9, 0
        s_mov_b32 s{R_V+2}, 131072
        s_mov_b32 s{R_V+3}, 0x20000
        s_and_b32 s{T0}, s{S_S}, 1
        s_cmp_eq_u32 s{T0}, 0
        s_cselect_b32 s{T2}, s16, s18
        s_cselect_b32 s{T3}, s17, s19
        s_lshr_b32 s{T0}, s{S_S}, 1
        s_mul_i32 s{T0}, s{T0}, {128*3584}
        s_lshl_b32 s{T1}, s{S_H}, 7
        s_add_u32 s{T0}, s{T0}, s{T1}
        s_add_u32 s{R_GU}, s{T2}, s{T0}
        s_addc_u32 s{R_GU+1}, s{T3}, 0
        s_cmp_lt_u32 s{S_H}, 28
        s_cselect_b32 s{R_GU+2}, {127*3584+128}, 0
        s_mov_b32 s{R_GU+3}, 0x20000
        s_lshl_b32 s{T0}, s{S_H}, 16
        s_lshl_b32 s{T1}, s{S_S}, 7
        s_add_u32 s{T0}, s{T0}, s{T1}
        s_add_u32 s{R_DN}, s20, s{T0}
        s_addc_u32 s{R_DN+1}, s21, 0
        s_cmp_lt_u32 s{S_H}, 28
        s_cselect_b32 s{R_DN+2}, {63*1024+128}, 0
        s_mov_b32 s{R_DN+3}, 0x20000
        s_lshl_b32 s{T0}, s{S_H}, 17
        s_lshl_b32 s{T1}, s{S_S}, 7
        s_add_u32 s{T0}, s{T0}, s{T1}
        s_add_u32 s{R_WO}, s12, s{T0}
        s_addc_u32 s{R_WO+1}, s13, 0
        s_mov_b32 s{R_WO+2}, {127*1024+128}
        s_mov_b32 s{R_WO+3}, 0x20000
        """)
    def piece_instrs(p):
        out = []
        if p in ("WQ", "GU", "WO", "DN"):
            n_per = 2 if p == "DN" else 4
            stride = {"WQ": 8192, "GU": 3584, "WO": 1024, "DN": 1024}[p]
            vo = {"WQ": 22, "GU": 23, "WO": 24, "DN": 24}[p]
            R = {"WQ": R_WQ, "GU": R_GU, "WO": R_WO, "DN": R_DN}[p]
            LB = {"WQ": L_T0, "GU": L_GUT, "WO": L_T0, "DN": L_DNT}[p]
            for q in range(n_per):
                def f(q=q, LB=LB, stride=stride, vo=vo, R=R, n_per=n_per):
                    if q == 0:
                        a(f"""
                        s_mul_i32 s{T1}, s{S_WAVE}, {n_per*8*stride}
                        s_mul_i32 s{T0}, s{S_WAVE}, {n_per*1024}
                        s_add_u32 s{T0}, s{T0}, {LB}
                        """)
                    else:
                        a(f"s_add_u32 s{T1}, s{T1}, {8*stride}\ns_add_u32 s{T0}, s{T0}, 1024")
                    a(f"""
                    s_mov_b32 m0, s{T0}
                    s_nop 0
                    buffer_load_dwordx4 v{vo}, {srd(R)}, s{T1} offen{NT} lds
                    """)
                out.append(f)
        else:
            st = int(p[1])
            for q in range(8):
                def f(q=q, st=st):
                    if q % 4 == 0:
                        a(f"""
                        s_lshl_b32 s{T0}, s{S_WAVE}, 13
                        s_add_u32 s{T0}, s{T0}, {st*32768 + (q//4)*4096}
                        s_add_u32 s{T1}, s{T0}, {L_RING}
                        s_mov_b32 m0, s{T1}
                        s_nop 0
                        """)
                    a(f"buffer_load_dwordx4 v{20 + q % 2}, {srd(R_V)}, s{T0} offen offset:{(q%4)*1024}{NT} lds")
                out.append(f)
        return out
    seq = []
    for p in order:
        ins = piece_instrs(p)
        for k, f in enumerate(ins):
            seq.append((p, k == 0, k == len(ins) - 1, f))
    total = len(seq)
    ends = {}
    for i, (p, first, last, f) in enumerate(seq):
        if last: ends[p] = i + 1
    def signal(p):
        a(f"v_mov_b32 v26, {pidx[p]}\nds_write_b32 v25, v26")
    signaled = []
    esig = {}
    for item in cfg.get("esig", "10:WQ+GU+DN").split(","):
        k, v = item.split(":"); esig[int(k)] = v.split("+")
    early = [p for v in esig.values() for p in v]
    a("s_setprio 3")
    for i, (p, first, last, f) in enumerate(seq):
        if first:
            if p == "WO": spin_ge(F_T0, 4)
            if p == "V3": spin_ge(F_R3, 4)
        f()
        issued = i + 1
        if issued == ends[order[0]]:
            late_setup()
        if issued == int(cfg.get("hiprio", 10)):
            a("s_setprio 0")
        if issued in esig:
            for q in esig[issued]:
                a(f"s_waitcnt vmcnt({issued - ends[q]})")
                signal(q); signaled.append(q)
        for q in order:
            if q not in signaled and q not in early and ends[q] + D <= issued:
                a(f"s_waitcnt vmcnt({issued - ends[q]})")
                signal(q); signaled.append(q)
    for q in order:
        if q not in signaled:
            a(f"s_waitcnt vmcnt({total - ends[q]})")
            signal(q); signaled.append(q)
    a("s_waitcnt lgkmcnt(0)\ns_branch L_exit")

    a.label("L_cwave")
    a(f"s_setprio {cprio}")
    a(f"""
    v_lshlrev_b32 v5, 4, v1                       ; l*16
    v_mov_b32 v33, 0
    s_lshl_b32 s{T0}, s{S_WAVE}, 10
    s_waitcnt lgkmcnt(0)
    s_mov_b32 s{R_X}, s4
    s_mov_b32 s{R_X+1}, s5
    s_mov_b32 s{R_X+2}, 4096
    s_mov_b32 s{R_X+3}, 0x20000
    buffer_load_dwordx4 v[20:23], v5, {srd(R_X)}, s{T0} offen
    s_mov_b32 s{R_WS}, s26
    s_mov_b32 s{R_WS+1}, s27
    s_mov_b32 s{R_WS+2}, {WS_SIZE}
    s_mov_b32 s{R_WS+3}, 0x20000
    s_mov_b32 s{T1}, {EP_OFF}
    buffer_load_dword v{VTAG}, v33, {srd(R_WS)}, s{T1} offen sc1
    s_lshl_b32 s{T0}, s2, 17
    s_add_u32 s{R_K}, s6, s{T0}
    s_addc_u32 s{R_K+1}, s7, 0
    s_mov_b32 s{R_K+2}, 131072
    s_mov_b32 s{R_K+3}, 0x20000
    s_lshl_b32 s{T0}, s{S_WAVE}, 15
    v_lshlrev_b32 v16, 8, v2
    v_lshl_add_u32 v16, v3, 4, v16
    v_add_u32 v16, s{T0}, v16                     ; K voffset
    """)
    KB = 64
    def kload(T):
        if T == 0: so = "0"
        else:
            a(f"s_mov_b32 s{T0}, {T*4096}"); so = f"s{T0}"
        for j in range(4):
            r = KB + (T * 4 + j) * 4
            a(f"buffer_load_dwordx4 {vr(r,4)}, v16, {srd(R_K)}, {so} offen offset:{j*64}{NT}")
    kearly = int(cfg.get("kearly", 2))
    for T in range(kearly): kload(T)
    a(f"""
    s_mov_b32 s{M_H4}, 0x000F000F
    s_mov_b32 s{M_H4+1}, 0x000F000F
    s_mov_b32 s{M_16}, 0xFFFF
    s_mov_b32 s{M_16+1}, 0
    s_mov_b32 s{R_OUT}, s22
    s_mov_b32 s{R_OUT+1}, s23
    s_mov_b32 s{R_OUT+2}, 4096
    s_mov_b32 s{R_OUT+3}, 0x20000
    """)
    SQP, SGU, SAP, SOP, SML = 64, 65, 66, 67, 60
    a(f"""
    s_lshl_b32 s{SQP}, s{S_B}, 16
    s_lshl_b32 s{T1}, s{S_HKV}, 11
    s_add_u32 s{SQP}, s{SQP}, s{T1}
    s_lshl_b32 s{T1}, s{S_S}, 8
    s_add_u32 s{SQP}, s{SQP}, s{T1}
    s_add_u32 s{SQP}, s{SQP}, {QP_OFF}
    s_lshl_b32 s{SGU}, s{S_H}, 13
    s_lshl_b32 s{T1}, s{S_S}, 10
    s_add_u32 s{SGU}, s{SGU}, s{T1}
    s_add_u32 s{SGU}, s{SGU}, {GU_OFF}
    s_lshl_b32 s{SAP}, s{S_HKV}, 16
    s_lshl_b32 s{T1}, s{S_B}, 12
    s_add_u32 s{SAP}, s{SAP}, s{T1}
    s_lshl_b32 s{T1}, s{S_S}, 9
    s_add_u32 s{SAP}, s{SAP}, s{T1}
    s_add_u32 s{SAP}, s{SAP}, {AP_OFF}
    s_lshl_b32 s{SOP}, s{S_S}, 15
    s_lshl_b32 s{T1}, s{S_H}, 8
    s_add_u32 s{SOP}, s{SOP}, s{T1}
    s_add_u32 s{SOP}, s{SOP}, {OP_OFF}
    s_lshl_b32 s{SML}, s{S_HKV}, 11
    s_lshl_b32 s{T1}, s{S_B}, 9
    s_add_u32 s{SML}, s{SML}, s{T1}
    s_lshl_b32 s{T1}, s{S_S}, 6
    s_add_u32 s{SML}, s{SML}, s{T1}
    s_add_u32 s{SML}, s{SML}, {ML_OFF}
    s_lshl_b32 s{T1}, s{S_WAVE}, 6                ; t*64
    v_lshlrev_b32 v11, 14, v2
    v_lshl_add_u32 v11, v3, 4, v11
    v_add_u32 v11, s{T1}, v11
    v_lshlrev_b32 v12, 8, v2
    v_lshl_add_u32 v12, v3, 4, v12
    v_add_u32 v12, s{T1}, v12                     ; GU lane part
    v_lshlrev_b32 v13, 13, v2
    v_lshl_add_u32 v13, v3, 4, v13
    v_add_u32 v13, s{T1}, v13
    v_lshrrev_b32 v32, 2, v2
    v_lshl_add_u32 v32, v3, 3, v32
    v_lshlrev_b32 v32, 7, v32
    v_lshl_add_u32 v34, v4, 3, v32
    s_lshl_b32 s{T3}, s{S_WAVE}, 5
    s_add_u32 s{T3}, s{T3}, {L_T0}
    v_add_u32 v34, s{T3}, v34                     ; T0 + (8g+r)*128 + t*32 + c4*8
    v_mul_u32_u24 v35, {Q_STR}, v4
    v_lshl_add_u32 v35, v3, 4, v35                ; (l&3)*272 + g*16
    v_add_u32 v17, {L_GUT - L_T0}, v34
    v_add_u32 v18, {L_DNT - L_T0}, v34
    v_mov_b32 v{VMSK}, {TAGMASK}
    s_waitcnt vmcnt({4*kearly})
    """)
    stamp()
    a(f"""
    v_readfirstlane_b32 s{S_EP}, v{VTAG}
    v_add_u32 v{VTAG}, 1, v{VTAG}
    v_and_b32 v{VTAG}, {TAGMASK}, v{VTAG}
    """)
    for e in range(4):
        a(f"v_lshlrev_b32 v{24+2*e}, 16, v{20+e}\nv_and_b32 v{25+2*e}, 0xffff0000, v{20+e}")
    a(f"""
    v_add_f32 v32, v24, v25
    v_add_f32 v33, v26, v27
    v_add_f32 v36, v28, v29
    v_add_f32 v37, v30, v31
    v_add_f32 v32, v32, v33
    v_add_f32 v36, v36, v37
    v_add_f32 v32, v32, v36
    """)
    wave_sum(32, 33)
    a("v_mul_f32 v32, 0x3b000000, v32")
    for e in range(8):
        a(f"v_sub_f32 v{36+e}, v{24+e}, v32")
    a("v_mul_f32 v33, v36, v36")
    for e in range(1, 8):
        a(f"v_fmac_f32 v33, v{36+e}, v{36+e}")
    wave_sum(33, 44)
    a("v_mul_f32 v33, 0x3b000000, v33")
    rne(32, 32); rne(33, 33)
    a("v_add_f32 v33, 0x3727c5ac, v33")
    rne(33, 33)
    a("v_sqrt_f32 v33, v33\ns_nop 0")
    rne(33, 33)
    a("v_rcp_f32 v33, v33")
    for e in range(8):
        a(f"v_sub_f32 v{36+e}, v{24+e}, v32")
    for e in range(0, 8, 2):
        a(f"v_cvt_pk_bf16_f32 v44, v{36+e}, v{37+e}\nv_lshlrev_b32 v{36+e}, 16, v44\nv_and_b32 v{37+e}, 0xffff0000, v44")
    for e in range(8):
        a(f"v_mul_f32 v{36+e}, v{36+e}, v33")
    for e in range(4):
        a(f"v_cvt_pk_bf16_f32 v{44+e}, v{36+2*e}, v{37+2*e}")
    a(f"""
    s_mul_i32 s{T0}, s{S_WAVE}, {Q_STR}
    v_lshlrev_b32 v32, 4, v2
    v_add_u32 v32, s{T0}, v32
    v_cmp_eq_u32 vcc, s{S_B}, v3
    s_and_saveexec_b64 s[{M_T}:{M_T+1}], vcc
    ds_write_b128 v32, v[44:47] offset:{L_XQ}
    s_mov_b64 exec, -1
    s_lshr_b32 s{T1}, s{S_S}, 1
    v_cmp_eq_u32 vcc, s{T1}, v3
    s_and_saveexec_b64 s[{M_T}:{M_T+1}], vcc
    ds_write_b128 v32, v[44:47] offset:{L_XG}
    s_mov_b64 exec, -1
    """)
    cbarrier()
    stamp()
    WF, XF, DA = 48, 224, 240
    def p1(xoff, voff, sbase, first, areg):
        for kk in range(4):
            a(f"ds_read_b128 {vr(XF+4*kk,4)}, v35 offset:{xoff+kk*64}")
        for kk in range(4):
            a(f"ds_read_b64_tr_b16 {vr(WF+4*kk,2)}, v{areg} offset:{kk*4096}")
            a(f"ds_read_b64_tr_b16 {vr(WF+4*kk+2,2)}, v{areg} offset:{kk*4096+512}")
        if first: flag_add(F_T0)
        a("s_waitcnt lgkmcnt(0)")
        for kk in range(4):
            c = "0" if kk == 0 else vr(DA,4)
            a(f"v_mfma_f32_16x16x32_bf16 {vr(DA,4)}, {vr(WF+4*kk,4)}, {vr(XF+4*kk,4)}, {c}")
        a("s_nop 7")
        tag(range(DA, DA+4))
        a(f"""
        s_mov_b64 exec, s[{M_H4}:{M_H4+1}]
        buffer_store_dwordx4 {vr(DA,4)}, v{voff}, {srd(R_WS)}, s{sbase} offen sc1
        s_mov_b64 exec, -1
        """)
    wait_piece("WQ")
    stamp()
    p1(L_XQ, 11, SQP, True, 34)
    stamp()
    DF = 240; DN_ACC = 248
    QG, GG = 224, 24
    a(f"""
    s_lshl_b32 s{T0}, s{S_B}, 14
    s_lshl_b32 s{T1}, s{S_HKV}, 11
    s_add_u32 s{T0}, s{T0}, s{T1}
    s_lshl_b32 s{T1}, s{S_WAVE}, 9
    s_add_u32 s{T5}, s{T0}, s{T1}
    s_add_u32 s{T5}, s{T5}, {QP_OFF}
    v_lshlrev_b32 v38, 16, v3
    v_lshl_add_u32 v38, v2, 4, v38
    s_lshl_b32 s{T4}, s{S_H}, 13
    s_lshl_b32 s{T1}, s{S_WAVE}, 8
    s_add_u32 s{T4}, s{T4}, s{T1}
    s_add_u32 s{T4}, s{T4}, {GU_OFF}
    v_lshlrev_b32 v39, 10, v3
    v_lshl_add_u32 v39, v2, 4, v39
    v_add_u32 v40, 4096, v39
    """)
    QG = 20
    GG = 28
    GG = 108
    def qloads():
        a(f"buffer_load_dwordx4 {vr(QG,4)}, v38, {srd(R_WS)}, s{T5} offen sc1")
        a(f"buffer_load_dwordx4 {vr(QG+4,4)}, v38, {srd(R_WS)}, s{T5} offen offset:256 sc1")
    GG = 24
    def gloads():
        a(f"buffer_load_dwordx4 {vr(GG,4)}, v39, {srd(R_WS)}, s{T4} offen sc1")
        a(f"buffer_load_dwordx4 {vr(GG+4,4)}, v40, {srd(R_WS)}, s{T4} offen sc1")
    def p1g_block():
        wait_piece("GU")
        p1(L_XG, 12, SGU, False, 17)
        wait_piece("DN")
        a("s_nop 1")
        for kk in range(2):
            a(f"ds_read_b64_tr_b16 {vr(DF+4*kk,2)}, v18 offset:{kk*4096}")
            a(f"ds_read_b64_tr_b16 {vr(DF+4*kk+2,2)}, v18 offset:{kk*4096+512}")
        flag_add(F_R3)
    p1g_block()
    stamp()
    for T in range(kearly, 8): kload(T)
    qloads()
    poll("q", list(range(QG, QG+8)), qloads, 41, "s_waitcnt vmcnt(0)")
    stamp()
    xorN(16, "v_add_f32", list(range(QG, QG+8)), list(range(41, 49)))
    xorN(32, "v_add_f32", list(range(QG, QG+8)), list(range(41, 49)))
    a(f"""
    v_cvt_pk_bf16_f32 v42, v{QG}, v{QG+1}
    v_cvt_pk_bf16_f32 v43, v{QG+2}, v{QG+3}
    v_cvt_pk_bf16_f32 v44, v{QG+4}, v{QG+5}
    v_cvt_pk_bf16_f32 v45, v{QG+6}, v{QG+7}
    s_mul_i32 s{T0}, s{S_WAVE}, {Q_STR}
    s_add_u32 s{T0}, s{T0}, {L_Q}
    v_lshlrev_b32 v41, 3, v2
    v_add_u32 v41, s{T0}, v41
    s_mov_b64 exec, s[{M_16}:{M_16+1}]
    ds_write_b64 v41, v[42:43]
    ds_write_b64 v41, v[44:45] offset:128
    s_mov_b64 exec, -1
    """)
    cbarrier()
    QF, SS = 48, 192
    for j in range(4):
        a(f"ds_read_b128 {vr(QF+4*j,4)}, v35 offset:{L_Q+j*64}")
    a("s_waitcnt lgkmcnt(0)")
    stamp()
    for j in range(4):
        for T in range(8):
            c = "0" if j == 0 else vr(SS+4*T,4)
            a(f"v_mfma_f32_16x16x32_bf16 {vr(SS+4*T,4)}, {vr(KB+(T*4+j)*4,4)}, {vr(QF+4*j,4)}, {c}")
    a("s_nop 7")
    for p in range(16):
        x0, x1 = SS + 2*p, SS + 2*p + 1
        a(f"""
        v_cvt_pk_bf16_f32 v41, v{x0}, v{x1}
        v_lshlrev_b32 v{x0}, 16, v41
        v_and_b32 v{x1}, 0xffff0000, v41
        v_mul_f32 v{x0}, 0x{SCALE:x}, v{x0}
        v_mul_f32 v{x1}, 0x{SCALE:x}, v{x1}
        v_cvt_pk_bf16_f32 v41, v{x0}, v{x1}
        v_lshlrev_b32 v{x0}, 16, v41
        v_and_b32 v{x1}, 0xffff0000, v41
        """)
    a(f"v_max3_f32 v41, v{SS}, v{SS+1}, v{SS+2}")
    for p in range(3, 31, 2):
        a(f"v_max3_f32 v41, v41, v{SS+p}, v{SS+p+1}")
    a(f"v_max_f32 v41, v41, v{SS+31}")
    xor16("v_max_f32", 41, 42)
    xor32("v_max_f32", 41, 42)
    a(f"""
    s_lshl_b32 s{T0}, s{S_WAVE}, 6
    v_lshlrev_b32 v43, 2, v2
    v_add_u32 v44, s{T0}, v43
    s_mov_b64 exec, s[{M_16}:{M_16+1}]
    ds_write_b32 v44, v41 offset:{L_WM}
    s_mov_b64 exec, -1
    """)
    cbarrier()
    for w in range(4):
        a(f"ds_read_b32 v{48+w}, v43 offset:{L_WM+w*64}")
    a(f"""
    s_waitcnt lgkmcnt(0)
    v_max3_f32 v46, v48, v49, v50
    v_max_f32 v46, v46, v51
    s_mov_b32 s{T1}, 0x{LOG2E:x}
    v_mul_f32 v47, s{T1}, v46
    """)
    for p in range(32):
        a(f"v_fma_f32 v{SS+p}, v{SS+p}, s{T1}, -v47")
    for p in range(32):
        a(f"v_exp_f32 v{SS+p}, v{SS+p}")
    a("s_nop 0")
    a(f"v_add_f32 v41, v{SS}, v{SS+1}\nv_add_f32 v42, v{SS+2}, v{SS+3}")
    for p in range(4, 32, 2):
        a(f"v_add_f32 v41, v41, v{SS+p}\nv_add_f32 v42, v42, v{SS+p+1}")
    a("v_add_f32 v41, v41, v42")
    PP = 224
    for p in range(16):
        a(f"v_cvt_pk_bf16_f32 v{PP+p}, v{SS+2*p}, v{SS+2*p+1}")
    xor16("v_add_f32", 41, 42)
    xor32("v_add_f32", 41, 42)
    a(f"""
    s_lshl_b32 s{T0}, s{S_WAVE}, 8
    v_mul_u32_u24 v45, {P_STR}, v2
    v_lshl_add_u32 v45, v3, 4, v45
    v_add_u32 v45, s{T0}, v45
    s_mov_b64 exec, s[{M_16}:{M_16+1}]
    ds_write_b32 v44, v41 offset:{L_WL}
    s_mov_b64 exec, s[{M_H4}:{M_H4+1}]
    """)
    for st in range(4):
        a(f"ds_write_b128 v45, {vr(PP+4*st,4)} offset:{L_P+st*64}")
    a("s_mov_b64 exec, -1")
    cb_p = cb_arrive()
    gloads()
    stamp()
    a(f"""
    v_mul_u32_u24 v41, {P_STR}, v4
    v_lshl_add_u32 v41, v3, 4, v41
    v_add_u32 v41, {L_P}, v41
    v_lshrrev_b32 v42, 2, v2
    v_lshl_add_u32 v42, v3, 2, v42                ; key_local
    v_and_b32 v43, 7, v42
    v_lshlrev_b32 v43, 1, v43
    v_lshrrev_b32 v44, 1, v4
    s_lshl_b32 s{T0}, s{S_WAVE}, 2
    v_add_u32 v44, s{T0}, v44
    v_xor_b32 v45, v44, v43
    v_lshlrev_b32 v45, 4, v45
    v_lshl_add_u32 v45, v42, 8, v45
    v_and_b32 v48, 1, v4
    v_lshl_add_u32 v16, v48, 3, v45
    v_add_u32 v16, {L_RING}, v16
    v_add_u32 v17, 65536, v16
    v_add_u32 v44, 2, v44
    v_xor_b32 v45, v44, v43
    v_lshlrev_b32 v45, 4, v45
    v_lshl_add_u32 v45, v42, 8, v45
    v_lshl_add_u32 v18, v48, 3, v45
    v_add_u32 v18, {L_RING}, v18
    v_add_u32 v19, 65536, v18
    v_lshlrev_b32 v44, 2, v2
    """)
    cb_wait(cb_p)
    for w in range(4):
        a(f"ds_read_b32 v{48+w}, v44 offset:{L_WL+w*64}")
    a(f"""
    s_waitcnt lgkmcnt(0)
    v_add_f32 v47, v48, v49
    v_add_f32 v48, v50, v51
    v_add_f32 v47, v47, v48
    v_mov_b32 v20, v46
    v_mov_b32 v21, v47
    v_mov_b32 v22, v46
    v_mov_b32 v23, v47
    """)
    tag([20, 21, 22, 23])
    a(f"""
    s_cmp_lg_u32 s{S_WAVE}, 0
    s_cbranch_scc1 L_ml_done
    s_mov_b64 exec, 15
    buffer_store_dwordx4 v[20:23], v5, {srd(R_WS)}, s{SML} offen sc1
    s_mov_b64 exec, -1
    """)
    a.label("L_ml_done")
    ACC = 184
    firstpv = [True]
    def pv(st):
        wait_piece(f"V{st}")
        for q in range(4):
            kb = 4 * st + q
            off = (kb % 8) * 8192
            b0, b1 = (16, 18) if kb < 8 else (17, 19)
            r = 64 + 12 * q
            a(f"ds_read_b128 {vr(r,4)}, v41 offset:{kb*64}")
            a(f"ds_read_b64_tr_b16 {vr(r+4,2)}, v{b0} offset:{off}")
            a(f"ds_read_b64_tr_b16 {vr(r+6,2)}, v{b0} offset:{off+4096}")
            a(f"ds_read_b64_tr_b16 {vr(r+8,2)}, v{b1} offset:{off}")
            a(f"ds_read_b64_tr_b16 {vr(r+10,2)}, v{b1} offset:{off+4096}")
        for q in range(4):
            r = 64 + 12 * q
            a(f"s_waitcnt lgkmcnt({15 - 5 * q})")
            for dt in range(2):
                c = "0" if firstpv[0] else vr(ACC+4*dt,4)
                a(f"v_mfma_f32_16x16x32_bf16 {vr(ACC+4*dt,4)}, {vr(r+4+4*dt,4)}, {vr(r,4)}, {c}")
            firstpv[0] = False
    pv(0); pv(1)
    poll("g", list(range(GG, GG+8)), gloads, 44, "s_waitcnt vmcnt(0)")
    for e in range(4):
        a(f"v_add_f32 v{GG+e}, v{GG+e}, v{GG+4+e}")
    xorN(32, "v_add_f32", list(range(GG, GG+4)), [44,45,47,48])
    for e in range(4):
        a(f"v_mov_b32 v{GG+4+e}, v{GG+e}")
    a("s_nop 1")
    for e in range(4):
        a(f"v_permlane16_swap_b32 v{GG+e}, v{GG+4+e}")
    a("s_nop 0")
    for e in range(4):
        rne(GG+e, GG+e); rne(GG+4+e, GG+4+e)
    tm = [44, 45, 47, 48]
    for e in range(4): a(f"v_mul_f32 v{tm[e]}, v{GG+e}, v{GG+e}")
    for e in range(4): a(f"v_mul_f32 v{tm[e]}, v{tm[e]}, v{GG+e}")
    for e in range(4): a(f"v_mul_f32 v{tm[e]}, 0x3d372713, v{tm[e]}")
    for e in range(4): a(f"v_add_f32 v{tm[e]}, v{tm[e]}, v{GG+e}")
    for e in range(4): a(f"v_mul_f32 v{tm[e]}, 0xc0135761, v{tm[e]}")
    for e in range(4): a(f"v_exp_f32 v{tm[e]}, v{tm[e]}")
    a("s_nop 0")
    for e in range(4): a(f"v_add_f32 v{tm[e]}, 1.0, v{tm[e]}")
    for e in range(4): a(f"v_rcp_f32 v{tm[e]}, v{tm[e]}")
    a("s_nop 0")
    for e in range(4): a(f"v_mul_f32 v{GG+e}, v{GG+e}, v{tm[e]}")
    for e in range(4): rne(GG+e, GG+e)
    for e in range(4): a(f"v_mul_f32 v{GG+e}, v{GG+e}, v{GG+4+e}")
    a(f"""
    v_cvt_pk_bf16_f32 v44, v{GG}, v{GG+1}
    v_cvt_pk_bf16_f32 v45, v{GG+2}, v{GG+3}
    s_mul_i32 s{T0}, s{S_WAVE}, {H_STR}
    v_lshlrev_b32 v47, 3, v2
    v_add_u32 v47, s{T0}, v47
    s_mov_b64 exec, s[{M_16}:{M_16+1}]
    ds_write_b64 v47, v[44:45] offset:{L_H}
    s_mov_b64 exec, -1
    """)
    cbarrier()
    a(f"""
    v_mul_u32_u24 v47, {H_STR}, v4
    v_lshl_add_u32 v47, v3, 4, v47
    """)
    HF = 224
    for kk in range(2):
        a(f"ds_read_b128 {vr(HF+4*kk,4)}, v47 offset:{L_H+kk*64}")
    a("s_waitcnt lgkmcnt(0)")
    for kk in range(2):
        c = "0" if kk == 0 else vr(DN_ACC,4)
        a(f"v_mfma_f32_16x16x32_bf16 {vr(DN_ACC,4)}, {vr(DF+4*kk,4)}, {vr(HF+4*kk,4)}, {c}")
    stamp()
    pv(2)
    stamp()
    pv(3)
    a(f"""
    s_lshl_b32 s{T1}, s{S_WAVE}, 6
    v_add_u32 v45, s{T1}, v11
    s_nop 6
    """)
    tag(range(ACC, ACC+8))
    a(f"""
    s_mov_b64 exec, s[{M_H4}:{M_H4+1}]
    buffer_store_dwordx4 {vr(ACC,4)}, v45, {srd(R_WS)}, s{SAP} offen sc1
    buffer_store_dwordx4 {vr(ACC+4,4)}, v45, {srd(R_WS)}, s{SAP} offen offset:64 sc1
    s_mov_b64 exec, -1
    """)
    stamp()
    AG, MG, WOF = 64, 80, 96
    a(f"""
    s_lshl_b32 s{T0}, s{S_H}, 14
    s_lshl_b32 s{T1}, s{S_WAVE}, 12
    s_add_u32 s{T0}, s{T0}, s{T1}
    s_add_u32 s{T0}, s{T0}, {AP_OFF}
    s_lshl_b32 s{T1}, s{S_HKV}, 11
    s_lshl_b32 s{T2}, s{S_WAVE}, 9
    s_add_u32 s{T1}, s{T1}, s{T2}
    s_lshl_b32 s{T2}, s{S_B}, 4
    s_add_u32 s{T1}, s{T1}, s{T2}
    s_add_u32 s{T1}, s{T1}, {ML_OFF}
    v_lshrrev_b32 v33, 5, v1
    v_lshlrev_b32 v33, 6, v33
    """)
    def hop1_loads():
        for m in range(4):
            a(f"buffer_load_dwordx4 {vr(AG+4*m,4)}, v5, {srd(R_WS)}, s{T0} offen offset:{m*1024} sc1")
        for m in range(4):
            a(f"buffer_load_dwordx2 {vr(MG+2*m,2)}, v33, {srd(R_WS)}, s{T1} offen offset:{m*128} sc1")
    hop1_loads()
    wait_piece("WO")
    for kk in range(4):
        a(f"ds_read_b64_tr_b16 {vr(WOF+4*kk,2)}, v34 offset:{kk*4096}")
        a(f"ds_read_b64_tr_b16 {vr(WOF+4*kk+2,2)}, v34 offset:{kk*4096+512}")
    poll("h1", list(range(AG, AG+16)) + list(range(MG, MG+8)), hop1_loads, 36, "s_waitcnt vmcnt(0)")
    stamp()
    ms = [MG + 2*m for m in range(4)]
    ls = [MG + 2*m + 1 for m in range(4)]
    a(f"""
    v_max3_f32 v36, v{ms[0]}, v{ms[1]}, v{ms[2]}
    v_max_f32 v36, v36, v{ms[3]}
    """)
    xor32("v_max_f32", 36, 37)
    a(f"s_mov_b32 s{T2}, 0x{LOG2E:x}")
    for m in range(4):
        a(f"v_sub_f32 v{ms[m]}, v{ms[m]}, v36")
    for m in range(4):
        a(f"v_mul_f32 v{ms[m]}, s{T2}, v{ms[m]}")
    for m in range(4):
        a(f"v_exp_f32 v{ms[m]}, v{ms[m]}")
    a("s_nop 0")
    a(f"v_mul_f32 v48, v{ms[0]}, v{ls[0]}")
    for m in range(1, 4):
        a(f"v_fmac_f32 v48, v{ms[m]}, v{ls[m]}")
    for e in range(4):
        a(f"v_mul_f32 v{44+e}, v{ms[0]}, v{AG+e}")
    for m in range(1, 4):
        for e in range(4):
            a(f"v_fmac_f32 v{44+e}, v{ms[m]}, v{AG+4*m+e}")
    xorN(32, "v_add_f32", [44,45,46,47,48], [36,37,38,39,40])
    a("v_rcp_f32 v48, v48\ns_nop 0")
    for e in range(4):
        a(f"v_mul_f32 v{44+e}, v{44+e}, v48")
    a(f"""
    v_cvt_pk_bf16_f32 v42, v44, v45
    v_cvt_pk_bf16_f32 v43, v46, v47
    s_mul_i32 s{T2}, s{S_WAVE}, {Q_STR}
    v_lshlrev_b32 v41, 3, v1
    v_add_u32 v41, s{T2}, v41
    s_mov_b32 exec_lo, -1
    s_mov_b32 exec_hi, 0
    ds_write_b64 v41, v[42:43] offset:{L_OB}
    s_mov_b64 exec, -1
    """)
    cbarrier()
    OF = 112
    for kk in range(4):
        a(f"ds_read_b128 {vr(OF+4*kk,4)}, v35 offset:{L_OB+kk*64}")
    a("s_waitcnt lgkmcnt(0)")
    for kk in range(4):
        a(f"v_mfma_f32_16x16x32_bf16 {vr(DN_ACC,4)}, {vr(WOF+4*kk,4)}, {vr(OF+4*kk,4)}, {vr(DN_ACC,4)}")
    a("s_nop 7")
    tag(range(DN_ACC, DN_ACC+4))
    a(f"""
    s_mov_b64 exec, s[{M_H4}:{M_H4+1}]
    buffer_store_dwordx4 {vr(DN_ACC,4)}, v13, {srd(R_WS)}, s{SOP} offen sc1
    s_mov_b64 exec, -1
    """)
    stamp()
    a(f"""
    s_cmp_lg_u32 s{S_HKV}, 0
    s_cbranch_scc1 L_end
    s_cmp_lg_u32 s{S_WAVE}, 0
    s_cbranch_scc1 L_end
    s_lshl_b32 s{T0}, s{S_S}, 2
    s_add_u32 s{T0}, s{T0}, s{S_B}
    s_lshl_b32 s{T0}, s{T0}, 13
    s_add_u32 s{T0}, s{T0}, {OP_OFF}
    s_add_u32 s{T1}, s{T0}, 4096
    s_lshl_b32 s{T2}, s{S_B}, 10
    s_lshl_b32 s{T3}, s{S_S}, 7
    s_add_u32 s{T2}, s{T2}, s{T3}
    v_lshlrev_b32 v33, 3, v2
    buffer_load_dwordx2 v[36:37], v33, {srd(R_X)}, s{T2} offen
    """)
    FG = 64
    def fin_loads():
        for m in range(8):
            so = T0 if m < 4 else T1
            a(f"buffer_load_dwordx4 {vr(FG+4*m,4)}, v5, {srd(R_WS)}, s{so} offen offset:{(m%4)*1024} sc1")
    fin_loads()
    poll("fin", list(range(FG, FG+32)), fin_loads, 38, "s_waitcnt vmcnt(0)")
    for m in range(1, 8):
        for e in range(4):
            a(f"v_add_f32 v{FG+e}, v{FG+e}, v{FG+4*m+e}")
    xorN(16, "v_add_f32", [FG, FG+1, FG+2, FG+3], [38,39,40,41])
    xorN(32, "v_add_f32", [FG, FG+1, FG+2, FG+3], [38,39,40,41])
    a(f"""
    v_lshlrev_b32 v40, 16, v36
    v_and_b32 v41, 0xffff0000, v36
    v_lshlrev_b32 v42, 16, v37
    v_and_b32 v43, 0xffff0000, v37
    v_add_f32 v40, v40, v{FG}
    v_add_f32 v41, v41, v{FG+1}
    v_add_f32 v42, v42, v{FG+2}
    v_add_f32 v43, v43, v{FG+3}
    v_cvt_pk_bf16_f32 v40, v40, v41
    v_cvt_pk_bf16_f32 v41, v42, v43
    s_mov_b64 exec, s[{M_16}:{M_16+1}]
    buffer_store_dwordx2 v[40:41], v33, {srd(R_OUT)}, s{T2} offen
    s_mov_b64 exec, -1
    s_cmp_lg_u32 s2, 0
    s_cbranch_scc1 L_end
    s_add_u32 s{S_EP}, s{S_EP}, 1
    v_mov_b32 v40, s{S_EP}
    v_mov_b32 v41, 0
    s_mov_b32 s{T1}, {EP_OFF}
    s_mov_b64 exec, 1
    buffer_store_dword v40, v41, {srd(R_WS)}, s{T1} offen sc1
    s_mov_b64 exec, -1
    """)
    a.label("L_end")
    if stamps:
        a(f"s_cmp_lg_u32 s{S_WAVE}, 0\ns_cbranch_scc1 L_exit")
        while nstamp[0] < NSTAMP:
            stamp()
        a(f"""
        s_waitcnt lgkmcnt(0)
        s_add_u32 s{R_WS}, s{R_WS}, {STAMP_OFF}
        s_addc_u32 s{R_WS+1}, s{R_WS+1}, 0
        s_mul_i32 s{T0}, s2, {NSTAMP*8}
        v_mov_b32 v2, s{T0}
        s_mov_b64 exec, 1
        """)
        if cfg.get("dbg"):
            a(f"""
            s_load_dwordx2 s[{R_K}:{R_K+1}], s[0:1], 80
            s_waitcnt lgkmcnt(0)
            s_mov_b32 s{R_K+2}, 256
            s_mov_b32 s{R_K+3}, 0x20000
            v_mov_b32 v2, 0
            s_not_b32 s{STAMP_REGS[0]}, s{STAMP_REGS[0]}
            """)
            for i in range(NSTAMP):
                r = STAMP_REGS[i]
                a(f"v_mov_b32 v4, s{r}\nbuffer_atomic_umax v4, v2, {srd(R_K)}, 0 offen offset:{i*4}\ns_nop 1")
        else:
          for i in range(NSTAMP):
            r = STAMP_REGS[i]
            a(f"v_mov_b32 v4, s{r}\nv_mov_b32 v5, s{r+1}\nbuffer_store_dwordx2 v[4:5], v2, {srd(R_WS)}, 0 offen offset:{i*8}\ns_nop 1")
    a.label("L_exit")
    a("s_endpgm")
    launch = f"grid=(256,1,1) block=(512,1,1) lds={L_END}"
    return file_text([launch], a.text(), [descriptor(kn, 256, 102)])

if __name__ == "__main__":
    out = sys.argv[1] if len(sys.argv) > 1 else "cdna_kernels/" + NAME + ".s"
    cfg = dict(kv.split("=") for kv in sys.argv[2:] if "=" in kv)
    open(out, "w").write(gen(stamps=("stamps" in sys.argv), cfg=cfg))
    print("wrote", out, "LDS", L_END)
```

```python
import sys
from asmlib import *

QP_OFF = 0x000000
GU_OFF = 0x040000
AP_OFF = 0x080000
ML_OFF = 0x100000
OP_OFF = 0x110000
EP_OFF = 0x1F0000
WS_SIZE = 0x200000
STAMP_OFF = 268435456 - (1 << 20)
TAGMASK = 0xFF

P_STR = 1040
Q_STR = 272
H_STR = 144
L_FL = 0
L_P = 64
L_XQ = L_P + 4 * P_STR
L_XG = L_XQ + 4 * Q_STR
L_Q = L_XG + 4 * Q_STR
L_OB = L_Q + 4 * Q_STR
L_H = L_OB + 4 * Q_STR
L_WM = L_H + 4 * H_STR
L_WL = L_WM + 256
L_DNP = L_WL + 256
L_SMALL_END = L_DNP + 1024
L_T0 = 11264
assert L_SMALL_END <= L_T0
L_RING = L_T0 + 16384
L_END = L_RING + 131072
L_GUT = L_RING + 98304
L_DNT = L_GUT + 16384
F_LPROG, F_CB, F_XB, F_QR, F_DR, F_P0 = 0, 16, 20, 24, 28, 32

LOG2E = 0x3FB8AA3B
SCALE = 0x3DB504F3
POLL_LIMIT = 20000
SPIN_LIMIT = 200000

S_WAVE, S_B, S_HKV, S_S, S_H = 28, 29, 30, 31, 32
T0, T1, T2, T3, T4, T5, T6 = 33, 34, 35, 36, 37, 38, 39
R_X, R_K, R_V, R_WQ, R_GU, R_DN, R_WO, R_WS, R_OUT = 40, 44, 48, 52, 56, 60, 64, 68, 76
S_EP = 72
S_PROG = 73
S_ROLE = 74
M_H4 = 80
M_16 = 82
M_T = 84
S_CNT = 86
S_SP = 87
STAMP_REGS = [90, 92, 94, 96, 98, 100, 4, 6, 8, 10, 12, 14]
NSTAMP = 12

def srd(r): return f"s[{r}:{r+3}]"
def vr(a, n): return f"v[{a}:{a+n-1}]"

def gen(stamps=False, nt=True, cfg=None):
    cfg = cfg or {}
    a = Asm()
    kn = NAME + "_kernel"
    NT = " nt" if nt else ""
    D = int(cfg.get("D", 12))
    nstamp = [0]; uid = [0]
    dnlate = int(cfg.get("dnlate", 1))
    def lab(p):
        uid[0] += 1
        return f"L_{p}_{uid[0]}"
    def stamp():
        if stamps:
            i = nstamp[0]; nstamp[0] += 1
            assert i < NSTAMP
            r = STAMP_REGS[i]
            a(f"s_memrealtime s[{r}:{r+1}]")
    def xor16(op, v, t):
        a(f"v_mov_b32 v{t}, v{v}\ns_nop 1\nv_permlane16_swap_b32 v{v}, v{t}\ns_nop 0\n{op} v{v}, v{v}, v{t}")
    def xor32(op, v, t):
        a(f"v_mov_b32 v{t}, v{v}\ns_nop 1\nv_permlane32_swap_b32 v{v}, v{t}\ns_nop 0\n{op} v{v}, v{v}, v{t}")
    def xorN(kind, op, regs, tmps):
        for v, t in zip(regs, tmps): a(f"v_mov_b32 v{t}, v{v}")
        a("s_nop 1")
        for v, t in zip(regs, tmps): a(f"v_permlane{kind}_swap_b32 v{v}, v{t}")
        a("s_nop 0")
        for v, t in zip(regs, tmps): a(f"{op} v{v}, v{v}, v{t}")
    def wave_sum(v, t):
        for ctl in ["quad_perm:[1,0,3,2]", "quad_perm:[2,3,0,1]", "row_half_mirror", "row_mirror"]:
            a(f"s_nop 1\nv_add_f32_dpp v{v}, v{v}, v{v} {ctl} row_mask:0xf bank_mask:0xf")
        a("s_nop 0")
        xor16("v_add_f32", v, t)
        xor32("v_add_f32", v, t)
    def rne(dst, src):
        a(f"v_cvt_pk_bf16_f32 v{dst}, v{src}, v{src}\nv_lshlrev_b32 v{dst}, 16, v{dst}")

    VF, VONE, VS = 14, 15, 252
    VTAG, VMSK = 6, 7
    def spin_ge(off, val, four=False, keep=None):
        l0, l1 = lab("sp"), lab("spd")
        if keep is not None:
            a(f"s_cmp_ge_u32 s{keep}, {val}\ns_cbranch_scc1 {l1}")
        dst = keep if keep is not None else T6
        a(f"s_mov_b32 s{S_SP}, 0")
        a.label(l0)
        if four:
            a(f"ds_read_b128 {vr(VS,4)}, v{VF} offset:{off}\ns_waitcnt lgkmcnt(0)")
            a(f"v_min_u32 v{VS}, v{VS}, v{VS+1}\nv_min3_u32 v{VS}, v{VS}, v{VS+2}, v{VS+3}")
        else:
            a(f"ds_read_b32 v{VS}, v{VF} offset:{off}\ns_waitcnt lgkmcnt(0)")
        a(f"""
        s_nop 0
        v_readfirstlane_b32 s{dst}, v{VS}
        s_add_u32 s{S_SP}, s{S_SP}, 1
        s_cmp_ge_u32 s{dst}, {val}
        s_cbranch_scc1 {l1}
        s_cmp_ge_u32 s{S_SP}, {SPIN_LIMIT}
        s_cbranch_scc1 {l1}
        s_sleep 1
        s_branch {l0}
        """)
        a.label(l1)
    def flag_add(off):
        a(f"s_mov_b64 exec, 1\nds_add_u32 v{VF}, v{VONE} offset:{off}\ns_mov_b64 exec, -1")
    nb = {F_CB: 0, F_XB: 0}
    def b_arrive(f):
        nb[f] += 1
        flag_add(f)
        return nb[f]
    def b_wait(f, n):
        spin_ge(f, 4 * n)
    def barrier(f):
        b_wait(f, b_arrive(f))
    PIECES = ["V0", "V1", "V2", "V3", "WO"]
    pidx = {p: i + 1 for i, p in enumerate(PIECES)}
    def wait_piece(p):
        spin_ge(F_LPROG, pidx[p], four=True, keep=S_PROG)
    def tag(regs):
        for r in regs: a(f"v_bfi_b32 v{r}, v{VMSK}, v{VTAG}, v{r}")
    def poll(name, regs, loads, acc, first_wait, backoff=0):
        a(f"s_mov_b32 s{S_CNT}, 0\n{first_wait}")
        a.label(f"L_{name}_chk")
        a(f"v_xor_b32 v{acc}, v{regs[0]}, v{VTAG}")
        for r in regs[1:]:
            a(f"v_bitop3_b32 v{acc}, v{acc}, v{r}, v{VTAG} bitop3:0xf6")
        a(f"""
        v_and_b32 v{acc}, v{acc}, v{VMSK}
        v_cmp_ne_u32 vcc, 0, v{acc}
        s_cbranch_vccz L_{name}_ok
        s_add_u32 s{S_CNT}, s{S_CNT}, 1
        s_cmp_ge_u32 s{S_CNT}, {POLL_LIMIT}
        s_cbranch_scc1 L_{name}_ok
        """)
        if backoff: a(f"s_sleep {backoff}")
        loads()
        a(f"s_waitcnt vmcnt(0)\ns_branch L_{name}_chk")
        a.label(f"L_{name}_ok")
    def check(regs, acc):
        a(f"v_xor_b32 v{acc}, v{regs[0]}, v{VTAG}")
        for r in regs[1:]:
            a(f"v_bitop3_b32 v{acc}, v{acc}, v{r}, v{VTAG} bitop3:0xf6")
        a(f"v_and_b32 v{acc}, v{acc}, v{VMSK}\nv_cmp_ne_u32 vcc, 0, v{acc}")
    def poll_stag(name, sets, loads, nloads, acc, gap, consume, between=None):
        n = len(sets)
        for i in range(1, n):
            if gap: a(f"s_sleep {gap}")
            loads(i)
        if between: between()
        a(f"s_mov_b32 s{S_CNT}, 0")
        a.label(f"L_{name}_loop")
        for i in range(n):
            a(f"s_waitcnt vmcnt({(n-1)*nloads})")
            check(sets[i], acc)
            a(f"s_cbranch_vccz L_{name}_ok{i}")
            loads(i)
        a(f"""
        s_add_u32 s{S_CNT}, s{S_CNT}, 1
        s_cmp_lt_u32 s{S_CNT}, {POLL_LIMIT}
        s_cbranch_scc1 L_{name}_loop
        s_waitcnt vmcnt(0)
        """)
        for i in range(n):
            a.label(f"L_{name}_ok{i}")
            consume(i)
            if i != n - 1: a(f"s_branch L_{name}_done")
        a.label(f"L_{name}_done")
    def tag_setup():
        a(f"""
        v_readfirstlane_b32 s{S_EP}, v{VTAG}
        v_add_u32 v{VTAG}, 1, v{VTAG}
        v_and_b32 v{VTAG}, {TAGMASK}, v{VTAG}
        """)
    def ws_srd():
        a(f"""
        s_mov_b32 s{R_WS}, s26
        s_mov_b32 s{R_WS+1}, s27
        s_mov_b32 s{R_WS+2}, {WS_SIZE}
        s_mov_b32 s{R_WS+3}, 0x20000
        s_mov_b32 s{T1}, {EP_OFF}
        v_mov_b32 v33, 0
        buffer_load_dword v{VTAG}, v33, {srd(R_WS)}, s{T1} offen sc1
        """)
    def common_regs():
        a(f"""
        s_mov_b32 s{M_H4}, 0x000F000F
        s_mov_b32 s{M_H4+1}, 0x000F000F
        s_mov_b32 s{M_16}, 0xFFFF
        s_mov_b32 s{M_16+1}, 0
        v_mov_b32 v{VMSK}, {TAGMASK}
        v_lshrrev_b32 v32, 2, v2
        v_lshl_add_u32 v32, v3, 3, v32
        v_lshlrev_b32 v32, 7, v32
        v_lshl_add_u32 v34, v4, 3, v32
        s_lshl_b32 s{T3}, s{S_WAVE}, 5
        s_add_u32 s{T3}, s{T3}, {L_T0}
        v_add_u32 v34, s{T3}, v34                     ; T0 + (8g+r)*128 + t*32 + c4*8
        v_mul_u32_u24 v35, {Q_STR}, v4
        v_lshl_add_u32 v35, v3, 4, v35                ; (l&3)*272 + g*16
        v_lshlrev_b32 v5, 4, v1                       ; l*16
        """)

    kernel_begin(a, kn)
    a(f"""
    s_cmp_ge_u32 s2, 256
    s_cbranch_scc1 L_exit
    s_load_dwordx16 s[4:19], s[0:1], 0
    s_load_dwordx8 s[20:27], s[0:1], 64
    """)
    stamp()
    a(f"""
    v_and_b32 v1, 63, v0
    v_lshrrev_b32 v32, 6, v0
    v_and_b32 v2, 15, v1
    v_readfirstlane_b32 s{S_WAVE}, v32
    v_lshrrev_b32 v3, 4, v1
    v_and_b32 v4, 3, v1
    v_mov_b32 v{VF}, {L_FL}
    v_mov_b32 v{VONE}, 1
    s_lshr_b32 s{S_B}, s2, 6
    s_bfe_u32 s{S_HKV}, s2, 0x30003
    s_and_b32 s{S_S}, s2, 7
    s_lshl_b32 s{S_H}, s{S_HKV}, 2
    s_add_u32 s{S_H}, s{S_H}, s{S_B}
    s_mov_b32 s{S_PROG}, 0
    s_cmp_lg_u32 s{S_WAVE}, 0
    s_cbranch_scc1 L_noinit
    v_lshlrev_b32 v32, 2, v1
    v_mov_b32 v33, 0
    s_mov_b64 exec, 0xFFFF
    ds_write_b32 v32, v33 offset:{L_FL}
    s_mov_b64 exec, -1
    s_waitcnt lgkmcnt(0)
    """)
    a.label("L_noinit")
    earlybar = int(cfg.get("earlybar", 1))
    if earlybar: a("s_barrier")
    a(f"""
    s_lshr_b32 s{S_ROLE}, s{S_WAVE}, 2
    s_and_b32 s{S_WAVE}, s{S_WAVE}, 3
    s_cmp_eq_u32 s{S_ROLE}, 0
    s_cbranch_scc1 L_qwave
    """)
    start_stamp = nstamp[0]
    a(f"""
    s_setprio 3
    v_lshlrev_b32 v5, 4, v1
    s_lshl_b32 s{T0}, s{S_WAVE}, 10
    v_lshrrev_b32 v36, 3, v1
    v_and_b32 v37, 7, v1
    v_lshlrev_b32 v37, 4, v37
    v_lshl_add_u32 v22, v36, 13, v37
    s_lshl_b32 s{T2}, s{S_B}, 20
    s_lshl_b32 s{T1}, s{S_HKV}, 10
    s_add_u32 s{T2}, s{T2}, s{T1}
    s_lshl_b32 s{T1}, s{S_S}, 7
    s_add_u32 s{T4}, s{T2}, s{T1}
    s_waitcnt lgkmcnt(0)
    s_mov_b32 s{R_X}, s4
    s_mov_b32 s{R_X+1}, s5
    s_mov_b32 s{R_X+2}, 4096
    s_mov_b32 s{R_X+3}, 0x20000
    buffer_load_dwordx4 v[24:27], v5, {srd(R_X)}, s{T0} offen
    s_add_u32 s{R_WQ}, s10, s{T4}
    s_addc_u32 s{R_WQ+1}, s11, 0
    s_mov_b32 s{R_WQ+2}, {127*8192+128}
    s_mov_b32 s{R_WQ+3}, 0x20000
    """)
    ws_srd()
    def tile_dma(p):
        n_per = 2 if p == "DN" else 4
        stride = {"WQ": 8192, "GU": 3584, "WO": 1024, "DN": 1024}[p]
        vo = {"WQ": 22, "GU": 23, "WO": 21, "DN": 21}[p]
        R = {"WQ": R_WQ, "GU": R_GU, "WO": R_WO, "DN": R_DN}[p]
        LB = {"WQ": L_T0, "GU": L_GUT, "WO": L_T0, "DN": (L_RING if dnlate else L_DNT)}[p]
        out = []
        for q in range(n_per):
            def f(q=q):
                if q == 0:
                    a(f"""
                    s_mul_i32 s{T1}, s{S_WAVE}, {n_per*8*stride}
                    s_mul_i32 s{T0}, s{S_WAVE}, {n_per*1024}
                    s_add_u32 s{T0}, s{T0}, {LB}
                    """)
                else:
                    a(f"s_add_u32 s{T1}, s{T1}, {8*stride}\ns_add_u32 s{T0}, s{T0}, 1024")
                a(f"""
                s_mov_b32 m0, s{T0}
                s_nop 0
                buffer_load_dwordx4 v{vo}, {srd(R)}, s{T1} offen{NT} lds
                """)
            out.append(f)
        return out
    for f in tile_dma("WQ"): f()
    if not earlybar: a("s_barrier")
    a(f"""
    v_mul_u32_u24 v23, 3584, v36
    v_add_u32 v23, v23, v37
    v_lshl_add_u32 v21, v36, 10, v37
    s_and_b32 s{T0}, s{S_S}, 1
    s_cmp_eq_u32 s{T0}, 0
    s_cselect_b32 s{T2}, s16, s18
    s_cselect_b32 s{T3}, s17, s19
    s_lshr_b32 s{T0}, s{S_S}, 1
    s_mul_i32 s{T0}, s{T0}, {128*3584}
    s_lshl_b32 s{T1}, s{S_H}, 7
    s_add_u32 s{T0}, s{T0}, s{T1}
    s_add_u32 s{R_GU}, s{T2}, s{T0}
    s_addc_u32 s{R_GU+1}, s{T3}, 0
    s_cmp_lt_u32 s{S_H}, 28
    s_cselect_b32 s{R_GU+2}, {127*3584+128}, 0
    s_mov_b32 s{R_GU+3}, 0x20000
    """)
    for f in tile_dma("GU"): f()
    a(f"""
    s_lshl_b32 s{T0}, s{S_H}, 16
    s_lshl_b32 s{T1}, s{S_S}, 7
    s_add_u32 s{T0}, s{T0}, s{T1}
    s_add_u32 s{R_DN}, s20, s{T0}
    s_addc_u32 s{R_DN+1}, s21, 0
    s_cmp_lt_u32 s{S_H}, 28
    s_cselect_b32 s{R_DN+2}, {63*1024+128}, 0
    s_mov_b32 s{R_DN+3}, 0x20000
    """)
    if not dnlate:
        for f in tile_dma("DN"): f()
    pret = int(cfg.get("pret", 0))
    if pret:
        a(f"""
        s_lshl_b32 s{T0}, s{S_B}, 16
        s_lshl_b32 s{T1}, s{S_HKV}, 11
        s_add_u32 s{T0}, s{T0}, s{T1}
        s_lshl_b32 s{T1}, s{S_S}, 8
        s_add_u32 s{T0}, s{T0}, s{T1}
        s_lshl_b32 s{T1}, s{S_H}, 13
        s_lshl_b32 s{T2}, s{S_S}, 10
        s_add_u32 s{T1}, s{T1}, s{T2}
        s_add_u32 s{T1}, s{T1}, {GU_OFF}
        s_lshl_b32 s{T2}, s{S_HKV}, 16
        s_lshl_b32 s{T3}, s{S_B}, 12
        s_add_u32 s{T2}, s{T2}, s{T3}
        s_lshl_b32 s{T3}, s{S_S}, 9
        s_add_u32 s{T2}, s{T2}, s{T3}
        s_add_u32 s{T2}, s{T2}, {AP_OFF}
        s_lshl_b32 s{T3}, s{S_S}, 15
        s_lshl_b32 s{T4}, s{S_H}, 8
        s_add_u32 s{T3}, s{T3}, s{T4}
        s_add_u32 s{T3}, s{T3}, {OP_OFF}
        s_lshl_b32 s{T4}, s{S_HKV}, 11
        s_lshl_b32 s{T5}, s{S_B}, 9
        s_add_u32 s{T4}, s{T4}, s{T5}
        s_lshl_b32 s{T5}, s{S_S}, 6
        s_add_u32 s{T4}, s{T4}, s{T5}
        s_add_u32 s{T4}, s{T4}, {ML_OFF}
        s_cmp_eq_u32 s{S_WAVE}, 0
        s_cbranch_scc1 L_pt0
        s_cmp_eq_u32 s{S_WAVE}, 3
        s_cbranch_scc1 L_pt3
        v_lshrrev_b32 v100, 5, v1
        v_and_b32 v101, 31, v1
        v_lshlrev_b32 v100, 14, v100
        v_lshl_add_u32 v100, v101, 4, v100
        s_sub_u32 s{T5}, s{S_WAVE}, 1
        s_lshl_b32 s{T5}, s{T5}, 15
        s_add_u32 s{T2}, s{T2}, s{T5}
        buffer_load_dwordx4 v[104:107], v100, {srd(R_WS)}, s{T2} offen sc1
        buffer_load_dword v108, v100, {srd(R_WS)}, s{T2} offen sc1
        s_branch L_ptd
        """)
        a.label("L_pt0")
        a(f"""
        v_lshlrev_b32 v100, 14, v3
        v_lshl_add_u32 v100, v2, 4, v100
        buffer_load_dwordx4 v[104:107], v100, {srd(R_WS)}, s{T0} offen sc1
        buffer_load_dwordx4 v[108:111], v5, {srd(R_WS)}, s{T1} offen sc1
        s_branch L_ptd
        """)
        a.label("L_pt3")
        a(f"""
        v_lshlrev_b32 v100, 13, v3
        v_lshl_add_u32 v100, v2, 4, v100
        buffer_load_dwordx4 v[104:107], v100, {srd(R_WS)}, s{T3} offen sc1
        v_and_b32 v101, 3, v1
        v_lshlrev_b32 v101, 4, v101
        buffer_load_dwordx4 v[108:111], v101, {srd(R_WS)}, s{T4} offen sc1
        """)
        a.label("L_ptd")
    common_regs()
    npf = int(cfg.get("codepf", 0))
    a(f"""
    s_lshl_b32 s{T0}, s2, 17
    s_add_u32 s{R_V}, s8, s{T0}
    s_addc_u32 s{R_V+1}, s9, 0
    s_mov_b32 s{R_V+2}, 131072
    s_mov_b32 s{R_V+3}, 0x20000
    s_lshl_b32 s{T0}, s{S_H}, 17
    s_lshl_b32 s{T1}, s{S_S}, 7
    s_add_u32 s{T0}, s{T0}, s{T1}
    s_add_u32 s{R_WO}, s12, s{T0}
    s_addc_u32 s{R_WO+1}, s13, 0
    s_mov_b32 s{R_WO+2}, {127*1024+128}
    s_mov_b32 s{R_WO+3}, 0x20000
    """)
    for v in range(2):
        a(f"v_lshlrev_b32 v36, 1, v3\nv_add_u32 v36, {8*v}, v36\nv_xor_b32 v{16+v}, v2, v36\nv_lshlrev_b32 v{16+v}, 4, v{16+v}\nv_lshl_add_u32 v{16+v}, v3, 8, v{16+v}")
    if int(cfg.get("lin", 1)):
        a(f"""
        s_and_b32 s{T0}, s{S_WAVE}, 1
        s_cmp_eq_u32 s{T0}, 1
        s_cselect_b64 vcc, -1, 0
        v_cndmask_b32 v16, v16, v17, vcc
        """)
    SQP, SGU = 78, 79
    a(f"""
    s_lshl_b32 s{T4}, s{S_WAVE}, 2
    s_add_u32 s{T4}, s{T4}, {L_FL + F_LPROG}
    v_mov_b32 v18, s{T4}
    s_lshl_b32 s{SQP}, s{S_B}, 16
    s_lshl_b32 s{T1}, s{S_HKV}, 11
    s_add_u32 s{SQP}, s{SQP}, s{T1}
    s_lshl_b32 s{T1}, s{S_S}, 8
    s_add_u32 s{SQP}, s{SQP}, s{T1}
    s_add_u32 s{SQP}, s{SQP}, {QP_OFF}
    s_lshl_b32 s{SGU}, s{S_H}, 13
    s_lshl_b32 s{T1}, s{S_S}, 10
    s_add_u32 s{SGU}, s{SGU}, s{T1}
    s_add_u32 s{SGU}, s{SGU}, {GU_OFF}
    s_lshl_b32 s{T1}, s{S_WAVE}, 6                ; t*64
    v_lshlrev_b32 v11, 14, v2
    v_lshl_add_u32 v11, v3, 4, v11
    v_add_u32 v11, s{T1}, v11
    v_lshlrev_b32 v12, 8, v2
    v_lshl_add_u32 v12, v3, 4, v12
    v_add_u32 v12, s{T1}, v12
    v_add_u32 v19, {L_GUT - L_T0}, v34
    v_add_u32 v20, {(L_RING if dnlate else L_DNT) - L_T0}, v34
    s_waitcnt vmcnt({(8 if dnlate else 10) + (2 if pret else 0)})
    """)
    stamp()
    if npf:
        a(f"""
        s_cmp_ge_u32 s2, {npf}
        s_cbranch_scc1 L_nopf
        s_getpc_b64 s[{M_T}:{M_T+1}]
        """)
        a.label("L_pcref")
        a(f"""
        s_lshl_b32 s{T0}, s{S_WAVE}, 12
        v_add_u32 v100, s{T0}, v5
        s_mov_b32 s{T1}, L_exit-L_pcref-16
        """)
        for k in range(4):
            a(f"""
            v_add_u32 v101, {k*1024}, v100
            v_cmp_gt_u32 vcc, s{T1}, v101
            s_and_saveexec_b64 s[88:89], vcc
            s_cbranch_execz L_pfs{k}
            global_load_dwordx4 v[104:107], v101, s[{M_T}:{M_T+1}]
            """)
            a.label(f"L_pfs{k}")
            a("s_mov_b64 exec, -1")
        a.label("L_nopf")
    tag_setup()
    for e in range(4):
        a(f"v_lshlrev_b32 v{40+2*e}, 16, v{24+e}\nv_and_b32 v{41+2*e}, 0xffff0000, v{24+e}")
    a(f"""
    v_add_f32 v32, v40, v41
    v_add_f32 v33, v42, v43
    v_add_f32 v36, v44, v45
    v_add_f32 v37, v46, v47
    v_add_f32 v32, v32, v33
    v_add_f32 v36, v36, v37
    v_add_f32 v32, v32, v36
    """)
    wave_sum(32, 33)
    a("v_mul_f32 v32, 0x3b000000, v32")
    for e in range(8):
        a(f"v_sub_f32 v{48+e}, v{40+e}, v32")
    a("v_mul_f32 v33, v48, v48\nv_mul_f32 v36, v49, v49")
    for e in range(2, 8, 2):
        a(f"v_fmac_f32 v33, v{48+e}, v{48+e}\nv_fmac_f32 v36, v{49+e}, v{49+e}")
    a("v_add_f32 v33, v33, v36")
    wave_sum(33, 36)
    a("v_mul_f32 v33, 0x3b000000, v33")
    rne(32, 32); rne(33, 33)
    a("v_add_f32 v33, 0x3727c5ac, v33")
    rne(33, 33)
    a("v_sqrt_f32 v33, v33")
    for e in range(8):
        a(f"v_sub_f32 v{48+e}, v{40+e}, v32")
    rne(33, 33)
    a("v_rcp_f32 v33, v33")
    for e in range(0, 8, 2):
        a(f"v_cvt_pk_bf16_f32 v36, v{48+e}, v{49+e}\nv_lshlrev_b32 v{48+e}, 16, v36\nv_and_b32 v{49+e}, 0xffff0000, v36")
    for e in range(8):
        a(f"v_mul_f32 v{48+e}, v{48+e}, v33")
    for e in range(4):
        a(f"v_cvt_pk_bf16_f32 v{44+e}, v{48+2*e}, v{49+2*e}")
    a(f"""
    s_mul_i32 s{T0}, s{S_WAVE}, {Q_STR}
    v_lshlrev_b32 v32, 4, v2
    v_add_u32 v32, s{T0}, v32
    v_cmp_eq_u32 vcc, s{S_B}, v3
    s_and_saveexec_b64 s[{M_T}:{M_T+1}], vcc
    ds_write_b128 v32, v[44:47] offset:{L_XQ}
    s_mov_b64 exec, -1
    s_lshr_b32 s{T1}, s{S_S}, 1
    v_cmp_eq_u32 vcc, s{T1}, v3
    s_and_saveexec_b64 s[{M_T}:{M_T+1}], vcc
    ds_write_b128 v32, v[44:47] offset:{L_XG}
    s_mov_b64 exec, -1
    s_waitcnt vmcnt({(4 if dnlate else 6) + (2 if pret else 0)})
    """)
    barrier(F_XB)
    stamp()
    WF, XF, DA = 48, 64, 80
    def p1(xoff, voff, sbase, areg):
        for kk in range(4):
            a(f"ds_read_b128 {vr(XF+4*kk,4)}, v35 offset:{xoff+kk*64}")
        for kk in range(4):
            a(f"ds_read_b64_tr_b16 {vr(WF+4*kk,2)}, v{areg} offset:{kk*4096}")
            a(f"ds_read_b64_tr_b16 {vr(WF+4*kk+2,2)}, v{areg} offset:{kk*4096+512}")
        for kk in range(4):
            a(f"s_waitcnt lgkmcnt({6-2*kk})")
            c = "0" if kk == 0 else vr(DA,4)
            a(f"v_mfma_f32_16x16x32_bf16 {vr(DA,4)}, {vr(WF+4*kk,4)}, {vr(XF+4*kk,4)}, {c}")
        a("s_nop 7")
        tag(range(DA, DA+4))
        a(f"""
        s_mov_b64 exec, s[{M_H4}:{M_H4+1}]
        buffer_store_dwordx4 {vr(DA,4)}, v{voff}, {srd(R_WS)}, s{sbase} offen sc1
        s_mov_b64 exec, -1
        """)
    p1(L_XQ, 11, SQP, 34)
    stamp()
    a(f"s_waitcnt vmcnt({1 + (2 if pret else 0)})")
    barrier(F_XB)
    p1(L_XG, 12, SGU, 19)
    DF = 84
    def dn_frags():
        for kk in range(2):
            a(f"ds_read_b64_tr_b16 {vr(DF+4*kk,2)}, v20 offset:{kk*4096}")
            a(f"ds_read_b64_tr_b16 {vr(DF+4*kk+2,2)}, v20 offset:{kk*4096+512}")
    if not dnlate: dn_frags()
    xb_tiles = b_arrive(F_XB)
    stamp()
    QG, GG = 24, 92
    a(f"""
    s_lshl_b32 s{T0}, s{S_B}, 14
    s_lshl_b32 s{T1}, s{S_HKV}, 11
    s_add_u32 s{T0}, s{T0}, s{T1}
    s_lshl_b32 s{T1}, s{S_WAVE}, 9
    s_add_u32 s{T5}, s{T0}, s{T1}
    s_add_u32 s{T5}, s{T5}, {QP_OFF}
    v_lshlrev_b32 v38, 16, v3
    v_lshl_add_u32 v38, v2, 4, v38
    s_lshl_b32 s{T4}, s{S_H}, 13
    s_lshl_b32 s{T1}, s{S_WAVE}, 8
    s_add_u32 s{T4}, s{T4}, s{T1}
    s_add_u32 s{T4}, s{T4}, {GU_OFF}
    v_lshlrev_b32 v39, 10, v3
    v_lshl_add_u32 v39, v2, 4, v39
    v_add_u32 v10, 4096, v39
    """)
    def qloads():
        a(f"buffer_load_dwordx4 {vr(QG,4)}, v38, {srd(R_WS)}, s{T5} offen sc1")
        a(f"buffer_load_dwordx4 {vr(QG+4,4)}, v38, {srd(R_WS)}, s{T5} offen offset:256 sc1")
    def gloads():
        a(f"buffer_load_dwordx4 {vr(GG,4)}, v39, {srd(R_WS)}, s{T4} offen sc1")
        a(f"buffer_load_dwordx4 {vr(GG+4,4)}, v10, {srd(R_WS)}, s{T4} offen sc1")
    vml = []
    def issue(tagname): vml.append(tagname)
    def younger(tagname):
        last = max(i for i, t in enumerate(vml) if t == tagname)
        return len(vml) - 1 - last
    signaled = []
    def signal(p):
        a(f"v_mov_b32 v9, {pidx[p]}\nds_write_b32 v18, v9")
        signaled.append(p)
    def try_signals():
        for p in PIECES:
            if p in signaled: continue
            n = {"WO": 4}.get(p, 8)
            if vml.count(p) == n and younger(p) >= D:
                a(f"s_waitcnt vmcnt({younger(p)})")
                signal(p)
            else:
                break
    lin = int(cfg.get("lin", 1))
    def vstage(st):
        for q in range(8):
            if lin:
                a(f"""
                s_lshl_b32 s{T0}, s{S_WAVE}, 10
                s_add_u32 s{T0}, s{T0}, {st*32768 + q*4096}
                s_add_u32 s{T1}, s{T0}, {L_RING}
                s_mov_b32 m0, s{T1}
                s_nop 0
                buffer_load_dwordx4 v16, {srd(R_V)}, s{T0} offen{NT} lds
                """)
            else:
                if q % 4 == 0:
                    a(f"""
                    s_lshl_b32 s{T0}, s{S_WAVE}, 13
                    s_add_u32 s{T0}, s{T0}, {st*32768 + (q//4)*4096}
                    s_add_u32 s{T1}, s{T0}, {L_RING}
                    s_mov_b32 m0, s{T1}
                    s_nop 0
                    """)
                a(f"buffer_load_dwordx4 v{16 + q % 2}, {srd(R_V)}, s{T0} offen offset:{(q%4)*1024}{NT} lds")
            issue(f"V{st}")
            if q % 4 == 3: try_signals()
    qdelay = int(cfg.get("qdelay", 0))
    if qdelay: a(f"s_sleep {qdelay}")
    qloads(); issue("q"); issue("q")
    poll("q", list(range(QG, QG+8)), qloads, 41, f"s_waitcnt vmcnt(0)")
    stamp()
    xorN(16, "v_add_f32", list(range(QG, QG+8)), list(range(40, 48)))
    xorN(32, "v_add_f32", list(range(QG, QG+8)), list(range(40, 48)))
    a(f"""
    v_cvt_pk_bf16_f32 v42, v{QG}, v{QG+1}
    v_cvt_pk_bf16_f32 v43, v{QG+2}, v{QG+3}
    v_cvt_pk_bf16_f32 v44, v{QG+4}, v{QG+5}
    v_cvt_pk_bf16_f32 v45, v{QG+6}, v{QG+7}
    s_mul_i32 s{T0}, s{S_WAVE}, {Q_STR}
    s_add_u32 s{T0}, s{T0}, {L_Q}
    v_lshlrev_b32 v41, 3, v2
    v_add_u32 v41, s{T0}, v41
    s_mov_b64 exec, s[{M_16}:{M_16+1}]
    ds_write_b64 v41, v[42:43]
    ds_write_b64 v41, v[44:45] offset:128
    s_mov_b64 exec, -1
    """)
    flag_add(F_QR)
    a("s_setprio 0")
    vstage(0)
    vstage(1)
    gloads(); issue("g"); issue("g")
    vstage(2)
    b_wait(F_XB, xb_tiles)
    vstage(3)
    for f in tile_dma("WO"):
        f(); issue("WO")
    if dnlate:
        spin_ge(F_P0, 4)
        for f in tile_dma("DN"):
            f(); issue("DN")
    try_signals()
    stamp()
    poll("g", list(range(GG, GG+8)), gloads, 44, f"s_waitcnt vmcnt({younger('g')})")
    for e in range(4):
        a(f"v_add_f32 v{GG+e}, v{GG+e}, v{GG+4+e}")
    xorN(32, "v_add_f32", list(range(GG, GG+4)), [44,45,46,47])
    for e in range(4):
        a(f"v_mov_b32 v{GG+4+e}, v{GG+e}")
    a("s_nop 1")
    for e in range(4):
        a(f"v_permlane16_swap_b32 v{GG+e}, v{GG+4+e}")
    a("s_nop 0")
    for e in range(4):
        rne(GG+e, GG+e); rne(GG+4+e, GG+4+e)
    tm = [44, 45, 46, 47]
    for e in range(4): a(f"v_mul_f32 v{tm[e]}, v{GG+e}, v{GG+e}")
    for e in range(4): a(f"v_mul_f32 v{tm[e]}, v{tm[e]}, v{GG+e}")
    for e in range(4): a(f"v_mul_f32 v{tm[e]}, 0x3d372713, v{tm[e]}")
    for e in range(4): a(f"v_add_f32 v{tm[e]}, v{tm[e]}, v{GG+e}")
    for e in range(4): a(f"v_mul_f32 v{tm[e]}, 0xc0135761, v{tm[e]}")
    for e in range(4): a(f"v_exp_f32 v{tm[e]}, v{tm[e]}")
    a("s_nop 0")
    for e in range(4): a(f"v_add_f32 v{tm[e]}, 1.0, v{tm[e]}")
    for e in range(4): a(f"v_rcp_f32 v{tm[e]}, v{tm[e]}")
    a("s_nop 0")
    for e in range(4): a(f"v_mul_f32 v{GG+e}, v{GG+e}, v{tm[e]}")
    for e in range(4): rne(GG+e, GG+e)
    for e in range(4): a(f"v_mul_f32 v{GG+e}, v{GG+e}, v{GG+4+e}")
    a(f"""
    v_cvt_pk_bf16_f32 v44, v{GG}, v{GG+1}
    v_cvt_pk_bf16_f32 v45, v{GG+2}, v{GG+3}
    s_mul_i32 s{T0}, s{S_WAVE}, {H_STR}
    v_lshlrev_b32 v47, 3, v2
    v_add_u32 v47, s{T0}, v47
    s_mov_b64 exec, s[{M_16}:{M_16+1}]
    ds_write_b64 v47, v[44:45] offset:{L_H}
    s_mov_b64 exec, -1
    """)
    if dnlate:
        for p in PIECES:
            if p not in signaled:
                a(f"s_waitcnt vmcnt({younger(p)})"); signal(p)
        a("s_waitcnt vmcnt(0)")
        barrier(F_XB)
        dn_frags()
    else:
        xb_h = b_arrive(F_XB)
        for p in ("V1", "V2"):
            if p not in signaled:
                a(f"s_waitcnt vmcnt({younger(p)})"); signal(p)
        b_wait(F_XB, xb_h)
    a(f"""
    v_mul_u32_u24 v47, {H_STR}, v4
    v_lshl_add_u32 v47, v3, 4, v47
    """)
    HF = 64
    for kk in range(2):
        a(f"ds_read_b128 {vr(HF+4*kk,4)}, v47 offset:{L_H+kk*64}")
    a("s_waitcnt lgkmcnt(0)")
    DN_ACC = 80
    for kk in range(2):
        c = "0" if kk == 0 else vr(DN_ACC,4)
        a(f"v_mfma_f32_16x16x32_bf16 {vr(DN_ACC,4)}, {vr(DF+4*kk,4)}, {vr(HF+4*kk,4)}, {c}")
    a(f"""
    s_lshl_b32 s{T0}, s{S_WAVE}, 8
    v_lshlrev_b32 v47, 2, v4
    v_add_u32 v47, v47, v3
    v_lshlrev_b32 v47, 4, v47                     ; ((l&3)*4+g)*16
    v_add_u32 v47, s{T0}, v47
    s_nop 3
    s_mov_b64 exec, s[{M_H4}:{M_H4+1}]
    ds_write_b128 v47, {vr(DN_ACC,4)} offset:{L_DNP}
    s_mov_b64 exec, -1
    """)
    flag_add(F_DR)
    stamp()
    for p in PIECES:
        if p not in signaled:
            a(f"s_waitcnt vmcnt({younger(p)})"); signal(p)
    stamp()
    a("s_waitcnt lgkmcnt(0)\ns_branch L_end")
    x_stamps = nstamp[0]

    nstamp[0] = start_stamp
    a.label("L_qwave")
    a(f"s_setprio {int(cfg.get('qprio', 1))}")
    a(f"""
    s_lshl_b32 s{T0}, s{S_WAVE}, {12 if int(cfg.get("lin", 1)) else 15}
    v_lshlrev_b32 v16, 8, v2
    v_lshl_add_u32 v16, v3, 4, v16
    v_add_u32 v16, s{T0}, v16                     ; K voffset
    s_lshl_b32 s{T0}, s2, 17
    s_waitcnt lgkmcnt(0)
    s_add_u32 s{R_K}, s6, s{T0}
    s_addc_u32 s{R_K+1}, s7, 0
    s_mov_b32 s{R_K+2}, 131072
    s_mov_b32 s{R_K+3}, 0x20000
    """)
    if not earlybar: a("s_barrier")
    ws_srd()
    KB = 64
    for T in range(8):
        if T == 0: so = "0"
        else:
            a(f"s_mov_b32 s{T0}, {T*(16384 if int(cfg.get('lin', 1)) else 4096)}"); so = f"s{T0}"
        for j in range(4):
            r = KB + (T * 4 + j) * 4
            a(f"buffer_load_dwordx4 {vr(r,4)}, v16, {srd(R_K)}, {so} offen offset:{j*64}{NT}")
    stamp()
    common_regs()
    SAP, SOP, SML = 66, 67, 60
    a(f"""
    s_mov_b32 s{R_X}, s4
    s_mov_b32 s{R_X+1}, s5
    s_mov_b32 s{R_X+2}, 4096
    s_mov_b32 s{R_X+3}, 0x20000
    s_mov_b32 s{R_OUT}, s22
    s_mov_b32 s{R_OUT+1}, s23
    s_mov_b32 s{R_OUT+2}, 4096
    s_mov_b32 s{R_OUT+3}, 0x20000
    s_lshl_b32 s{SAP}, s{S_HKV}, 16
    s_lshl_b32 s{T1}, s{S_B}, 12
    s_add_u32 s{SAP}, s{SAP}, s{T1}
    s_lshl_b32 s{T1}, s{S_S}, 9
    s_add_u32 s{SAP}, s{SAP}, s{T1}
    s_add_u32 s{SAP}, s{SAP}, {AP_OFF}
    s_lshl_b32 s{SOP}, s{S_S}, 15
    s_lshl_b32 s{T1}, s{S_H}, 8
    s_add_u32 s{SOP}, s{SOP}, s{T1}
    s_add_u32 s{SOP}, s{SOP}, {OP_OFF}
    s_lshl_b32 s{SML}, s{S_HKV}, 11
    s_lshl_b32 s{T1}, s{S_B}, 9
    s_add_u32 s{SML}, s{SML}, s{T1}
    s_lshl_b32 s{T1}, s{S_S}, 6
    s_add_u32 s{SML}, s{SML}, s{T1}
    s_add_u32 s{SML}, s{SML}, {ML_OFF}
    s_lshl_b32 s{T1}, s{S_WAVE}, 7                ; cw*128
    v_lshlrev_b32 v11, 14, v2
    v_lshl_add_u32 v11, v3, 4, v11
    v_add_u32 v11, s{T1}, v11
    s_lshl_b32 s{T1}, s{S_WAVE}, 6
    v_lshlrev_b32 v13, 13, v2
    v_lshl_add_u32 v13, v3, 4, v13
    v_add_u32 v13, s{T1}, v13
    """)
    a(f"""
    v_mul_u32_u24 v41, {P_STR}, v4
    v_lshl_add_u32 v41, v3, 4, v41
    v_add_u32 v41, {L_P}, v41
    v_lshrrev_b32 v42, 2, v2
    v_lshl_add_u32 v42, v3, 2, v42                ; key_local
    v_and_b32 v43, 7, v42
    v_lshlrev_b32 v43, 1, v43
    v_lshrrev_b32 v44, 1, v4
    s_lshl_b32 s{T0}, s{S_WAVE}, 2
    v_add_u32 v44, s{T0}, v44
    v_xor_b32 v45, v44, v43
    v_lshlrev_b32 v45, 4, v45
    v_lshl_add_u32 v45, v42, 8, v45
    v_and_b32 v48, 1, v4
    v_lshl_add_u32 v20, v48, 3, v45
    v_add_u32 v20, {L_RING}, v20
    v_add_u32 v21, 65536, v20
    v_add_u32 v44, 2, v44
    v_xor_b32 v45, v44, v43
    v_lshlrev_b32 v45, 4, v45
    v_lshl_add_u32 v45, v42, 8, v45
    v_lshl_add_u32 v22, v48, 3, v45
    v_add_u32 v22, {L_RING}, v22
    v_add_u32 v23, 65536, v22
    v_lshlrev_b32 v40, 2, v2                      ; (l&15)*4
    s_lshl_b32 s{T0}, s{S_WAVE}, 6
    v_add_u32 v39, s{T0}, v40
    s_lshl_b32 s{T0}, s{S_WAVE}, 8
    s_lshr_b32 s{T1}, s{S_WAVE}, 1
    s_lshl_b32 s{T1}, s{T1}, 6
    s_and_b32 s{T2}, s{S_WAVE}, 1
    s_lshl_b32 s{T2}, s{T2}, 3
    s_add_u32 s{T1}, s{T1}, s{T2}
    s_cmp_eq_u32 s{T1}, s{T1}
    s_cselect_b32 s{T0}, s{T1 if int(cfg.get("lin", 1)) else T0}, s{T0}
    v_mul_u32_u24 v38, {P_STR}, v2
    v_lshl_add_u32 v38, v3, 4, v38
    v_add_u32 v38, s{T0}, v38
    s_waitcnt vmcnt(32)
    """)
    tag_setup()
    spin_ge(F_QR, 4)
    stamp()
    QF, SS = 48, 192
    for j in range(4):
        a(f"ds_read_b128 {vr(QF+4*j,4)}, v35 offset:{L_Q+j*64}")
    for TP in range(4):
        a(f"s_waitcnt vmcnt({24 - 8*TP})" + (" lgkmcnt(0)" if TP == 0 else ""))
        for j in range(4):
            for T in (2*TP, 2*TP+1):
                c = "0" if j == 0 else vr(SS+4*T,4)
                a(f"v_mfma_f32_16x16x32_bf16 {vr(SS+4*T,4)}, {vr(KB+(T*4+j)*4,4)}, {vr(QF+4*j,4)}, {c}")
        if TP > 0:
            for p in range(4*(TP-1), 4*TP):
                x0, x1 = SS + 2*p, SS + 2*p + 1
                a(f"""
                v_cvt_pk_bf16_f32 v42, v{x0}, v{x1}
                v_lshlrev_b32 v{x0}, 16, v42
                v_and_b32 v{x1}, 0xffff0000, v42
                v_mul_f32 v{x0}, 0x{SCALE:x}, v{x0}
                v_mul_f32 v{x1}, 0x{SCALE:x}, v{x1}
                v_cvt_pk_bf16_f32 v42, v{x0}, v{x1}
                v_lshlrev_b32 v{x0}, 16, v42
                v_and_b32 v{x1}, 0xffff0000, v42
                """)
    stamp()
    a("s_nop 7")
    for p in range(12, 16):
        x0, x1 = SS + 2*p, SS + 2*p + 1
        a(f"""
        v_cvt_pk_bf16_f32 v42, v{x0}, v{x1}
        v_lshlrev_b32 v{x0}, 16, v42
        v_and_b32 v{x1}, 0xffff0000, v42
        v_mul_f32 v{x0}, 0x{SCALE:x}, v{x0}
        v_mul_f32 v{x1}, 0x{SCALE:x}, v{x1}
        v_cvt_pk_bf16_f32 v42, v{x0}, v{x1}
        v_lshlrev_b32 v{x0}, 16, v42
        v_and_b32 v{x1}, 0xffff0000, v42
        """)
    a(f"v_max3_f32 v43, v{SS}, v{SS+1}, v{SS+2}\nv_max3_f32 v44, v{SS+3}, v{SS+4}, v{SS+5}")
    for p in range(6, 30, 4):
        a(f"v_max3_f32 v43, v43, v{SS+p}, v{SS+p+1}\nv_max3_f32 v44, v44, v{SS+p+2}, v{SS+p+3}")
    a(f"v_max3_f32 v43, v43, v{SS+30}, v{SS+31}\nv_max_f32 v43, v43, v44")
    xor16("v_max_f32", 43, 42)
    xor32("v_max_f32", 43, 42)
    a(f"""
    s_mov_b64 exec, s[{M_16}:{M_16+1}]
    ds_write_b32 v39, v43 offset:{L_WM}
    s_mov_b64 exec, -1
    """)
    barrier(F_CB)
    for w in range(4):
        a(f"ds_read_b32 v{48+w}, v40 offset:{L_WM+w*64}")
    a(f"""
    s_mov_b32 s{T1}, 0x{LOG2E:x}
    s_waitcnt lgkmcnt(0)
    v_max3_f32 v46, v48, v49, v50
    v_max_f32 v46, v46, v51
    v_mul_f32 v47, s{T1}, v46
    """)
    for p in range(32):
        a(f"v_fma_f32 v{SS+p}, v{SS+p}, s{T1}, -v47")
    for p in range(32):
        a(f"v_exp_f32 v{SS+p}, v{SS+p}")
    PP = 224
    a(f"v_cvt_pk_bf16_f32 v{PP}, v{SS}, v{SS+1}")
    for p in range(1, 16):
        a(f"v_cvt_pk_bf16_f32 v{PP+p}, v{SS+2*p}, v{SS+2*p+1}")
    a(f"s_mov_b64 exec, s[{M_H4}:{M_H4+1}]")
    if int(cfg.get("lin", 1)):
        for i in range(8):
            a(f"ds_write_b64 v38, {vr(PP+2*i,2)} offset:{L_P+i*128}")
    else:
      for st in range(4):
        a(f"ds_write_b128 v38, {vr(PP+4*st,4)} offset:{L_P+st*64}")
    a("s_mov_b64 exec, -1")
    a(f"v_add_f32 v43, v{SS}, v{SS+1}\nv_add_f32 v42, v{SS+2}, v{SS+3}")
    for p in range(4, 32, 2):
        a(f"v_add_f32 v43, v43, v{SS+p}\nv_add_f32 v42, v42, v{SS+p+1}")
    a("v_add_f32 v43, v43, v42")
    xor16("v_add_f32", 43, 42)
    xor32("v_add_f32", 43, 42)
    a(f"""
    s_mov_b64 exec, s[{M_16}:{M_16+1}]
    ds_write_b32 v39, v43 offset:{L_WL}
    s_mov_b64 exec, -1
    """)
    barrier(F_CB)
    stamp()
    for w in range(4):
        a(f"ds_read_b32 v{48+w}, v40 offset:{L_WL+w*64}")
    a(f"""
    s_waitcnt lgkmcnt(0)
    v_add_f32 v47, v48, v49
    v_add_f32 v48, v50, v51
    v_add_f32 v47, v47, v48
    v_mov_b32 v28, v46
    v_mov_b32 v29, v47
    v_mov_b32 v30, v46
    v_mov_b32 v31, v47
    """)
    tag([28, 29, 30, 31])
    ACC = 184
    firstpv = [True]
    def pv(st):
        wait_piece(f"V{st}")
        for q in range(4):
            kb = 4 * st + q
            off = (kb % 8) * 8192
            b0, b1 = (20, 22) if kb < 8 else (21, 23)
            r = 64 + 12 * q
            a(f"ds_read_b128 {vr(r,4)}, v41 offset:{kb*64}")
            a(f"ds_read_b64_tr_b16 {vr(r+4,2)}, v{b0} offset:{off}")
            a(f"ds_read_b64_tr_b16 {vr(r+6,2)}, v{b0} offset:{off+4096}")
            a(f"ds_read_b64_tr_b16 {vr(r+8,2)}, v{b1} offset:{off}")
            a(f"ds_read_b64_tr_b16 {vr(r+10,2)}, v{b1} offset:{off+4096}")
        for q in range(4):
            r = 64 + 12 * q
            a(f"s_waitcnt lgkmcnt({15 - 5 * q})")
            for dt in range(2):
                c = "0" if firstpv[0] else vr(ACC+4*dt,4)
                a(f"v_mfma_f32_16x16x32_bf16 {vr(ACC+4*dt,4)}, {vr(r+4+4*dt,4)}, {vr(r,4)}, {c}")
            firstpv[0] = False
    pv(0)
    flag_add(F_P0)
    pv(1); pv(2)
    stamp()
    AG, MG, WOF, DN2 = 128, 144, 152, 168
    a(f"""
    s_lshl_b32 s{T4}, s{S_H}, 14
    s_lshl_b32 s{T1}, s{S_WAVE}, 12
    s_add_u32 s{T4}, s{T4}, s{T1}
    s_add_u32 s{T4}, s{T4}, {AP_OFF}
    s_lshl_b32 s{T5}, s{S_HKV}, 11
    s_lshl_b32 s{T2}, s{S_WAVE}, 9
    s_add_u32 s{T5}, s{T5}, s{T2}
    s_lshl_b32 s{T2}, s{S_B}, 4
    s_add_u32 s{T5}, s{T5}, s{T2}
    s_add_u32 s{T5}, s{T5}, {ML_OFF}
    v_lshrrev_b32 v33, 5, v1
    v_lshlrev_b32 v33, 6, v33
    s_lshl_b32 s{T0}, s{S_WAVE}, 8
    v_lshlrev_b32 v47, 2, v4
    v_add_u32 v47, v47, v3
    v_lshlrev_b32 v47, 4, v47
    v_add_u32 v47, s{T0}, v47
    """)
    a(f"""
    v_mov_b32 v24, v47
    s_lshl_b32 s{T2}, s{S_B}, 10
    s_lshl_b32 s{T3}, s{S_S}, 7
    s_add_u32 s{T2}, s{T2}, s{T3}
    s_lshl_b32 s{T3}, s{S_WAVE}, 5
    s_add_u32 s{T2}, s{T2}, s{T3}
    v_lshlrev_b32 v25, 3, v4
    buffer_load_dwordx2 v[26:27], v25, {srd(R_X)}, s{T2} offen
    """)
    pv(3)
    a("s_nop 7")
    tag(range(ACC, ACC+8))
    a(f"""
    s_mov_b64 exec, s[{M_H4}:{M_H4+1}]
    buffer_store_dwordx4 {vr(ACC,4)}, v11, {srd(R_WS)}, s{SAP} offen sc1
    buffer_store_dwordx4 {vr(ACC+4,4)}, v11, {srd(R_WS)}, s{SAP} offen offset:64 sc1
    s_mov_b64 exec, -1
    s_cmp_lg_u32 s{S_WAVE}, 0
    s_cbranch_scc1 L_mlst_done
    s_mov_b64 exec, 15
    buffer_store_dwordx4 v[28:31], v5, {srd(R_WS)}, s{SML} offen sc1
    s_mov_b64 exec, -1
    """)
    a.label("L_mlst_done")
    stamp()
    AGR, MS = 128, [(144,), (152,)]
    light = int(cfg.get("light", 1))
    MGS = [144, 112]
    def ml_loads(i=0):
        for m in range(4):
            a(f"buffer_load_dwordx2 {vr(MGS[i]+2*m,2)}, v33, {srd(R_WS)}, s{T5} offen offset:{m*128} sc1")
    def ap_loads(i=0):
        for m in range(4):
            a(f"buffer_load_dwordx4 {vr(AGR+4*m,4)}, v5, {srd(R_WS)}, s{T4} offen offset:{m*1024} sc1")
    ml_loads(0)
    def between1():
        spin_ge(F_DR, 4)
        a(f"ds_read_b128 {vr(DN2,4)}, v24 offset:{L_DNP}")
        wait_piece("WO")
        for kk in range(4):
            a(f"ds_read_b64_tr_b16 {vr(WOF+4*kk,2)}, v34 offset:{kk*4096}")
            a(f"ds_read_b64_tr_b16 {vr(WOF+4*kk+2,2)}, v34 offset:{kk*4096+512}")
    def consume_ml(i):
        ap_loads()
        mg = MGS[i]
        ms = [mg + 2*m for m in range(4)]
        ls = [mg + 2*m + 1 for m in range(4)]
        a(f"""
        v_max3_f32 v36, v{ms[0]}, v{ms[1]}, v{ms[2]}
        v_max_f32 v36, v36, v{ms[3]}
        """)
        xor32("v_max_f32", 36, 37)
        for m in range(4):
            a(f"v_sub_f32 v{49+m}, v{ms[m]}, v36")
        for m in range(4):
            a(f"v_mul_f32 v{49+m}, s{T2}, v{49+m}")
        for m in range(4):
            a(f"v_exp_f32 v{49+m}, v{49+m}")
        a("s_nop 0")
        a(f"v_mul_f32 v48, v49, v{ls[0]}")
        for m in range(1, 4):
            a(f"v_fmac_f32 v48, v{49+m}, v{ls[m]}")
    a(f"s_mov_b32 s{T2}, 0x{LOG2E:x}")
    NS1 = int(cfg.get("ns1", 2))
    poll_stag("ml", [list(range(g, g+8)) for g in MGS[:NS1]], ml_loads, 4, 36, int(cfg.get("gap1", 3)), consume_ml, None)
    between1()
    xor32("v_add_f32", 48, 37)
    a("v_rcp_f32 v48, v48\ns_nop 0")
    for m in range(4):
        a(f"v_mul_f32 v{49+m}, v{49+m}, v48")
    poll("ap", list(range(AGR, AGR+16)), ap_loads, 36, "s_waitcnt vmcnt(0)")
    stamp()
    for e in range(4):
        a(f"v_mul_f32 v{44+e}, v49, v{AGR+e}")
    for m in range(1, 4):
        for e in range(4):
            a(f"v_fmac_f32 v{44+e}, v{49+m}, v{AGR+4*m+e}")
    xorN(32, "v_add_f32", [44,45,46,47], [36,37,38,39])
    a(f"""
    v_cvt_pk_bf16_f32 v42, v44, v45
    v_cvt_pk_bf16_f32 v43, v46, v47
    s_mul_i32 s{T2}, s{S_WAVE}, {Q_STR}
    v_lshlrev_b32 v41, 3, v1
    v_add_u32 v41, s{T2}, v41
    s_mov_b32 exec_lo, -1
    s_mov_b32 exec_hi, 0
    ds_write_b64 v41, v[42:43] offset:{L_OB}
    s_mov_b64 exec, -1
    """)
    barrier(F_CB)
    OF = 172
    for kk in range(4):
        a(f"ds_read_b128 {vr(OF+4*kk,4)}, v35 offset:{L_OB+kk*64}")
    for kk in range(4):
        a(f"s_waitcnt lgkmcnt({3-kk})")
        a(f"v_mfma_f32_16x16x32_bf16 {vr(DN2,4)}, {vr(WOF+4*kk,4)}, {vr(OF+4*kk,4)}, {vr(DN2,4)}")
    a("s_nop 7")
    tag(range(DN2, DN2+4))
    a(f"""
    s_mov_b64 exec, s[{M_H4}:{M_H4+1}]
    buffer_store_dwordx4 {vr(DN2,4)}, v13, {srd(R_WS)}, s{SOP} offen sc1
    s_mov_b64 exec, -1
    """)
    stamp()
    a(f"""
    s_cmp_lg_u32 s{S_HKV}, 0
    s_cbranch_scc1 L_end
    s_lshl_b32 s{T0}, s{S_S}, 2
    s_add_u32 s{T0}, s{T0}, s{S_B}
    s_lshl_b32 s{T0}, s{T0}, 13
    s_lshl_b32 s{T1}, s{S_WAVE}, 6
    s_add_u32 s{T0}, s{T0}, s{T1}
    s_add_u32 s{T0}, s{T0}, {OP_OFF}
    s_add_u32 s{T1}, s{T0}, 4096                  ; heads 16..31
    s_lshl_b32 s{T2}, s{S_B}, 10
    s_lshl_b32 s{T3}, s{S_S}, 7
    s_add_u32 s{T2}, s{T2}, s{T3}
    s_lshl_b32 s{T3}, s{S_WAVE}, 5
    s_add_u32 s{T2}, s{T2}, s{T3}
    v_lshrrev_b32 v32, 2, v1
    v_lshlrev_b32 v32, 8, v32
    v_lshl_add_u32 v32, v4, 4, v32                ; (l>>2)*256 + (l&3)*16
    v_lshlrev_b32 v33, 3, v4                      ; (l&3)*8
    """)
    FGS = [192, 200, 208]
    NS2 = int(cfg.get("ns2", 2))
    def fin_loads(i=0):
        a(f"buffer_load_dwordx4 {vr(FGS[i],4)}, v32, {srd(R_WS)}, s{T0} offen sc1")
        a(f"buffer_load_dwordx4 {vr(FGS[i]+4,4)}, v32, {srd(R_WS)}, s{T1} offen sc1")
    fin_loads(0)
    FG = 44
    def consume2(i):
        f = FGS[i]
        for e in range(4):
            a(f"v_add_f32 v{FG+e}, v{f+e}, v{f+4+e}")
    poll_stag("fin", [list(range(f, f+8)) for f in FGS[:NS2]], fin_loads, 2, 38, int(cfg.get("gap2", 3)), consume2)
    stamp()
    for ctl in ("row_ror:4", "row_ror:8"):
        a("s_nop 1")
        for e in range(4):
            a(f"v_add_f32_dpp v{FG+e}, v{FG+e}, v{FG+e} {ctl} row_mask:0xf bank_mask:0xf")
    a("s_nop 0")
    xorN(16, "v_add_f32", [FG, FG+1, FG+2, FG+3], [38,39,40,41])
    xorN(32, "v_add_f32", [FG, FG+1, FG+2, FG+3], [38,39,40,41])
    a(f"""
    v_lshlrev_b32 v40, 16, v26
    v_and_b32 v41, 0xffff0000, v26
    v_lshlrev_b32 v42, 16, v27
    v_and_b32 v43, 0xffff0000, v27
    v_add_f32 v40, v40, v{FG}
    v_add_f32 v41, v41, v{FG+1}
    v_add_f32 v42, v42, v{FG+2}
    v_add_f32 v43, v43, v{FG+3}
    v_cvt_pk_bf16_f32 v40, v40, v41
    v_cvt_pk_bf16_f32 v41, v42, v43
    s_mov_b64 exec, 15
    buffer_store_dwordx2 v[40:41], v33, {srd(R_OUT)}, s{T2} offen
    s_mov_b64 exec, -1
    s_cmp_lg_u32 s{S_WAVE}, 0
    s_cbranch_scc1 L_end
    s_cmp_lg_u32 s2, 0
    s_cbranch_scc1 L_end
    s_add_u32 s{S_EP}, s{S_EP}, 1
    v_mov_b32 v40, s{S_EP}
    v_mov_b32 v41, 0
    s_mov_b32 s{T1}, {EP_OFF}
    s_mov_b64 exec, 1
    buffer_store_dword v40, v41, {srd(R_WS)}, s{T1} offen sc1
    s_mov_b64 exec, -1
    """)
    a.label("L_end")
    if stamps:
        a(f"s_cmp_lg_u32 s{S_WAVE}, 0\ns_cbranch_scc1 L_exit")
        a(f"s_memrealtime s[{STAMP_REGS[NSTAMP-1]}:{STAMP_REGS[NSTAMP-1]+1}]")
        a(f"s_mov_b32 s{STAMP_REGS[10]}, s{S_CNT}\ns_mov_b32 s{STAMP_REGS[10]+1}, 0")
        a(f"""
        s_waitcnt lgkmcnt(0)
        s_add_u32 s{R_WS}, s{R_WS}, {STAMP_OFF}
        s_addc_u32 s{R_WS+1}, s{R_WS+1}, 0
        s_lshl_b32 s{T0}, s2, 1
        s_add_u32 s{T0}, s{T0}, s{S_ROLE}
        s_mul_i32 s{T0}, s{T0}, {NSTAMP*8}
        v_mov_b32 v2, s{T0}
        s_mov_b64 exec, 1
        """)
        for i in range(NSTAMP):
            r = STAMP_REGS[i]
            a(f"v_mov_b32 v4, s{r}\nv_mov_b32 v5, s{r+1}\nbuffer_store_dwordx2 v[4:5], v2, {srd(R_WS)}, 0 offen offset:{i*8}\ns_nop 1")
        print("stamps: X used", x_stamps, "Q used", nstamp[0])
    a.label("L_exit")
    a("s_endpgm")
    launch = f"grid=(256,1,1) block=(512,1,1) lds={L_END}"
    return file_text([launch], a.text(), [descriptor(kn, 256, 102)])

if __name__ == "__main__":
    out = sys.argv[1] if len(sys.argv) > 1 else "cdna_kernels/" + NAME + ".s"
    cfg = dict(kv.split("=") for kv in sys.argv[2:] if "=" in kv)
    open(out, "w").write(gen(stamps=("stamps" in sys.argv), cfg=cfg))
    print("wrote", out, "LDS", L_END)
```

```python
import sys
from asmlib import *

QP_OFF = 0x000000
GU_OFF = 0x040000
AP_OFF = 0x080000
ML_OFF = 0x100000
OP_OFF = 0x110000
EP_OFF = 0x1F0000
WS_SIZE = 0x200000
STAMP_OFF = 268435456 - (1 << 20)
import os
TAGMASK = int(os.environ.get('TAGMASK', '0x0F'), 0)

P_STR = 1040
Q_STR = 272
H_STR = 144
L_FL = 0
L_P = 64
L_XQ = L_P + 4 * P_STR
L_XG = L_XQ + 4 * Q_STR
L_Q = L_XG + 4 * Q_STR
L_OB = L_Q + 4 * Q_STR
L_H = L_OB + 4 * Q_STR
L_WM = L_H + 4 * H_STR
L_WL = L_WM + 256
L_DNP = L_WL + 256
L_SMALL_END = L_DNP + 1024
L_T0 = 11264
assert L_SMALL_END <= L_T0
L_RING = L_T0 + 16384
L_END = L_RING + 131072
L_GUT = L_RING + 98304
L_DNT = L_GUT + 16384
F_LPROG, F_CB, F_XB, F_QR, F_DR, F_P0 = 0, 16, 20, 24, 28, 32

LOG2E = 0x3FB8AA3B
SCALE = 0x3DB504F3
POLL_LIMIT = 20000
SPIN_LIMIT = 200000

S_WAVE, S_B, S_HKV, S_S, S_H = 28, 29, 30, 31, 32
T0, T1, T2, T3, T4, T5, T6 = 33, 34, 35, 36, 37, 38, 39
R_X, R_K, R_V, R_WQ, R_GU, R_DN, R_WO, R_WS, R_OUT = 40, 44, 48, 52, 56, 60, 64, 68, 76
S_EP = 72
S_PROG = 73
S_ROLE = 74
M_H4 = 80
M_16 = 82
M_T = 84
S_CNT = 86
S_SP = 87
STAMP_REGS = [90, 92, 94, 96, 98, 100, 4, 6, 8, 10, 12, 14]
NSTAMP = 12

def srd(r): return f"s[{r}:{r+3}]"
def vr(a, n): return f"v[{a}:{a+n-1}]"

def gen(stamps=False, nt=True, cfg=None):
    cfg = cfg or {}
    a = Asm()
    kn = NAME + "_kernel"
    NT = " nt" if nt else ""
    D = int(cfg.get("D", 12))
    nstamp = [0]; uid = [0]
    dnlate = int(cfg.get("dnlate", 1))
    def lab(p):
        uid[0] += 1
        return f"L_{p}_{uid[0]}"
    def stamp():
        if stamps:
            i = nstamp[0]; nstamp[0] += 1
            assert i < NSTAMP
            r = STAMP_REGS[i]
            a(f"s_memrealtime s[{r}:{r+1}]")
    def xor16(op, v, t):
        a(f"v_mov_b32 v{t}, v{v}\ns_nop 1\nv_permlane16_swap_b32 v{v}, v{t}\ns_nop 0\n{op} v{v}, v{v}, v{t}")
    def xor32(op, v, t):
        a(f"v_mov_b32 v{t}, v{v}\ns_nop 1\nv_permlane32_swap_b32 v{v}, v{t}\ns_nop 0\n{op} v{v}, v{v}, v{t}")
    def xorN(kind, op, regs, tmps):
        for v, t in zip(regs, tmps): a(f"v_mov_b32 v{t}, v{v}")
        a("s_nop 1")
        for v, t in zip(regs, tmps): a(f"v_permlane{kind}_swap_b32 v{v}, v{t}")
        a("s_nop 0")
        for v, t in zip(regs, tmps): a(f"{op} v{v}, v{v}, v{t}")
    def wave_sum(v, t):
        for ctl in ["quad_perm:[1,0,3,2]", "quad_perm:[2,3,0,1]", "row_half_mirror", "row_mirror"]:
            a(f"s_nop 1\nv_add_f32_dpp v{v}, v{v}, v{v} {ctl} row_mask:0xf bank_mask:0xf")
        a("s_nop 0")
        xor16("v_add_f32", v, t)
        xor32("v_add_f32", v, t)
    def rne(dst, src):
        a(f"v_cvt_pk_bf16_f32 v{dst}, v{src}, v{src}\nv_lshlrev_b32 v{dst}, 16, v{dst}")

    VF, VONE, VS = 14, 15, 252
    VTAG, VMSK = 6, 7
    VT = [6, 8, 13, 112]
    def spin_ge(off, val, four=False, keep=None):
        l0, l1 = lab("sp"), lab("spd")
        if keep is not None:
            a(f"s_cmp_ge_u32 s{keep}, {val}\ns_cbranch_scc1 {l1}")
        dst = keep if keep is not None else T6
        a(f"s_mov_b32 s{S_SP}, 0")
        a.label(l0)
        if four:
            a(f"ds_read_b128 {vr(VS,4)}, v{VF} offset:{off}\ns_waitcnt lgkmcnt(0)")
            a(f"v_min_u32 v{VS}, v{VS}, v{VS+1}\nv_min3_u32 v{VS}, v{VS}, v{VS+2}, v{VS+3}")
        else:
            a(f"ds_read_b32 v{VS}, v{VF} offset:{off}\ns_waitcnt lgkmcnt(0)")
        a(f"""
        s_nop 0
        v_readfirstlane_b32 s{dst}, v{VS}
        s_add_u32 s{S_SP}, s{S_SP}, 1
        s_cmp_ge_u32 s{dst}, {val}
        s_cbranch_scc1 {l1}
        s_cmp_ge_u32 s{S_SP}, {SPIN_LIMIT}
        s_cbranch_scc1 {l1}
        s_sleep 1
        s_branch {l0}
        """)
        a.label(l1)
    def flag_add(off):
        a(f"s_mov_b64 exec, 1\nds_add_u32 v{VF}, v{VONE} offset:{off}\ns_mov_b64 exec, -1")
    nb = {F_CB: 0, F_XB: 0}
    def b_arrive(f):
        nb[f] += 1
        flag_add(f)
        return nb[f]
    def b_wait(f, n):
        spin_ge(f, 4 * n)
    def barrier(f):
        b_wait(f, b_arrive(f))
    PIECES = ["V0", "V1", "V2", "V3", "WO"]
    pidx = {p: i + 1 for i, p in enumerate(PIECES)}
    def wait_piece(p):
        spin_ge(F_LPROG, pidx[p], four=True, keep=S_PROG)
    def tag(regs):
        for i, r in enumerate(regs): a(f"v_bfi_b32 v{r}, v{VMSK}, v{VT[i % 4]}, v{r}")
    def poll(name, regs, loads, acc, first_wait, backoff=0):
        a(f"s_mov_b32 s{S_CNT}, 0\n{first_wait}")
        a.label(f"L_{name}_chk")
        check(regs, acc)
        a(f"""
        s_cbranch_vccz L_{name}_ok
        s_add_u32 s{S_CNT}, s{S_CNT}, 1
        s_cmp_ge_u32 s{S_CNT}, {POLL_LIMIT}
        s_cbranch_scc1 L_{name}_ok
        """)
        if backoff: a(f"s_sleep {backoff}")
        loads()
        a(f"s_waitcnt vmcnt(0)\ns_branch L_{name}_chk")
        a.label(f"L_{name}_ok")
    def check(regs, acc, per=4):
        for i, r in enumerate(regs):
            a(f"v_xor_b32 v{r}, v{r}, v{VT[i % per]}")
        rs = list(regs)
        a(f"v_or3_b32 v{acc}, v{rs[0]}, v{rs[1]}, v{rs[2]}")
        k = 3
        while k + 1 < len(rs):
            a(f"v_or3_b32 v{acc}, v{acc}, v{rs[k]}, v{rs[k+1]}"); k += 2
        if k < len(rs):
            a(f"v_or_b32 v{acc}, v{acc}, v{rs[k]}")
        a(f"v_and_b32 v{acc}, v{acc}, v{VMSK}\nv_cmp_ne_u32 vcc, 0, v{acc}")
    def check_ml(regs, acc):
        for k in range(0, len(regs), 4):
            if k == 0:
                a(f"v_xor_b32 v{acc}, v{regs[2]}, v12")
            else:
                a(f"v_bitop3_b32 v{acc}, v{acc}, v{regs[k+2]}, v12 bitop3:0xf6")
            a(f"v_bitop3_b32 v{acc}, v{acc}, v{regs[k+3]}, v17 bitop3:0xf6")
        a(f"v_cmp_ne_u32 vcc, 0, v{acc}")
    def poll_stag(name, sets, loads, nloads, acc, gap, consume, between=None, per=4):
        n = len(sets)
        for i in range(1, n):
            if gap: a(f"s_sleep {gap}")
            loads(i)
        if between: between()
        a(f"s_mov_b32 s{S_CNT}, 0")
        a.label(f"L_{name}_loop")
        for i in range(n):
            a(f"s_waitcnt vmcnt({(n-1)*nloads})")
            (check_ml(sets[i], acc) if per == 0 else check(sets[i], acc, per))
            a(f"s_cbranch_vccz L_{name}_ok{i}")
            loads(i)
        a(f"""
        s_add_u32 s{S_CNT}, s{S_CNT}, 1
        s_cmp_lt_u32 s{S_CNT}, {POLL_LIMIT}
        s_cbranch_scc1 L_{name}_loop
        s_waitcnt vmcnt(0)
        """)
        for i in range(n):
            a.label(f"L_{name}_ok{i}")
            consume(i)
            if i != n - 1: a(f"s_branch L_{name}_done")
        a.label(f"L_{name}_done")
    def tag_setup():
        a(f"""
        v_readfirstlane_b32 s{S_EP}, v{VTAG}
        v_add_u32 v{VTAG}, 1, v{VTAG}
        """)
        for e in (3, 2, 1):
            a(f"v_add_u32 v{VT[e]}, {e * 0x35}, v{VTAG}\nv_and_b32 v{VT[e]}, {TAGMASK}, v{VT[e]}")
        a(f"v_and_b32 v{VTAG}, {TAGMASK}, v{VTAG}")
    def ws_srd():
        a(f"""
        s_mov_b32 s{R_WS}, s26
        s_mov_b32 s{R_WS+1}, s27
        s_mov_b32 s{R_WS+2}, {WS_SIZE}
        s_mov_b32 s{R_WS+3}, 0x20000
        s_mov_b32 s{T1}, {EP_OFF}
        v_mov_b32 v33, 0
        buffer_load_dword v{VTAG}, v33, {srd(R_WS)}, s{T1} offen sc1
        """)
    def common_regs():
        a(f"""
        s_mov_b32 s{M_H4}, 0x000F000F
        s_mov_b32 s{M_H4+1}, 0x000F000F
        s_mov_b32 s{M_16}, 0xFFFF
        s_mov_b32 s{M_16+1}, 0
        v_mov_b32 v{VMSK}, {TAGMASK}
        v_lshrrev_b32 v32, 2, v2
        v_lshl_add_u32 v32, v3, 3, v32
        v_lshlrev_b32 v32, 7, v32
        v_lshl_add_u32 v34, v4, 3, v32
        s_lshl_b32 s{T3}, s{S_WAVE}, 5
        s_add_u32 s{T3}, s{T3}, {L_T0}
        v_add_u32 v34, s{T3}, v34                     ; T0 + (8g+r)*128 + t*32 + c4*8
        v_mul_u32_u24 v35, {Q_STR}, v4
        v_lshl_add_u32 v35, v3, 4, v35                ; (l&3)*272 + g*16
        v_lshlrev_b32 v5, 4, v1                       ; l*16
        """)

    kernel_begin(a, kn)
    a(f"""
    s_cmp_ge_u32 s2, 256
    s_cbranch_scc1 L_exit
    s_load_dwordx16 s[4:19], s[0:1], 0
    s_load_dwordx8 s[20:27], s[0:1], 64
    """)
    stamp()
    for _ in range(int(cfg.get("diag_sleep", 0))): a("s_sleep 100")
    a(f"""
    v_and_b32 v1, 63, v0
    v_lshrrev_b32 v32, 6, v0
    v_and_b32 v2, 15, v1
    v_readfirstlane_b32 s{S_WAVE}, v32
    v_lshrrev_b32 v3, 4, v1
    v_and_b32 v4, 3, v1
    v_mov_b32 v{VF}, {L_FL}
    v_mov_b32 v{VONE}, 1
    s_lshr_b32 s{S_B}, s2, 6
    s_bfe_u32 s{S_HKV}, s2, 0x30003
    s_and_b32 s{S_S}, s2, 7
    s_lshl_b32 s{S_H}, s{S_HKV}, 2
    s_add_u32 s{S_H}, s{S_H}, s{S_B}
    s_mov_b32 s{S_PROG}, 0
    s_cmp_lg_u32 s{S_WAVE}, 0
    s_cbranch_scc1 L_noinit
    v_lshlrev_b32 v32, 2, v1
    v_mov_b32 v33, 0
    s_mov_b64 exec, 0xFFFF
    ds_write_b32 v32, v33 offset:{L_FL}
    s_mov_b64 exec, -1
    s_waitcnt lgkmcnt(0)
    """)
    a.label("L_noinit")
    earlybar = int(cfg.get("earlybar", 1))
    if earlybar: a("s_barrier")
    a(f"""
    s_lshr_b32 s{S_ROLE}, s{S_WAVE}, 2
    s_and_b32 s{S_WAVE}, s{S_WAVE}, 3
    s_cmp_eq_u32 s{S_ROLE}, 0
    s_cbranch_scc1 L_qwave
    """)
    start_stamp = nstamp[0]
    a(f"""
    s_setprio 3
    v_lshlrev_b32 v5, 4, v1
    s_lshl_b32 s{T0}, s{S_WAVE}, 10
    v_lshrrev_b32 v36, 3, v1
    v_and_b32 v37, 7, v1
    v_lshlrev_b32 v37, 4, v37
    v_lshl_add_u32 v22, v36, 13, v37
    s_lshl_b32 s{T2}, s{S_B}, 20
    s_lshl_b32 s{T1}, s{S_HKV}, 10
    s_add_u32 s{T2}, s{T2}, s{T1}
    s_lshl_b32 s{T1}, s{S_S}, 7
    s_add_u32 s{T4}, s{T2}, s{T1}
    s_waitcnt lgkmcnt(0)
    s_mov_b32 s{R_X}, s4
    s_mov_b32 s{R_X+1}, s5
    s_mov_b32 s{R_X+2}, 4096
    s_mov_b32 s{R_X+3}, 0x20000
    buffer_load_dwordx4 v[24:27], v5, {srd(R_X)}, s{T0} offen
    s_add_u32 s{R_WQ}, s10, s{T4}
    s_addc_u32 s{R_WQ+1}, s11, 0
    s_mov_b32 s{R_WQ+2}, {127*8192+128}
    s_mov_b32 s{R_WQ+3}, 0x20000
    """)
    ws_srd()
    def tile_dma(p):
        n_per = 2 if p == "DN" else 4
        stride = {"WQ": 8192, "GU": 3584, "WO": 1024, "DN": 1024}[p]
        vo = {"WQ": 22, "GU": 23, "WO": 21, "DN": 21}[p]
        R = {"WQ": R_WQ, "GU": R_GU, "WO": R_WO, "DN": R_DN}[p]
        LB = {"WQ": L_T0, "GU": L_GUT, "WO": L_T0, "DN": (L_RING if dnlate else L_DNT)}[p]
        out = []
        for q in range(n_per):
            def f(q=q):
                if q == 0:
                    a(f"""
                    s_mul_i32 s{T1}, s{S_WAVE}, {n_per*8*stride}
                    s_mul_i32 s{T0}, s{S_WAVE}, {n_per*1024}
                    s_add_u32 s{T0}, s{T0}, {LB}
                    """)
                else:
                    a(f"s_add_u32 s{T1}, s{T1}, {8*stride}\ns_add_u32 s{T0}, s{T0}, 1024")
                a(f"""
                s_mov_b32 m0, s{T0}
                s_nop 0
                buffer_load_dwordx4 v{vo}, {srd(R)}, s{T1} offen{NT} lds
                """)
            out.append(f)
        return out
    for f in tile_dma("WQ"): f()
    if not earlybar: a("s_barrier")
    a(f"""
    v_mul_u32_u24 v23, 3584, v36
    v_add_u32 v23, v23, v37
    v_lshl_add_u32 v21, v36, 10, v37
    s_and_b32 s{T0}, s{S_S}, 1
    s_cmp_eq_u32 s{T0}, 0
    s_cselect_b32 s{T2}, s16, s18
    s_cselect_b32 s{T3}, s17, s19
    s_lshr_b32 s{T0}, s{S_S}, 1
    s_mul_i32 s{T0}, s{T0}, {128*3584}
    s_lshl_b32 s{T1}, s{S_H}, 7
    s_add_u32 s{T0}, s{T0}, s{T1}
    s_add_u32 s{R_GU}, s{T2}, s{T0}
    s_addc_u32 s{R_GU+1}, s{T3}, 0
    s_cmp_lt_u32 s{S_H}, 28
    s_cselect_b32 s{R_GU+2}, {127*3584+128}, 0
    s_mov_b32 s{R_GU+3}, 0x20000
    """)
    for f in tile_dma("GU"): f()
    a(f"""
    s_lshl_b32 s{T0}, s{S_H}, 16
    s_lshl_b32 s{T1}, s{S_S}, 7
    s_add_u32 s{T0}, s{T0}, s{T1}
    s_add_u32 s{R_DN}, s20, s{T0}
    s_addc_u32 s{R_DN+1}, s21, 0
    s_cmp_lt_u32 s{S_H}, 28
    s_cselect_b32 s{R_DN+2}, {63*1024+128}, 0
    s_mov_b32 s{R_DN+3}, 0x20000
    """)
    if not dnlate:
        for f in tile_dma("DN"): f()
    pret = int(cfg.get("pret", 0))
    if pret:
        a(f"""
        s_lshl_b32 s{T0}, s{S_B}, 16
        s_lshl_b32 s{T1}, s{S_HKV}, 11
        s_add_u32 s{T0}, s{T0}, s{T1}
        s_lshl_b32 s{T1}, s{S_S}, 8
        s_add_u32 s{T0}, s{T0}, s{T1}
        s_lshl_b32 s{T1}, s{S_H}, 13
        s_lshl_b32 s{T2}, s{S_S}, 10
        s_add_u32 s{T1}, s{T1}, s{T2}
        s_add_u32 s{T1}, s{T1}, {GU_OFF}
        s_lshl_b32 s{T2}, s{S_HKV}, 16
        s_lshl_b32 s{T3}, s{S_B}, 12
        s_add_u32 s{T2}, s{T2}, s{T3}
        s_lshl_b32 s{T3}, s{S_S}, 9
        s_add_u32 s{T2}, s{T2}, s{T3}
        s_add_u32 s{T2}, s{T2}, {AP_OFF}
        s_lshl_b32 s{T3}, s{S_S}, 15
        s_lshl_b32 s{T4}, s{S_H}, 8
        s_add_u32 s{T3}, s{T3}, s{T4}
        s_add_u32 s{T3}, s{T3}, {OP_OFF}
        s_lshl_b32 s{T4}, s{S_HKV}, 11
        s_lshl_b32 s{T5}, s{S_B}, 9
        s_add_u32 s{T4}, s{T4}, s{T5}
        s_lshl_b32 s{T5}, s{S_S}, 6
        s_add_u32 s{T4}, s{T4}, s{T5}
        s_add_u32 s{T4}, s{T4}, {ML_OFF}
        s_cmp_eq_u32 s{S_WAVE}, 0
        s_cbranch_scc1 L_pt0
        s_cmp_eq_u32 s{S_WAVE}, 3
        s_cbranch_scc1 L_pt3
        v_lshrrev_b32 v100, 5, v1
        v_and_b32 v101, 31, v1
        v_lshlrev_b32 v100, 14, v100
        v_lshl_add_u32 v100, v101, 4, v100
        s_sub_u32 s{T5}, s{S_WAVE}, 1
        s_lshl_b32 s{T5}, s{T5}, 15
        s_add_u32 s{T2}, s{T2}, s{T5}
        buffer_load_dwordx4 v[104:107], v100, {srd(R_WS)}, s{T2} offen sc1
        buffer_load_dword v108, v100, {srd(R_WS)}, s{T2} offen sc1
        s_branch L_ptd
        """)
        a.label("L_pt0")
        a(f"""
        v_lshlrev_b32 v100, 14, v3
        v_lshl_add_u32 v100, v2, 4, v100
        buffer_load_dwordx4 v[104:107], v100, {srd(R_WS)}, s{T0} offen sc1
        buffer_load_dwordx4 v[108:111], v5, {srd(R_WS)}, s{T1} offen sc1
        s_branch L_ptd
        """)
        a.label("L_pt3")
        a(f"""
        v_lshlrev_b32 v100, 13, v3
        v_lshl_add_u32 v100, v2, 4, v100
        buffer_load_dwordx4 v[104:107], v100, {srd(R_WS)}, s{T3} offen sc1
        v_and_b32 v101, 3, v1
        v_lshlrev_b32 v101, 4, v101
        buffer_load_dwordx4 v[108:111], v101, {srd(R_WS)}, s{T4} offen sc1
        """)
        a.label("L_ptd")
    common_regs()
    npf = int(cfg.get("codepf", 0))
    a(f"""
    s_lshl_b32 s{T0}, s2, 17
    s_add_u32 s{R_V}, s8, s{T0}
    s_addc_u32 s{R_V+1}, s9, 0
    s_mov_b32 s{R_V+2}, 131072
    s_mov_b32 s{R_V+3}, 0x20000
    s_lshl_b32 s{T0}, s{S_H}, 17
    s_lshl_b32 s{T1}, s{S_S}, 7
    s_add_u32 s{T0}, s{T0}, s{T1}
    s_add_u32 s{R_WO}, s12, s{T0}
    s_addc_u32 s{R_WO+1}, s13, 0
    s_mov_b32 s{R_WO+2}, {127*1024+128}
    s_mov_b32 s{R_WO+3}, 0x20000
    """)
    for v in range(2):
        a(f"v_lshlrev_b32 v36, 1, v3\nv_add_u32 v36, {8*v}, v36\nv_xor_b32 v{16+v}, v2, v36\nv_lshlrev_b32 v{16+v}, 4, v{16+v}\nv_lshl_add_u32 v{16+v}, v3, 8, v{16+v}")
    if int(cfg.get("lin", 1)):
        a(f"""
        s_and_b32 s{T0}, s{S_WAVE}, 1
        s_cmp_eq_u32 s{T0}, 1
        s_cselect_b64 vcc, -1, 0
        v_cndmask_b32 v16, v16, v17, vcc
        """)
    SQP, SGU = 78, 79
    a(f"""
    s_lshl_b32 s{T4}, s{S_WAVE}, 2
    s_add_u32 s{T4}, s{T4}, {L_FL + F_LPROG}
    v_mov_b32 v18, s{T4}
    s_lshl_b32 s{SQP}, s{S_B}, 16
    s_lshl_b32 s{T1}, s{S_HKV}, 11
    s_add_u32 s{SQP}, s{SQP}, s{T1}
    s_lshl_b32 s{T1}, s{S_S}, 8
    s_add_u32 s{SQP}, s{SQP}, s{T1}
    s_add_u32 s{SQP}, s{SQP}, {QP_OFF}
    s_lshl_b32 s{SGU}, s{S_H}, 13
    s_lshl_b32 s{T1}, s{S_S}, 10
    s_add_u32 s{SGU}, s{SGU}, s{T1}
    s_add_u32 s{SGU}, s{SGU}, {GU_OFF}
    s_lshl_b32 s{T1}, s{S_WAVE}, 6                ; t*64
    v_lshlrev_b32 v11, 14, v2
    v_lshl_add_u32 v11, v3, 4, v11
    v_add_u32 v11, s{T1}, v11
    v_lshlrev_b32 v12, 8, v2
    v_lshl_add_u32 v12, v3, 4, v12
    v_add_u32 v12, s{T1}, v12
    v_add_u32 v19, {L_GUT - L_T0}, v34
    v_add_u32 v20, {(L_RING if dnlate else L_DNT) - L_T0}, v34
    s_waitcnt vmcnt({(8 if dnlate else 10) + (2 if pret else 0)})
    """)
    stamp()
    if npf:
        a(f"""
        s_cmp_ge_u32 s2, {npf}
        s_cbranch_scc1 L_nopf
        s_getpc_b64 s[{M_T}:{M_T+1}]
        """)
        a.label("L_pcref")
        a(f"""
        s_lshl_b32 s{T0}, s{S_WAVE}, 12
        v_add_u32 v100, s{T0}, v5
        s_mov_b32 s{T1}, L_exit-L_pcref-16
        """)
        for k in range(4):
            a(f"""
            v_add_u32 v101, {k*1024}, v100
            v_cmp_gt_u32 vcc, s{T1}, v101
            s_and_saveexec_b64 s[88:89], vcc
            s_cbranch_execz L_pfs{k}
            global_load_dwordx4 v[104:107], v101, s[{M_T}:{M_T+1}]
            """)
            a.label(f"L_pfs{k}")
            a("s_mov_b64 exec, -1")
        a.label("L_nopf")
    tag_setup()
    for e in range(4):
        a(f"v_lshlrev_b32 v{40+2*e}, 16, v{24+e}\nv_and_b32 v{41+2*e}, 0xffff0000, v{24+e}")
    a(f"""
    v_add_f32 v32, v40, v41
    v_add_f32 v33, v42, v43
    v_add_f32 v36, v44, v45
    v_add_f32 v37, v46, v47
    v_add_f32 v32, v32, v33
    v_add_f32 v36, v36, v37
    v_add_f32 v32, v32, v36
    """)
    wave_sum(32, 33)
    a("v_mul_f32 v32, 0x3b000000, v32")
    for e in range(8):
        a(f"v_sub_f32 v{48+e}, v{40+e}, v32")
    a("v_mul_f32 v33, v48, v48\nv_mul_f32 v36, v49, v49")
    for e in range(2, 8, 2):
        a(f"v_fmac_f32 v33, v{48+e}, v{48+e}\nv_fmac_f32 v36, v{49+e}, v{49+e}")
    a("v_add_f32 v33, v33, v36")
    wave_sum(33, 36)
    a("v_mul_f32 v33, 0x3b000000, v33")
    rne(32, 32); rne(33, 33)
    a("v_add_f32 v33, 0x3727c5ac, v33")
    rne(33, 33)
    a("v_sqrt_f32 v33, v33")
    for e in range(8):
        a(f"v_sub_f32 v{48+e}, v{40+e}, v32")
    rne(33, 33)
    a("v_rcp_f32 v33, v33")
    for e in range(0, 8, 2):
        a(f"v_cvt_pk_bf16_f32 v36, v{48+e}, v{49+e}\nv_lshlrev_b32 v{48+e}, 16, v36\nv_and_b32 v{49+e}, 0xffff0000, v36")
    for e in range(8):
        a(f"v_mul_f32 v{48+e}, v{48+e}, v33")
    for e in range(4):
        a(f"v_cvt_pk_bf16_f32 v{44+e}, v{48+2*e}, v{49+2*e}")
    a(f"""
    s_mul_i32 s{T0}, s{S_WAVE}, {Q_STR}
    v_lshlrev_b32 v32, 4, v2
    v_add_u32 v32, s{T0}, v32
    v_cmp_eq_u32 vcc, s{S_B}, v3
    s_and_saveexec_b64 s[{M_T}:{M_T+1}], vcc
    ds_write_b128 v32, v[44:47] offset:{L_XQ}
    s_mov_b64 exec, -1
    s_lshr_b32 s{T1}, s{S_S}, 1
    v_cmp_eq_u32 vcc, s{T1}, v3
    s_and_saveexec_b64 s[{M_T}:{M_T+1}], vcc
    ds_write_b128 v32, v[44:47] offset:{L_XG}
    s_mov_b64 exec, -1
    s_waitcnt vmcnt({(4 if dnlate else 6) + (2 if pret else 0)})
    """)
    barrier(F_XB)
    stamp()
    WF, XF, DA = 48, 64, 80
    def p1(xoff, voff, sbase, areg):
        for kk in range(4):
            a(f"ds_read_b128 {vr(XF+4*kk,4)}, v35 offset:{xoff+kk*64}")
        for kk in range(4):
            a(f"ds_read_b64_tr_b16 {vr(WF+4*kk,2)}, v{areg} offset:{kk*4096}")
            a(f"ds_read_b64_tr_b16 {vr(WF+4*kk+2,2)}, v{areg} offset:{kk*4096+512}")
        for kk in range(4):
            a(f"s_waitcnt lgkmcnt({6-2*kk})")
            c = "0" if kk == 0 else vr(DA,4)
            a(f"v_mfma_f32_16x16x32_bf16 {vr(DA,4)}, {vr(WF+4*kk,4)}, {vr(XF+4*kk,4)}, {c}")
        a("s_nop 7")
        tag(range(DA, DA+4))
        a(f"""
        s_mov_b64 exec, s[{M_H4}:{M_H4+1}]
        buffer_store_dwordx4 {vr(DA,4)}, v{voff}, {srd(R_WS)}, s{sbase} offen sc1
        s_mov_b64 exec, -1
        """)
    p1(L_XQ, 11, SQP, 34)
    stamp()
    a(f"s_waitcnt vmcnt({1 + (2 if pret else 0)})")
    barrier(F_XB)
    p1(L_XG, 12, SGU, 19)
    DF = 84
    def dn_frags():
        for kk in range(2):
            a(f"ds_read_b64_tr_b16 {vr(DF+4*kk,2)}, v20 offset:{kk*4096}")
            a(f"ds_read_b64_tr_b16 {vr(DF+4*kk+2,2)}, v20 offset:{kk*4096+512}")
    if not dnlate: dn_frags()
    xb_tiles = b_arrive(F_XB)
    stamp()
    QG, GG = 24, 92
    a(f"""
    s_lshl_b32 s{T0}, s{S_B}, 14
    s_lshl_b32 s{T1}, s{S_HKV}, 11
    s_add_u32 s{T0}, s{T0}, s{T1}
    s_lshl_b32 s{T1}, s{S_WAVE}, 9
    s_add_u32 s{T5}, s{T0}, s{T1}
    s_add_u32 s{T5}, s{T5}, {QP_OFF}
    v_lshlrev_b32 v38, 16, v3
    v_lshl_add_u32 v38, v2, 4, v38
    s_lshl_b32 s{T4}, s{S_H}, 13
    s_lshl_b32 s{T1}, s{S_WAVE}, 8
    s_add_u32 s{T4}, s{T4}, s{T1}
    s_add_u32 s{T4}, s{T4}, {GU_OFF}
    v_lshlrev_b32 v39, 10, v3
    v_lshl_add_u32 v39, v2, 4, v39
    v_add_u32 v10, 4096, v39
    """)
    def qloads():
        a(f"buffer_load_dwordx4 {vr(QG,4)}, v38, {srd(R_WS)}, s{T5} offen sc1")
        a(f"buffer_load_dwordx4 {vr(QG+4,4)}, v38, {srd(R_WS)}, s{T5} offen offset:256 sc1")
    def gloads():
        a(f"buffer_load_dwordx4 {vr(GG,4)}, v39, {srd(R_WS)}, s{T4} offen sc1")
        a(f"buffer_load_dwordx4 {vr(GG+4,4)}, v10, {srd(R_WS)}, s{T4} offen sc1")
    vml = []
    def issue(tagname): vml.append(tagname)
    def younger(tagname):
        last = max(i for i, t in enumerate(vml) if t == tagname)
        return len(vml) - 1 - last
    signaled = []
    def signal(p):
        a(f"v_mov_b32 v9, {pidx[p]}\nds_write_b32 v18, v9")
        signaled.append(p)
    def try_signals():
        for p in PIECES:
            if p in signaled: continue
            n = {"WO": 4}.get(p, 8)
            if vml.count(p) == n and younger(p) >= D:
                a(f"s_waitcnt vmcnt({younger(p)})")
                signal(p)
            else:
                break
    lin = int(cfg.get("lin", 1))
    def vstage(st):
        for q in range(8):
            if lin:
                a(f"""
                s_lshl_b32 s{T0}, s{S_WAVE}, 10
                s_add_u32 s{T0}, s{T0}, {st*32768 + q*4096}
                s_add_u32 s{T1}, s{T0}, {L_RING}
                s_mov_b32 m0, s{T1}
                s_nop 0
                buffer_load_dwordx4 v16, {srd(R_V)}, s{T0} offen{NT} lds
                """)
            else:
                if q % 4 == 0:
                    a(f"""
                    s_lshl_b32 s{T0}, s{S_WAVE}, 13
                    s_add_u32 s{T0}, s{T0}, {st*32768 + (q//4)*4096}
                    s_add_u32 s{T1}, s{T0}, {L_RING}
                    s_mov_b32 m0, s{T1}
                    s_nop 0
                    """)
                a(f"buffer_load_dwordx4 v{16 + q % 2}, {srd(R_V)}, s{T0} offen offset:{(q%4)*1024}{NT} lds")
            issue(f"V{st}")
            if q % 4 == 3: try_signals()
    qdelay = int(cfg.get("qdelay", 0))
    if qdelay: a(f"s_sleep {qdelay}")
    qloads(); issue("q"); issue("q")
    poll("q", list(range(QG, QG+8)), qloads, 41, f"s_waitcnt vmcnt(0)")
    stamp()
    xorN(16, "v_add_f32", list(range(QG, QG+8)), list(range(40, 48)))
    xorN(32, "v_add_f32", list(range(QG, QG+8)), list(range(40, 48)))
    a(f"""
    v_cvt_pk_bf16_f32 v42, v{QG}, v{QG+1}
    v_cvt_pk_bf16_f32 v43, v{QG+2}, v{QG+3}
    v_cvt_pk_bf16_f32 v44, v{QG+4}, v{QG+5}
    v_cvt_pk_bf16_f32 v45, v{QG+6}, v{QG+7}
    s_mul_i32 s{T0}, s{S_WAVE}, {Q_STR}
    s_add_u32 s{T0}, s{T0}, {L_Q}
    v_lshlrev_b32 v41, 3, v2
    v_add_u32 v41, s{T0}, v41
    s_mov_b64 exec, s[{M_16}:{M_16+1}]
    ds_write_b64 v41, v[42:43]
    ds_write_b64 v41, v[44:45] offset:128
    s_mov_b64 exec, -1
    """)
    flag_add(F_QR)
    a("s_setprio 0")
    vstage(0)
    vstage(1)
    gloads(); issue("g"); issue("g")
    vstage(2)
    b_wait(F_XB, xb_tiles)
    vstage(3)
    for f in tile_dma("WO"):
        f(); issue("WO")
    if dnlate:
        spin_ge(F_P0, 4)
        for f in tile_dma("DN"):
            f(); issue("DN")
    try_signals()
    stamp()
    poll("g", list(range(GG, GG+8)), gloads, 44, f"s_waitcnt vmcnt({younger('g')})")
    for e in range(4):
        a(f"v_add_f32 v{GG+e}, v{GG+e}, v{GG+4+e}")
    xorN(32, "v_add_f32", list(range(GG, GG+4)), [44,45,46,47])
    for e in range(4):
        a(f"v_mov_b32 v{GG+4+e}, v{GG+e}")
    a("s_nop 1")
    for e in range(4):
        a(f"v_permlane16_swap_b32 v{GG+e}, v{GG+4+e}")
    a("s_nop 0")
    for e in range(4):
        rne(GG+e, GG+e); rne(GG+4+e, GG+4+e)
    tm = [44, 45, 46, 47]
    for e in range(4): a(f"v_mul_f32 v{tm[e]}, v{GG+e}, v{GG+e}")
    for e in range(4): a(f"v_mul_f32 v{tm[e]}, v{tm[e]}, v{GG+e}")
    for e in range(4): a(f"v_mul_f32 v{tm[e]}, 0x3d372713, v{tm[e]}")
    for e in range(4): a(f"v_add_f32 v{tm[e]}, v{tm[e]}, v{GG+e}")
    for e in range(4): a(f"v_mul_f32 v{tm[e]}, 0xc0135761, v{tm[e]}")
    for e in range(4): a(f"v_exp_f32 v{tm[e]}, v{tm[e]}")
    a("s_nop 0")
    for e in range(4): a(f"v_add_f32 v{tm[e]}, 1.0, v{tm[e]}")
    for e in range(4): a(f"v_rcp_f32 v{tm[e]}, v{tm[e]}")
    a("s_nop 0")
    for e in range(4): a(f"v_mul_f32 v{GG+e}, v{GG+e}, v{tm[e]}")
    for e in range(4): rne(GG+e, GG+e)
    for e in range(4): a(f"v_mul_f32 v{GG+e}, v{GG+e}, v{GG+4+e}")
    a(f"""
    v_cvt_pk_bf16_f32 v44, v{GG}, v{GG+1}
    v_cvt_pk_bf16_f32 v45, v{GG+2}, v{GG+3}
    s_mul_i32 s{T0}, s{S_WAVE}, {H_STR}
    v_lshlrev_b32 v47, 3, v2
    v_add_u32 v47, s{T0}, v47
    s_mov_b64 exec, s[{M_16}:{M_16+1}]
    ds_write_b64 v47, v[44:45] offset:{L_H}
    s_mov_b64 exec, -1
    """)
    if dnlate:
        for p in PIECES:
            if p not in signaled:
                a(f"s_waitcnt vmcnt({younger(p)})"); signal(p)
        a("s_waitcnt vmcnt(0)")
        barrier(F_XB)
        dn_frags()
    else:
        xb_h = b_arrive(F_XB)
        for p in ("V1", "V2"):
            if p not in signaled:
                a(f"s_waitcnt vmcnt({younger(p)})"); signal(p)
        b_wait(F_XB, xb_h)
    a(f"""
    v_mul_u32_u24 v47, {H_STR}, v4
    v_lshl_add_u32 v47, v3, 4, v47
    """)
    HF = 64
    for kk in range(2):
        a(f"ds_read_b128 {vr(HF+4*kk,4)}, v47 offset:{L_H+kk*64}")
    a("s_waitcnt lgkmcnt(0)")
    DN_ACC = 80
    for kk in range(2):
        c = "0" if kk == 0 else vr(DN_ACC,4)
        a(f"v_mfma_f32_16x16x32_bf16 {vr(DN_ACC,4)}, {vr(DF+4*kk,4)}, {vr(HF+4*kk,4)}, {c}")
    a(f"""
    s_lshl_b32 s{T0}, s{S_WAVE}, 8
    v_lshlrev_b32 v47, 2, v4
    v_add_u32 v47, v47, v3
    v_lshlrev_b32 v47, 4, v47                     ; ((l&3)*4+g)*16
    v_add_u32 v47, s{T0}, v47
    s_nop 3
    s_mov_b64 exec, s[{M_H4}:{M_H4+1}]
    ds_write_b128 v47, {vr(DN_ACC,4)} offset:{L_DNP}
    s_mov_b64 exec, -1
    """)
    flag_add(F_DR)
    stamp()
    for p in PIECES:
        if p not in signaled:
            a(f"s_waitcnt vmcnt({younger(p)})"); signal(p)
    stamp()
    a("s_waitcnt lgkmcnt(0)\ns_branch L_end")
    x_stamps = nstamp[0]

    nstamp[0] = start_stamp
    a.label("L_qwave")
    VT[:] = [6, 8, 9, 10]
    a(f"s_setprio {int(cfg.get('qprio', 1))}")
    a(f"""
    s_lshl_b32 s{T0}, s{S_WAVE}, {12 if int(cfg.get("lin", 1)) else 15}
    v_lshlrev_b32 v16, 8, v2
    v_lshl_add_u32 v16, v3, 4, v16
    v_add_u32 v16, s{T0}, v16                     ; K voffset
    s_lshl_b32 s{T0}, s2, 17
    s_waitcnt lgkmcnt(0)
    s_add_u32 s{R_K}, s6, s{T0}
    s_addc_u32 s{R_K+1}, s7, 0
    s_mov_b32 s{R_K+2}, 131072
    s_mov_b32 s{R_K+3}, 0x20000
    """)
    if not earlybar: a("s_barrier")
    ws_srd()
    KB = 64
    for T in range(8):
        if T == 0: so = "0"
        else:
            a(f"s_mov_b32 s{T0}, {T*(16384 if int(cfg.get('lin', 1)) else 4096)}"); so = f"s{T0}"
        for j in range(4):
            r = KB + (T * 4 + j) * 4
            a(f"buffer_load_dwordx4 {vr(r,4)}, v16, {srd(R_K)}, {so} offen offset:{j*64}{NT}")
    stamp()
    common_regs()
    SAP, SOP, SML = 66, 67, 60
    a(f"""
    s_mov_b32 s{R_X}, s4
    s_mov_b32 s{R_X+1}, s5
    s_mov_b32 s{R_X+2}, 4096
    s_mov_b32 s{R_X+3}, 0x20000
    s_mov_b32 s{R_OUT}, s22
    s_mov_b32 s{R_OUT+1}, s23
    s_mov_b32 s{R_OUT+2}, 4096
    s_mov_b32 s{R_OUT+3}, 0x20000
    s_lshl_b32 s{SAP}, s{S_HKV}, 16
    s_lshl_b32 s{T1}, s{S_B}, 12
    s_add_u32 s{SAP}, s{SAP}, s{T1}
    s_lshl_b32 s{T1}, s{S_S}, 9
    s_add_u32 s{SAP}, s{SAP}, s{T1}
    s_add_u32 s{SAP}, s{SAP}, {AP_OFF}
    s_lshl_b32 s{SOP}, s{S_S}, 15
    s_lshl_b32 s{T1}, s{S_H}, 8
    s_add_u32 s{SOP}, s{SOP}, s{T1}
    s_add_u32 s{SOP}, s{SOP}, {OP_OFF}
    s_lshl_b32 s{SML}, s{S_HKV}, 11
    s_lshl_b32 s{T1}, s{S_B}, 9
    s_add_u32 s{SML}, s{SML}, s{T1}
    s_lshl_b32 s{T1}, s{S_S}, 6
    s_add_u32 s{SML}, s{SML}, s{T1}
    s_add_u32 s{SML}, s{SML}, {ML_OFF}
    s_lshl_b32 s{T1}, s{S_WAVE}, 7                ; cw*128
    v_lshlrev_b32 v11, 14, v2
    v_lshl_add_u32 v11, v3, 4, v11
    v_add_u32 v11, s{T1}, v11
    s_lshl_b32 s{T1}, s{S_WAVE}, 6
    v_lshlrev_b32 v13, 13, v2
    v_lshl_add_u32 v13, v3, 4, v13
    v_add_u32 v13, s{T1}, v13
    """)
    a(f"""
    v_mul_u32_u24 v41, {P_STR}, v4
    v_lshl_add_u32 v41, v3, 4, v41
    v_add_u32 v41, {L_P}, v41
    v_lshrrev_b32 v42, 2, v2
    v_lshl_add_u32 v42, v3, 2, v42                ; key_local
    v_and_b32 v43, 7, v42
    v_lshlrev_b32 v43, 1, v43
    v_lshrrev_b32 v44, 1, v4
    s_lshl_b32 s{T0}, s{S_WAVE}, 2
    v_add_u32 v44, s{T0}, v44
    v_xor_b32 v45, v44, v43
    v_lshlrev_b32 v45, 4, v45
    v_lshl_add_u32 v45, v42, 8, v45
    v_and_b32 v48, 1, v4
    v_lshl_add_u32 v20, v48, 3, v45
    v_add_u32 v20, {L_RING}, v20
    v_add_u32 v21, 65536, v20
    v_add_u32 v44, 2, v44
    v_xor_b32 v45, v44, v43
    v_lshlrev_b32 v45, 4, v45
    v_lshl_add_u32 v45, v42, 8, v45
    v_lshl_add_u32 v22, v48, 3, v45
    v_add_u32 v22, {L_RING}, v22
    v_add_u32 v23, 65536, v22
    v_lshlrev_b32 v40, 2, v2                      ; (l&15)*4
    s_lshl_b32 s{T0}, s{S_WAVE}, 6
    v_add_u32 v39, s{T0}, v40
    s_lshl_b32 s{T0}, s{S_WAVE}, 8
    s_lshr_b32 s{T1}, s{S_WAVE}, 1
    s_lshl_b32 s{T1}, s{T1}, 6
    s_and_b32 s{T2}, s{S_WAVE}, 1
    s_lshl_b32 s{T2}, s{T2}, 3
    s_add_u32 s{T1}, s{T1}, s{T2}
    s_cmp_eq_u32 s{T1}, s{T1}
    s_cselect_b32 s{T0}, s{T1 if int(cfg.get("lin", 1)) else T0}, s{T0}
    v_mul_u32_u24 v38, {P_STR}, v2
    v_lshl_add_u32 v38, v3, 4, v38
    v_add_u32 v38, s{T0}, v38
    s_waitcnt vmcnt(32)
    """)
    tag_setup()
    a(f"s_add_u32 s{T0}, s{S_EP}, 1\ns_nop 0\nv_mov_b32 v12, s{T0}\nv_not_b32 v17, v12")
    spin_ge(F_QR, 4)
    stamp()
    QF, SS = 48, 192
    for j in range(4):
        a(f"ds_read_b128 {vr(QF+4*j,4)}, v35 offset:{L_Q+j*64}")
    for TP in range(4):
        a(f"s_waitcnt vmcnt({24 - 8*TP})" + (" lgkmcnt(0)" if TP == 0 else ""))
        for j in range(4):
            for T in (2*TP, 2*TP+1):
                c = "0" if j == 0 else vr(SS+4*T,4)
                a(f"v_mfma_f32_16x16x32_bf16 {vr(SS+4*T,4)}, {vr(KB+(T*4+j)*4,4)}, {vr(QF+4*j,4)}, {c}")
        if TP > 0:
            for p in range(4*(TP-1), 4*TP):
                x0, x1 = SS + 2*p, SS + 2*p + 1
                a(f"""
                v_cvt_pk_bf16_f32 v42, v{x0}, v{x1}
                v_lshlrev_b32 v{x0}, 16, v42
                v_and_b32 v{x1}, 0xffff0000, v42
                v_mul_f32 v{x0}, 0x{SCALE:x}, v{x0}
                v_mul_f32 v{x1}, 0x{SCALE:x}, v{x1}
                v_cvt_pk_bf16_f32 v42, v{x0}, v{x1}
                v_lshlrev_b32 v{x0}, 16, v42
                v_and_b32 v{x1}, 0xffff0000, v42
                """)
    stamp()
    a("s_nop 7")
    for p in range(12, 16):
        x0, x1 = SS + 2*p, SS + 2*p + 1
        a(f"""
        v_cvt_pk_bf16_f32 v42, v{x0}, v{x1}
        v_lshlrev_b32 v{x0}, 16, v42
        v_and_b32 v{x1}, 0xffff0000, v42
        v_mul_f32 v{x0}, 0x{SCALE:x}, v{x0}
        v_mul_f32 v{x1}, 0x{SCALE:x}, v{x1}
        v_cvt_pk_bf16_f32 v42, v{x0}, v{x1}
        v_lshlrev_b32 v{x0}, 16, v42
        v_and_b32 v{x1}, 0xffff0000, v42
        """)
    a(f"v_max3_f32 v43, v{SS}, v{SS+1}, v{SS+2}\nv_max3_f32 v44, v{SS+3}, v{SS+4}, v{SS+5}")
    for p in range(6, 30, 4):
        a(f"v_max3_f32 v43, v43, v{SS+p}, v{SS+p+1}\nv_max3_f32 v44, v44, v{SS+p+2}, v{SS+p+3}")
    a(f"v_max3_f32 v43, v43, v{SS+30}, v{SS+31}\nv_max_f32 v43, v43, v44")
    xor16("v_max_f32", 43, 42)
    xor32("v_max_f32", 43, 42)
    a(f"""
    s_mov_b64 exec, s[{M_16}:{M_16+1}]
    ds_write_b32 v39, v43 offset:{L_WM}
    s_mov_b64 exec, -1
    """)
    barrier(F_CB)
    for w in range(4):
        a(f"ds_read_b32 v{48+w}, v40 offset:{L_WM+w*64}")
    a(f"""
    s_mov_b32 s{T1}, 0x{LOG2E:x}
    s_waitcnt lgkmcnt(0)
    v_max3_f32 v46, v48, v49, v50
    v_max_f32 v46, v46, v51
    v_mul_f32 v47, s{T1}, v46
    """)
    for p in range(32):
        a(f"v_fma_f32 v{SS+p}, v{SS+p}, s{T1}, -v47")
    for p in range(32):
        a(f"v_exp_f32 v{SS+p}, v{SS+p}")
    PP = 224
    a(f"v_cvt_pk_bf16_f32 v{PP}, v{SS}, v{SS+1}")
    for p in range(1, 16):
        a(f"v_cvt_pk_bf16_f32 v{PP+p}, v{SS+2*p}, v{SS+2*p+1}")
    a(f"s_mov_b64 exec, s[{M_H4}:{M_H4+1}]")
    if int(cfg.get("lin", 1)):
        for i in range(8):
            a(f"ds_write_b64 v38, {vr(PP+2*i,2)} offset:{L_P+i*128}")
    else:
      for st in range(4):
        a(f"ds_write_b128 v38, {vr(PP+4*st,4)} offset:{L_P+st*64}")
    a("s_mov_b64 exec, -1")
    a(f"v_add_f32 v43, v{SS}, v{SS+1}\nv_add_f32 v42, v{SS+2}, v{SS+3}")
    for p in range(4, 32, 2):
        a(f"v_add_f32 v43, v43, v{SS+p}\nv_add_f32 v42, v42, v{SS+p+1}")
    a("v_add_f32 v43, v43, v42")
    xor16("v_add_f32", 43, 42)
    xor32("v_add_f32", 43, 42)
    a(f"""
    s_mov_b64 exec, s[{M_16}:{M_16+1}]
    ds_write_b32 v39, v43 offset:{L_WL}
    s_mov_b64 exec, -1
    """)
    barrier(F_CB)
    stamp()
    for w in range(4):
        a(f"ds_read_b32 v{48+w}, v40 offset:{L_WL+w*64}")
    a(f"""
    s_waitcnt lgkmcnt(0)
    v_add_f32 v47, v48, v49
    v_add_f32 v48, v50, v51
    v_add_f32 v47, v47, v48
    v_mov_b32 v28, v46
    v_mov_b32 v29, v47
    v_mov_b32 v30, v12
    v_mov_b32 v31, v17
    """)
    ACC = 184
    firstpv = [True]
    def pv(st):
        wait_piece(f"V{st}")
        for q in range(4):
            kb = 4 * st + q
            off = (kb % 8) * 8192
            b0, b1 = (20, 22) if kb < 8 else (21, 23)
            r = 64 + 12 * q
            a(f"ds_read_b128 {vr(r,4)}, v41 offset:{kb*64}")
            a(f"ds_read_b64_tr_b16 {vr(r+4,2)}, v{b0} offset:{off}")
            a(f"ds_read_b64_tr_b16 {vr(r+6,2)}, v{b0} offset:{off+4096}")
            a(f"ds_read_b64_tr_b16 {vr(r+8,2)}, v{b1} offset:{off}")
            a(f"ds_read_b64_tr_b16 {vr(r+10,2)}, v{b1} offset:{off+4096}")
        for q in range(4):
            r = 64 + 12 * q
            a(f"s_waitcnt lgkmcnt({15 - 5 * q})")
            for dt in range(2):
                c = "0" if firstpv[0] else vr(ACC+4*dt,4)
                a(f"v_mfma_f32_16x16x32_bf16 {vr(ACC+4*dt,4)}, {vr(r+4+4*dt,4)}, {vr(r,4)}, {c}")
            firstpv[0] = False
    pv(0)
    flag_add(F_P0)
    pv(1); pv(2)
    stamp()
    AG, MG, WOF, DN2 = 128, 144, 152, 168
    a(f"""
    s_lshl_b32 s{T4}, s{S_H}, 14
    s_lshl_b32 s{T1}, s{S_WAVE}, 12
    s_add_u32 s{T4}, s{T4}, s{T1}
    s_add_u32 s{T4}, s{T4}, {AP_OFF}
    s_lshl_b32 s{T5}, s{S_HKV}, 11
    s_lshl_b32 s{T2}, s{S_WAVE}, 9
    s_add_u32 s{T5}, s{T5}, s{T2}
    s_lshl_b32 s{T2}, s{S_B}, 4
    s_add_u32 s{T5}, s{T5}, s{T2}
    s_add_u32 s{T5}, s{T5}, {ML_OFF}
    v_lshrrev_b32 v33, 5, v1
    v_lshlrev_b32 v33, 6, v33
    s_lshl_b32 s{T0}, s{S_WAVE}, 8
    v_lshlrev_b32 v47, 2, v4
    v_add_u32 v47, v47, v3
    v_lshlrev_b32 v47, 4, v47
    v_add_u32 v47, s{T0}, v47
    """)
    a(f"""
    v_mov_b32 v24, v47
    s_lshl_b32 s{T2}, s{S_B}, 10
    s_lshl_b32 s{T3}, s{S_S}, 7
    s_add_u32 s{T2}, s{T2}, s{T3}
    s_lshl_b32 s{T3}, s{S_WAVE}, 5
    s_add_u32 s{T2}, s{T2}, s{T3}
    v_lshlrev_b32 v25, 3, v4
    buffer_load_dwordx2 v[26:27], v25, {srd(R_X)}, s{T2} offen
    """)
    pv(3)
    a("s_nop 7")
    tag(range(ACC, ACC+8))
    a(f"""
    s_mov_b64 exec, s[{M_H4}:{M_H4+1}]
    buffer_store_dwordx4 {vr(ACC,4)}, v11, {srd(R_WS)}, s{SAP} offen sc1
    buffer_store_dwordx4 {vr(ACC+4,4)}, v11, {srd(R_WS)}, s{SAP} offen offset:64 sc1
    s_mov_b64 exec, -1
    s_cmp_lg_u32 s{S_WAVE}, 0
    s_cbranch_scc1 L_mlst_done
    s_mov_b64 exec, 15
    buffer_store_dwordx4 v[28:31], v5, {srd(R_WS)}, s{SML} offen sc1
    s_mov_b64 exec, -1
    """)
    a.label("L_mlst_done")
    stamp()
    AGR, MS = 128, [(144,), (152,)]
    light = int(cfg.get("light", 1))
    MGS = [192, 208]
    def ml_loads(i=0):
        for m in range(4):
            a(f"buffer_load_dwordx4 {vr(MGS[i]+4*m,4)}, v33, {srd(R_WS)}, s{T5} offen offset:{m*128} sc1")
    def ap_loads(i=0):
        for m in range(4):
            a(f"buffer_load_dwordx4 {vr(AGR+4*m,4)}, v5, {srd(R_WS)}, s{T4} offen offset:{m*1024} sc1")
    ml_loads(0)
    def between1():
        spin_ge(F_DR, 4)
        a(f"ds_read_b128 {vr(DN2,4)}, v24 offset:{L_DNP}")
        wait_piece("WO")
        for kk in range(4):
            a(f"ds_read_b64_tr_b16 {vr(WOF+4*kk,2)}, v34 offset:{kk*4096}")
            a(f"ds_read_b64_tr_b16 {vr(WOF+4*kk+2,2)}, v34 offset:{kk*4096+512}")
    def consume_ml(i):
        ap_loads()
        mg = MGS[i]
        ms = [mg + 4*m for m in range(4)]
        ls = [mg + 4*m + 1 for m in range(4)]
        a(f"""
        v_max3_f32 v36, v{ms[0]}, v{ms[1]}, v{ms[2]}
        v_max_f32 v36, v36, v{ms[3]}
        """)
        xor32("v_max_f32", 36, 37)
        for m in range(4):
            a(f"v_sub_f32 v{49+m}, v{ms[m]}, v36")
        for m in range(4):
            a(f"v_mul_f32 v{49+m}, s{T2}, v{49+m}")
        for m in range(4):
            a(f"v_exp_f32 v{49+m}, v{49+m}")
        a("s_nop 0")
        a(f"v_mul_f32 v48, v49, v{ls[0]}")
        for m in range(1, 4):
            a(f"v_fmac_f32 v48, v{49+m}, v{ls[m]}")
    a(f"s_mov_b32 s{T2}, 0x{LOG2E:x}")
    NS1 = int(cfg.get("ns1", 2))
    poll_stag("ml", [list(range(g, g+16)) for g in MGS[:NS1]], ml_loads, 4, 36, int(cfg.get("gap1", 3)), consume_ml, None, 0)
    between1()
    xor32("v_add_f32", 48, 37)
    a("v_rcp_f32 v48, v48\ns_nop 0")
    for m in range(4):
        a(f"v_mul_f32 v{49+m}, v{49+m}, v48")
    poll("ap", list(range(AGR, AGR+16)), ap_loads, 36, "s_waitcnt vmcnt(0)")
    stamp()
    for e in range(4):
        a(f"v_mul_f32 v{44+e}, v49, v{AGR+e}")
    for m in range(1, 4):
        for e in range(4):
            a(f"v_fmac_f32 v{44+e}, v{49+m}, v{AGR+4*m+e}")
    xorN(32, "v_add_f32", [44,45,46,47], [36,37,38,39])
    a(f"""
    v_cvt_pk_bf16_f32 v42, v44, v45
    v_cvt_pk_bf16_f32 v43, v46, v47
    s_mul_i32 s{T2}, s{S_WAVE}, {Q_STR}
    v_lshlrev_b32 v41, 3, v1
    v_add_u32 v41, s{T2}, v41
    s_mov_b32 exec_lo, -1
    s_mov_b32 exec_hi, 0
    ds_write_b64 v41, v[42:43] offset:{L_OB}
    s_mov_b64 exec, -1
    """)
    barrier(F_CB)
    OF = 172
    for kk in range(4):
        a(f"ds_read_b128 {vr(OF+4*kk,4)}, v35 offset:{L_OB+kk*64}")
    for kk in range(4):
        a(f"s_waitcnt lgkmcnt({3-kk})")
        a(f"v_mfma_f32_16x16x32_bf16 {vr(DN2,4)}, {vr(WOF+4*kk,4)}, {vr(OF+4*kk,4)}, {vr(DN2,4)}")
    a("s_nop 7")
    tag(range(DN2, DN2+4))
    a(f"""
    s_mov_b64 exec, s[{M_H4}:{M_H4+1}]
    buffer_store_dwordx4 {vr(DN2,4)}, v13, {srd(R_WS)}, s{SOP} offen sc1
    s_mov_b64 exec, -1
    """)
    stamp()
    a(f"""
    s_cmp_lg_u32 s{S_HKV}, 0
    s_cbranch_scc1 L_end
    s_lshl_b32 s{T0}, s{S_S}, 2
    s_add_u32 s{T0}, s{T0}, s{S_B}
    s_lshl_b32 s{T0}, s{T0}, 13
    s_lshl_b32 s{T1}, s{S_WAVE}, 6
    s_add_u32 s{T0}, s{T0}, s{T1}
    s_add_u32 s{T0}, s{T0}, {OP_OFF}
    s_add_u32 s{T1}, s{T0}, 4096                  ; heads 16..31
    s_lshl_b32 s{T2}, s{S_B}, 10
    s_lshl_b32 s{T3}, s{S_S}, 7
    s_add_u32 s{T2}, s{T2}, s{T3}
    s_lshl_b32 s{T3}, s{S_WAVE}, 5
    s_add_u32 s{T2}, s{T2}, s{T3}
    v_lshrrev_b32 v32, 2, v1
    v_lshlrev_b32 v32, 8, v32
    v_lshl_add_u32 v32, v4, 4, v32                ; (l>>2)*256 + (l&3)*16
    v_lshlrev_b32 v33, 3, v4                      ; (l&3)*8
    """)
    FGS = [224, 232, 240]
    NS2 = int(cfg.get("ns2", 2))
    def fin_loads(i=0):
        a(f"buffer_load_dwordx4 {vr(FGS[i],4)}, v32, {srd(R_WS)}, s{T0} offen sc1")
        a(f"buffer_load_dwordx4 {vr(FGS[i]+4,4)}, v32, {srd(R_WS)}, s{T1} offen sc1")
    fin_loads(0)
    FG = 44
    def consume2(i):
        f = FGS[i]
        for e in range(4):
            a(f"v_add_f32 v{FG+e}, v{f+e}, v{f+4+e}")
    poll_stag("fin", [list(range(f, f+8)) for f in FGS[:NS2]], fin_loads, 2, 38, int(cfg.get("gap2", 3)), consume2)
    stamp()
    for ctl in ("row_ror:4", "row_ror:8"):
        a("s_nop 1")
        for e in range(4):
            a(f"v_add_f32_dpp v{FG+e}, v{FG+e}, v{FG+e} {ctl} row_mask:0xf bank_mask:0xf")
    a("s_nop 0")
    xorN(16, "v_add_f32", [FG, FG+1, FG+2, FG+3], [38,39,40,41])
    xorN(32, "v_add_f32", [FG, FG+1, FG+2, FG+3], [38,39,40,41])
    a(f"""
    v_lshlrev_b32 v40, 16, v26
    v_and_b32 v41, 0xffff0000, v26
    v_lshlrev_b32 v42, 16, v27
    v_and_b32 v43, 0xffff0000, v27
    v_add_f32 v40, v40, v{FG}
    v_add_f32 v41, v41, v{FG+1}
    v_add_f32 v42, v42, v{FG+2}
    v_add_f32 v43, v43, v{FG+3}
    v_cvt_pk_bf16_f32 v40, v40, v41
    v_cvt_pk_bf16_f32 v41, v42, v43
    s_mov_b64 exec, 15
    buffer_store_dwordx2 v[40:41], v33, {srd(R_OUT)}, s{T2} offen
    s_mov_b64 exec, -1
    s_cmp_lg_u32 s{S_WAVE}, 0
    s_cbranch_scc1 L_end
    s_cmp_lg_u32 s2, 0
    s_cbranch_scc1 L_end
    s_add_u32 s{S_EP}, s{S_EP}, 1
    v_mov_b32 v40, s{S_EP}
    v_mov_b32 v41, 0
    s_mov_b32 s{T1}, {EP_OFF}
    s_mov_b64 exec, 1
    buffer_store_dword v40, v41, {srd(R_WS)}, s{T1} offen sc1
    s_mov_b64 exec, -1
    """)
    a.label("L_end")
    if stamps:
        a(f"s_cmp_lg_u32 s{S_WAVE}, 0\ns_cbranch_scc1 L_exit")
        a(f"s_memrealtime s[{STAMP_REGS[NSTAMP-1]}:{STAMP_REGS[NSTAMP-1]+1}]")
        a(f"s_mov_b32 s{STAMP_REGS[10]}, s{S_CNT}\ns_mov_b32 s{STAMP_REGS[10]+1}, 0")
        a(f"""
        s_waitcnt lgkmcnt(0)
        s_add_u32 s{R_WS}, s{R_WS}, {STAMP_OFF}
        s_addc_u32 s{R_WS+1}, s{R_WS+1}, 0
        s_lshl_b32 s{T0}, s2, 1
        s_add_u32 s{T0}, s{T0}, s{S_ROLE}
        s_mul_i32 s{T0}, s{T0}, {NSTAMP*8}
        v_mov_b32 v2, s{T0}
        s_mov_b64 exec, 1
        """)
        for i in range(NSTAMP):
            r = STAMP_REGS[i]
            a(f"v_mov_b32 v4, s{r}\nv_mov_b32 v5, s{r+1}\nbuffer_store_dwordx2 v[4:5], v2, {srd(R_WS)}, 0 offen offset:{i*8}\ns_nop 1")
        print("stamps: X used", x_stamps, "Q used", nstamp[0])
    a.label("L_exit")
    a("s_endpgm")
    launch = f"grid=(256,1,1) block=(512,1,1) lds={L_END}"
    return file_text([launch], a.text(), [descriptor(kn, 256, 102)])

if __name__ == "__main__":
    out = sys.argv[1] if len(sys.argv) > 1 else "cdna_kernels/" + NAME + ".s"
    cfg = dict(kv.split("=") for kv in sys.argv[2:] if "=" in kv)
    open(out, "w").write(gen(stamps=("stamps" in sys.argv), cfg=cfg))
    print("wrote", out, "LDS", L_END)
```

```python
import sys
from asmlib import *

QP_OFF = 0x000000
GU_OFF = 0x040000
AP_OFF = 0x080000
ML_OFF = 0x100000
OP_OFF = 0x110000
OPA_OFF = 0x150000
EP_OFF = 0x1F0000
WS_SIZE = 0x200000
STAMP_OFF = 268435456 - (1 << 20)
import os
TAGMASK = int(os.environ.get('TAGMASK', '0x0F'), 0)

P_STR = 1040
Q_STR = 272
H_STR = 144
L_FL = 0
L_P = 64
L_XQ = L_P + 4 * P_STR
L_XG = L_XQ + 4 * Q_STR
L_Q = L_XG + 4 * Q_STR
L_OB = L_Q + 4 * Q_STR
L_H = L_OB + 4 * Q_STR
L_WM = L_H + 4 * H_STR
L_WL = L_WM + 256
L_DNP = L_WL + 256
L_SMALL_END = L_DNP + 1024
L_T0 = 11264
assert L_SMALL_END <= L_T0
L_RING = L_T0 + 16384
L_END = L_RING + 131072
L_GUT = L_RING + 98304
L_DNT = L_GUT + 16384
F_LPROG, F_CB, F_XB, F_QR, F_DR, F_P0 = 0, 16, 20, 24, 28, 32

LOG2E = 0x3FB8AA3B
SCALE = 0x3DB504F3
POLL_LIMIT = 20000
SPIN_LIMIT = 200000

S_WAVE, S_B, S_HKV, S_S, S_H = 28, 29, 30, 31, 32
T0, T1, T2, T3, T4, T5, T6 = 33, 34, 35, 36, 37, 38, 39
R_X, R_K, R_V, R_WQ, R_GU, R_DN, R_WO, R_WS, R_OUT = 40, 44, 48, 52, 56, 60, 64, 68, 76
S_EP = 72
S_PROG = 73
S_ROLE = 74
M_H4 = 80
M_16 = 82
M_T = 84
S_CNT = 86
S_SP = 87
STAMP_REGS = [90, 92, 94, 96, 98, 100, 4, 6, 8, 10, 12, 14]
NSTAMP = 12

def srd(r): return f"s[{r}:{r+3}]"
def vr(a, n): return f"v[{a}:{a+n-1}]"

def gen(stamps=False, nt=True, cfg=None):
    cfg = cfg or {}
    a = Asm()
    kn = NAME + "_kernel"
    NT = " nt" if nt else ""
    D = int(cfg.get("D", 12))
    nstamp = [0]; uid = [0]
    dnlate = int(cfg.get("dnlate", 0))
    def lab(p):
        uid[0] += 1
        return f"L_{p}_{uid[0]}"
    def stamp():
        if stamps:
            i = nstamp[0]; nstamp[0] += 1
            assert i < NSTAMP
            r = STAMP_REGS[i]
            a(f"s_memrealtime s[{r}:{r+1}]")
    def xor16(op, v, t):
        a(f"v_mov_b32 v{t}, v{v}\ns_nop 1\nv_permlane16_swap_b32 v{v}, v{t}\ns_nop 0\n{op} v{v}, v{v}, v{t}")
    def xor32(op, v, t):
        a(f"v_mov_b32 v{t}, v{v}\ns_nop 1\nv_permlane32_swap_b32 v{v}, v{t}\ns_nop 0\n{op} v{v}, v{v}, v{t}")
    def xorN(kind, op, regs, tmps):
        for v, t in zip(regs, tmps): a(f"v_mov_b32 v{t}, v{v}")
        a("s_nop 1")
        for v, t in zip(regs, tmps): a(f"v_permlane{kind}_swap_b32 v{v}, v{t}")
        a("s_nop 0")
        for v, t in zip(regs, tmps): a(f"{op} v{v}, v{v}, v{t}")
    def wave_sum(v, t):
        for ctl in ["quad_perm:[1,0,3,2]", "quad_perm:[2,3,0,1]", "row_half_mirror", "row_mirror"]:
            a(f"s_nop 1\nv_add_f32_dpp v{v}, v{v}, v{v} {ctl} row_mask:0xf bank_mask:0xf")
        a("s_nop 0")
        xor16("v_add_f32", v, t)
        xor32("v_add_f32", v, t)
    def rne(dst, src):
        a(f"v_cvt_pk_bf16_f32 v{dst}, v{src}, v{src}\nv_lshlrev_b32 v{dst}, 16, v{dst}")

    VF, VONE, VS = 14, 15, 252
    VTAG, VMSK = 6, 7
    VT = [6, 8, 13, 112]
    def spin_ge(off, val, four=False, keep=None):
        l0, l1 = lab("sp"), lab("spd")
        if keep is not None:
            a(f"s_cmp_ge_u32 s{keep}, {val}\ns_cbranch_scc1 {l1}")
        dst = keep if keep is not None else T6
        a(f"s_mov_b32 s{S_SP}, 0")
        a.label(l0)
        if four:
            a(f"ds_read_b128 {vr(VS,4)}, v{VF} offset:{off}\ns_waitcnt lgkmcnt(0)")
            a(f"v_min_u32 v{VS}, v{VS}, v{VS+1}\nv_min3_u32 v{VS}, v{VS}, v{VS+2}, v{VS+3}")
        else:
            a(f"ds_read_b32 v{VS}, v{VF} offset:{off}\ns_waitcnt lgkmcnt(0)")
        a(f"""
        s_nop 0
        v_readfirstlane_b32 s{dst}, v{VS}
        s_add_u32 s{S_SP}, s{S_SP}, 1
        s_cmp_ge_u32 s{dst}, {val}
        s_cbranch_scc1 {l1}
        s_cmp_ge_u32 s{S_SP}, {SPIN_LIMIT}
        s_cbranch_scc1 {l1}
        s_sleep 1
        s_branch {l0}
        """)
        a.label(l1)
    def flag_add(off):
        a(f"s_mov_b64 exec, 1\nds_add_u32 v{VF}, v{VONE} offset:{off}\ns_mov_b64 exec, -1")
    nb = {F_CB: 0, F_XB: 0}
    def b_arrive(f):
        nb[f] += 1
        flag_add(f)
        return nb[f]
    def b_wait(f, n):
        spin_ge(f, 4 * n)
    def barrier(f):
        b_wait(f, b_arrive(f))
    PIECES = ["V0", "V1", "V2", "V3", "WO"]
    pidx = {p: i + 1 for i, p in enumerate(PIECES)}
    def wait_piece(p):
        spin_ge(F_LPROG, pidx[p], four=True, keep=S_PROG)
    def tag(regs):
        for i, r in enumerate(regs): a(f"v_bfi_b32 v{r}, v{VMSK}, v{VT[i % 4]}, v{r}")
    def poll(name, regs, loads, acc, first_wait, backoff=0):
        a(f"s_mov_b32 s{S_CNT}, 0\n{first_wait}")
        a.label(f"L_{name}_chk")
        check(regs, acc)
        a(f"""
        s_cbranch_vccz L_{name}_ok
        s_add_u32 s{S_CNT}, s{S_CNT}, 1
        s_cmp_ge_u32 s{S_CNT}, {POLL_LIMIT}
        s_cbranch_scc1 L_{name}_ok
        """)
        if backoff: a(f"s_sleep {backoff}")
        loads()
        a(f"s_waitcnt vmcnt(0)\ns_branch L_{name}_chk")
        a.label(f"L_{name}_ok")
    def check(regs, acc, per=4):
        for i, r in enumerate(regs):
            a(f"v_xor_b32 v{r}, v{r}, v{VT[i % per]}")
        rs = list(regs)
        a(f"v_or3_b32 v{acc}, v{rs[0]}, v{rs[1]}, v{rs[2]}")
        k = 3
        while k + 1 < len(rs):
            a(f"v_or3_b32 v{acc}, v{acc}, v{rs[k]}, v{rs[k+1]}"); k += 2
        if k < len(rs):
            a(f"v_or_b32 v{acc}, v{acc}, v{rs[k]}")
        a(f"v_and_b32 v{acc}, v{acc}, v{VMSK}\nv_cmp_ne_u32 vcc, 0, v{acc}")
    def check_ml(regs, acc):
        for k in range(0, len(regs), 4):
            if k == 0:
                a(f"v_xor_b32 v{acc}, v{regs[2]}, v12")
            else:
                a(f"v_bitop3_b32 v{acc}, v{acc}, v{regs[k+2]}, v12 bitop3:0xf6")
            a(f"v_bitop3_b32 v{acc}, v{acc}, v{regs[k+3]}, v17 bitop3:0xf6")
        a(f"v_cmp_ne_u32 vcc, 0, v{acc}")
    def poll_stag(name, sets, loads, nloads, acc, gap, consume, between=None, per=4):
        n = len(sets)
        for i in range(1, n):
            if gap: a(f"s_sleep {gap}")
            loads(i)
        if between: between()
        a(f"s_mov_b32 s{S_CNT}, 0")
        a.label(f"L_{name}_loop")
        for i in range(n):
            a(f"s_waitcnt vmcnt({(n-1)*nloads})")
            (check_ml(sets[i], acc) if per == 0 else check(sets[i], acc, per))
            a(f"s_cbranch_vccz L_{name}_ok{i}")
            loads(i)
        a(f"""
        s_add_u32 s{S_CNT}, s{S_CNT}, 1
        s_cmp_lt_u32 s{S_CNT}, {POLL_LIMIT}
        s_cbranch_scc1 L_{name}_loop
        s_waitcnt vmcnt(0)
        """)
        for i in range(n):
            a.label(f"L_{name}_ok{i}")
            consume(i)
            if i != n - 1: a(f"s_branch L_{name}_done")
        a.label(f"L_{name}_done")
    def tag_setup():
        a(f"""
        v_readfirstlane_b32 s{S_EP}, v{VTAG}
        v_add_u32 v{VTAG}, 1, v{VTAG}
        """)
        for e in (3, 2, 1):
            a(f"v_add_u32 v{VT[e]}, {e * 0x35}, v{VTAG}\nv_and_b32 v{VT[e]}, {TAGMASK}, v{VT[e]}")
        a(f"v_and_b32 v{VTAG}, {TAGMASK}, v{VTAG}")
    def ws_srd():
        a(f"""
        s_mov_b32 s{R_WS}, s26
        s_mov_b32 s{R_WS+1}, s27
        s_mov_b32 s{R_WS+2}, {WS_SIZE}
        s_mov_b32 s{R_WS+3}, 0x20000
        s_mov_b32 s{T1}, {EP_OFF}
        v_mov_b32 v33, 0
        buffer_load_dword v{VTAG}, v33, {srd(R_WS)}, s{T1} offen sc1
        """)
    def common_regs():
        a(f"""
        s_mov_b32 s{M_H4}, 0x000F000F
        s_mov_b32 s{M_H4+1}, 0x000F000F
        s_mov_b32 s{M_16}, 0xFFFF
        s_mov_b32 s{M_16+1}, 0
        v_mov_b32 v{VMSK}, {TAGMASK}
        v_lshrrev_b32 v32, 2, v2
        v_lshl_add_u32 v32, v3, 3, v32
        v_lshlrev_b32 v32, 7, v32
        v_lshl_add_u32 v34, v4, 3, v32
        s_lshl_b32 s{T3}, s{S_WAVE}, 5
        s_add_u32 s{T3}, s{T3}, {L_T0}
        v_add_u32 v34, s{T3}, v34                     ; T0 + (8g+r)*128 + t*32 + c4*8
        v_mul_u32_u24 v35, {Q_STR}, v4
        v_lshl_add_u32 v35, v3, 4, v35                ; (l&3)*272 + g*16
        v_lshlrev_b32 v5, 4, v1                       ; l*16
        """)

    kernel_begin(a, kn)
    a(f"""
    s_cmp_ge_u32 s2, 256
    s_cbranch_scc1 L_exit
    s_load_dwordx16 s[4:19], s[0:1], 0
    s_load_dwordx8 s[20:27], s[0:1], 64
    """)
    stamp()
    for _ in range(int(cfg.get("diag_sleep", 0))): a("s_sleep 100")
    a(f"""
    v_and_b32 v1, 63, v0
    v_lshrrev_b32 v32, 6, v0
    v_and_b32 v2, 15, v1
    v_readfirstlane_b32 s{S_WAVE}, v32
    v_lshrrev_b32 v3, 4, v1
    v_and_b32 v4, 3, v1
    v_mov_b32 v{VF}, {L_FL}
    v_mov_b32 v{VONE}, 1
    s_lshr_b32 s{S_B}, s2, 6
    s_bfe_u32 s{S_HKV}, s2, 0x30003
    s_and_b32 s{S_S}, s2, 7
    s_lshl_b32 s{S_H}, s{S_HKV}, 2
    s_add_u32 s{S_H}, s{S_H}, s{S_B}
    s_mov_b32 s{S_PROG}, 0
    s_cmp_lg_u32 s{S_WAVE}, 0
    s_cbranch_scc1 L_noinit
    v_lshlrev_b32 v32, 2, v1
    v_mov_b32 v33, 0
    s_mov_b64 exec, 0xFFFF
    ds_write_b32 v32, v33 offset:{L_FL}
    s_mov_b64 exec, -1
    s_waitcnt lgkmcnt(0)
    """)
    a.label("L_noinit")
    earlybar = int(cfg.get("earlybar", 0))
    if earlybar: a("s_barrier")
    a(f"""
    s_lshr_b32 s{S_ROLE}, s{S_WAVE}, 2
    s_and_b32 s{S_WAVE}, s{S_WAVE}, 3
    s_cmp_eq_u32 s{S_ROLE}, 0
    s_cbranch_scc1 L_qwave
    """)
    start_stamp = nstamp[0]
    a(f"""
    s_setprio 3
    v_lshlrev_b32 v5, 4, v1
    s_lshl_b32 s{T0}, s{S_WAVE}, 10
    v_lshrrev_b32 v36, 3, v1
    v_and_b32 v37, 7, v1
    v_lshlrev_b32 v37, 4, v37
    v_lshl_add_u32 v22, v36, 13, v37
    s_lshl_b32 s{T2}, s{S_B}, 20
    s_lshl_b32 s{T1}, s{S_HKV}, 10
    s_add_u32 s{T2}, s{T2}, s{T1}
    s_lshl_b32 s{T1}, s{S_S}, 7
    s_add_u32 s{T4}, s{T2}, s{T1}
    s_waitcnt lgkmcnt(0)
    s_mov_b32 s{R_X}, s4
    s_mov_b32 s{R_X+1}, s5
    s_mov_b32 s{R_X+2}, 4096
    s_mov_b32 s{R_X+3}, 0x20000
    buffer_load_dwordx4 v[24:27], v5, {srd(R_X)}, s{T0} offen
    s_add_u32 s{R_WQ}, s10, s{T4}
    s_addc_u32 s{R_WQ+1}, s11, 0
    s_mov_b32 s{R_WQ+2}, {127*8192+128}
    s_mov_b32 s{R_WQ+3}, 0x20000
    """)
    ws_srd()
    def tile_dma(p):
        n_per = 2 if p == "DN" else 4
        stride = {"WQ": 8192, "GU": 3584, "WO": 1024, "DN": 1024}[p]
        vo = {"WQ": 22, "GU": 23, "WO": 21, "DN": 21}[p]
        R = {"WQ": R_WQ, "GU": R_GU, "WO": R_WO, "DN": R_DN}[p]
        LB = {"WQ": L_T0, "GU": L_GUT, "WO": L_T0, "DN": (L_RING if dnlate else L_DNT)}[p]
        out = []
        for q in range(n_per):
            def f(q=q):
                if q == 0:
                    a(f"""
                    s_mul_i32 s{T1}, s{S_WAVE}, {n_per*8*stride}
                    s_mul_i32 s{T0}, s{S_WAVE}, {n_per*1024}
                    s_add_u32 s{T0}, s{T0}, {LB}
                    """)
                else:
                    a(f"s_add_u32 s{T1}, s{T1}, {8*stride}\ns_add_u32 s{T0}, s{T0}, 1024")
                a(f"""
                s_mov_b32 m0, s{T0}
                s_nop 0
                buffer_load_dwordx4 v{vo}, {srd(R)}, s{T1} offen{NT} lds
                """)
            out.append(f)
        return out
    for f in tile_dma("WQ"): f()
    if not earlybar: a("s_barrier")
    a(f"""
    v_mul_u32_u24 v23, 3584, v36
    v_add_u32 v23, v23, v37
    v_lshl_add_u32 v21, v36, 10, v37
    s_and_b32 s{T0}, s{S_S}, 1
    s_cmp_eq_u32 s{T0}, 0
    s_cselect_b32 s{T2}, s16, s18
    s_cselect_b32 s{T3}, s17, s19
    s_lshr_b32 s{T0}, s{S_S}, 1
    s_mul_i32 s{T0}, s{T0}, {128*3584}
    s_lshl_b32 s{T1}, s{S_H}, 7
    s_add_u32 s{T0}, s{T0}, s{T1}
    s_add_u32 s{R_GU}, s{T2}, s{T0}
    s_addc_u32 s{R_GU+1}, s{T3}, 0
    s_cmp_lt_u32 s{S_H}, 28
    s_cselect_b32 s{R_GU+2}, {127*3584+128}, 0
    s_mov_b32 s{R_GU+3}, 0x20000
    """)
    for f in tile_dma("GU"): f()
    a(f"""
    s_lshl_b32 s{T0}, s{S_H}, 16
    s_lshl_b32 s{T1}, s{S_S}, 7
    s_add_u32 s{T0}, s{T0}, s{T1}
    s_add_u32 s{R_DN}, s20, s{T0}
    s_addc_u32 s{R_DN+1}, s21, 0
    s_cmp_lt_u32 s{S_H}, 28
    s_cselect_b32 s{R_DN+2}, {63*1024+128}, 0
    s_mov_b32 s{R_DN+3}, 0x20000
    """)
    if not dnlate:
        for f in tile_dma("DN"): f()
    pret = int(cfg.get("pret", 0))
    if pret:
        a(f"""
        s_lshl_b32 s{T0}, s{S_B}, 16
        s_lshl_b32 s{T1}, s{S_HKV}, 11
        s_add_u32 s{T0}, s{T0}, s{T1}
        s_lshl_b32 s{T1}, s{S_S}, 8
        s_add_u32 s{T0}, s{T0}, s{T1}
        s_lshl_b32 s{T1}, s{S_H}, 13
        s_lshl_b32 s{T2}, s{S_S}, 10
        s_add_u32 s{T1}, s{T1}, s{T2}
        s_add_u32 s{T1}, s{T1}, {GU_OFF}
        s_lshl_b32 s{T2}, s{S_HKV}, 16
        s_lshl_b32 s{T3}, s{S_B}, 12
        s_add_u32 s{T2}, s{T2}, s{T3}
        s_lshl_b32 s{T3}, s{S_S}, 9
        s_add_u32 s{T2}, s{T2}, s{T3}
        s_add_u32 s{T2}, s{T2}, {AP_OFF}
        s_lshl_b32 s{T3}, s{S_S}, 15
        s_lshl_b32 s{T4}, s{S_H}, 8
        s_add_u32 s{T3}, s{T3}, s{T4}
        s_add_u32 s{T3}, s{T3}, {OP_OFF}
        s_lshl_b32 s{T4}, s{S_HKV}, 11
        s_lshl_b32 s{T5}, s{S_B}, 9
        s_add_u32 s{T4}, s{T4}, s{T5}
        s_lshl_b32 s{T5}, s{S_S}, 6
        s_add_u32 s{T4}, s{T4}, s{T5}
        s_add_u32 s{T4}, s{T4}, {ML_OFF}
        s_cmp_eq_u32 s{S_WAVE}, 0
        s_cbranch_scc1 L_pt0
        s_cmp_eq_u32 s{S_WAVE}, 3
        s_cbranch_scc1 L_pt3
        v_lshrrev_b32 v100, 5, v1
        v_and_b32 v101, 31, v1
        v_lshlrev_b32 v100, 14, v100
        v_lshl_add_u32 v100, v101, 4, v100
        s_sub_u32 s{T5}, s{S_WAVE}, 1
        s_lshl_b32 s{T5}, s{T5}, 15
        s_add_u32 s{T2}, s{T2}, s{T5}
        buffer_load_dwordx4 v[104:107], v100, {srd(R_WS)}, s{T2} offen sc1
        buffer_load_dword v108, v100, {srd(R_WS)}, s{T2} offen sc1
        s_branch L_ptd
        """)
        a.label("L_pt0")
        a(f"""
        v_lshlrev_b32 v100, 14, v3
        v_lshl_add_u32 v100, v2, 4, v100
        buffer_load_dwordx4 v[104:107], v100, {srd(R_WS)}, s{T0} offen sc1
        buffer_load_dwordx4 v[108:111], v5, {srd(R_WS)}, s{T1} offen sc1
        s_branch L_ptd
        """)
        a.label("L_pt3")
        a(f"""
        v_lshlrev_b32 v100, 13, v3
        v_lshl_add_u32 v100, v2, 4, v100
        buffer_load_dwordx4 v[104:107], v100, {srd(R_WS)}, s{T3} offen sc1
        v_and_b32 v101, 3, v1
        v_lshlrev_b32 v101, 4, v101
        buffer_load_dwordx4 v[108:111], v101, {srd(R_WS)}, s{T4} offen sc1
        """)
        a.label("L_ptd")
    common_regs()
    npf = int(cfg.get("codepf", 0))
    a(f"""
    s_lshl_b32 s{T0}, s2, 17
    s_add_u32 s{R_V}, s8, s{T0}
    s_addc_u32 s{R_V+1}, s9, 0
    s_mov_b32 s{R_V+2}, 131072
    s_mov_b32 s{R_V+3}, 0x20000
    s_lshl_b32 s{T0}, s{S_H}, 17
    s_lshl_b32 s{T1}, s{S_S}, 7
    s_add_u32 s{T0}, s{T0}, s{T1}
    s_add_u32 s{R_WO}, s12, s{T0}
    s_addc_u32 s{R_WO+1}, s13, 0
    s_mov_b32 s{R_WO+2}, {127*1024+128}
    s_mov_b32 s{R_WO+3}, 0x20000
    """)
    for v in range(2):
        a(f"v_lshlrev_b32 v36, 1, v3\nv_add_u32 v36, {8*v}, v36\nv_xor_b32 v{16+v}, v2, v36\nv_lshlrev_b32 v{16+v}, 4, v{16+v}\nv_lshl_add_u32 v{16+v}, v3, 8, v{16+v}")
    if int(cfg.get("lin", 1)):
        a(f"""
        s_and_b32 s{T0}, s{S_WAVE}, 1
        s_cmp_eq_u32 s{T0}, 1
        s_cselect_b64 vcc, -1, 0
        v_cndmask_b32 v16, v16, v17, vcc
        """)
    SQP, SGU = 78, 79
    a(f"""
    s_lshl_b32 s{T4}, s{S_WAVE}, 2
    s_add_u32 s{T4}, s{T4}, {L_FL + F_LPROG}
    v_mov_b32 v18, s{T4}
    s_lshl_b32 s{SQP}, s{S_B}, 16
    s_lshl_b32 s{T1}, s{S_HKV}, 11
    s_add_u32 s{SQP}, s{SQP}, s{T1}
    s_lshl_b32 s{T1}, s{S_S}, 8
    s_add_u32 s{SQP}, s{SQP}, s{T1}
    s_add_u32 s{SQP}, s{SQP}, {QP_OFF}
    s_lshl_b32 s{SGU}, s{S_H}, 13
    s_lshl_b32 s{T1}, s{S_S}, 10
    s_add_u32 s{SGU}, s{SGU}, s{T1}
    s_add_u32 s{SGU}, s{SGU}, {GU_OFF}
    s_lshl_b32 s{T1}, s{S_WAVE}, 6                ; t*64
    v_lshlrev_b32 v11, 14, v2
    v_lshl_add_u32 v11, v3, 4, v11
    v_add_u32 v11, s{T1}, v11
    v_lshlrev_b32 v12, 8, v2
    v_lshl_add_u32 v12, v3, 4, v12
    v_add_u32 v12, s{T1}, v12
    v_add_u32 v19, {L_GUT - L_T0}, v34
    v_add_u32 v20, {(L_RING if dnlate else L_DNT) - L_T0}, v34
    s_waitcnt vmcnt({(8 if dnlate else 10) + (2 if pret else 0)})
    """)
    stamp()
    if npf:
        a(f"""
        s_cmp_ge_u32 s2, {npf}
        s_cbranch_scc1 L_nopf
        s_getpc_b64 s[{M_T}:{M_T+1}]
        """)
        a.label("L_pcref")
        a(f"""
        s_lshl_b32 s{T0}, s{S_WAVE}, 12
        v_add_u32 v100, s{T0}, v5
        s_mov_b32 s{T1}, L_exit-L_pcref-16
        """)
        for k in range(4):
            a(f"""
            v_add_u32 v101, {k*1024}, v100
            v_cmp_gt_u32 vcc, s{T1}, v101
            s_and_saveexec_b64 s[88:89], vcc
            s_cbranch_execz L_pfs{k}
            global_load_dwordx4 v[104:107], v101, s[{M_T}:{M_T+1}]
            """)
            a.label(f"L_pfs{k}")
            a("s_mov_b64 exec, -1")
        a.label("L_nopf")
    tag_setup()
    for e in range(4):
        a(f"v_lshlrev_b32 v{40+2*e}, 16, v{24+e}\nv_and_b32 v{41+2*e}, 0xffff0000, v{24+e}")
    a(f"""
    v_add_f32 v32, v40, v41
    v_add_f32 v33, v42, v43
    v_add_f32 v36, v44, v45
    v_add_f32 v37, v46, v47
    v_add_f32 v32, v32, v33
    v_add_f32 v36, v36, v37
    v_add_f32 v32, v32, v36
    """)
    wave_sum(32, 33)
    a("v_mul_f32 v32, 0x3b000000, v32")
    for e in range(8):
        a(f"v_sub_f32 v{48+e}, v{40+e}, v32")
    a("v_mul_f32 v33, v48, v48\nv_mul_f32 v36, v49, v49")
    for e in range(2, 8, 2):
        a(f"v_fmac_f32 v33, v{48+e}, v{48+e}\nv_fmac_f32 v36, v{49+e}, v{49+e}")
    a("v_add_f32 v33, v33, v36")
    wave_sum(33, 36)
    a("v_mul_f32 v33, 0x3b000000, v33")
    rne(32, 32); rne(33, 33)
    a("v_add_f32 v33, 0x3727c5ac, v33")
    rne(33, 33)
    a("v_sqrt_f32 v33, v33")
    for e in range(8):
        a(f"v_sub_f32 v{48+e}, v{40+e}, v32")
    rne(33, 33)
    a("v_rcp_f32 v33, v33")
    for e in range(0, 8, 2):
        a(f"v_cvt_pk_bf16_f32 v36, v{48+e}, v{49+e}\nv_lshlrev_b32 v{48+e}, 16, v36\nv_and_b32 v{49+e}, 0xffff0000, v36")
    for e in range(8):
        a(f"v_mul_f32 v{48+e}, v{48+e}, v33")
    for e in range(4):
        a(f"v_cvt_pk_bf16_f32 v{44+e}, v{48+2*e}, v{49+2*e}")
    a(f"""
    s_mul_i32 s{T0}, s{S_WAVE}, {Q_STR}
    v_lshlrev_b32 v32, 4, v2
    v_add_u32 v32, s{T0}, v32
    v_cmp_eq_u32 vcc, s{S_B}, v3
    s_and_saveexec_b64 s[{M_T}:{M_T+1}], vcc
    ds_write_b128 v32, v[44:47] offset:{L_XQ}
    s_mov_b64 exec, -1
    s_lshr_b32 s{T1}, s{S_S}, 1
    v_cmp_eq_u32 vcc, s{T1}, v3
    s_and_saveexec_b64 s[{M_T}:{M_T+1}], vcc
    ds_write_b128 v32, v[44:47] offset:{L_XG}
    s_mov_b64 exec, -1
    s_waitcnt vmcnt({(4 if dnlate else 6) + (2 if pret else 0)})
    """)
    barrier(F_XB)
    stamp()
    WF, XF, DA = 48, 64, 80
    def p1(xoff, voff, sbase, areg):
        for kk in range(4):
            a(f"ds_read_b128 {vr(XF+4*kk,4)}, v35 offset:{xoff+kk*64}")
        for kk in range(4):
            a(f"ds_read_b64_tr_b16 {vr(WF+4*kk,2)}, v{areg} offset:{kk*4096}")
            a(f"ds_read_b64_tr_b16 {vr(WF+4*kk+2,2)}, v{areg} offset:{kk*4096+512}")
        for kk in range(4):
            a(f"s_waitcnt lgkmcnt({6-2*kk})")
            c = "0" if kk == 0 else vr(DA,4)
            a(f"v_mfma_f32_16x16x32_bf16 {vr(DA,4)}, {vr(WF+4*kk,4)}, {vr(XF+4*kk,4)}, {c}")
        a("s_nop 7")
        tag(range(DA, DA+4))
        a(f"""
        s_mov_b64 exec, s[{M_H4}:{M_H4+1}]
        buffer_store_dwordx4 {vr(DA,4)}, v{voff}, {srd(R_WS)}, s{sbase} offen sc1
        s_mov_b64 exec, -1
        """)
    p1(L_XQ, 11, SQP, 34)
    stamp()
    a(f"s_waitcnt vmcnt({1 + (2 if pret else 0)})")
    barrier(F_XB)
    p1(L_XG, 12, SGU, 19)
    DF = 84
    def dn_frags():
        for kk in range(2):
            a(f"ds_read_b64_tr_b16 {vr(DF+4*kk,2)}, v20 offset:{kk*4096}")
            a(f"ds_read_b64_tr_b16 {vr(DF+4*kk+2,2)}, v20 offset:{kk*4096+512}")
    if not dnlate: dn_frags()
    xb_tiles = b_arrive(F_XB)
    stamp()
    QG, GG = 24, 92
    a(f"""
    s_lshl_b32 s{T0}, s{S_B}, 14
    s_lshl_b32 s{T1}, s{S_HKV}, 11
    s_add_u32 s{T0}, s{T0}, s{T1}
    s_lshl_b32 s{T1}, s{S_WAVE}, 9
    s_add_u32 s{T5}, s{T0}, s{T1}
    s_add_u32 s{T5}, s{T5}, {QP_OFF}
    v_lshlrev_b32 v38, 16, v3
    v_lshl_add_u32 v38, v2, 4, v38
    s_lshl_b32 s{T4}, s{S_H}, 13
    s_lshl_b32 s{T1}, s{S_WAVE}, 8
    s_add_u32 s{T4}, s{T4}, s{T1}
    s_add_u32 s{T4}, s{T4}, {GU_OFF}
    v_lshlrev_b32 v39, 10, v3
    v_lshl_add_u32 v39, v2, 4, v39
    v_add_u32 v10, 4096, v39
    """)
    def qloads():
        a(f"buffer_load_dwordx4 {vr(QG,4)}, v38, {srd(R_WS)}, s{T5} offen sc1")
        a(f"buffer_load_dwordx4 {vr(QG+4,4)}, v38, {srd(R_WS)}, s{T5} offen offset:256 sc1")
    def gloads():
        a(f"buffer_load_dwordx4 {vr(GG,4)}, v39, {srd(R_WS)}, s{T4} offen sc1")
        a(f"buffer_load_dwordx4 {vr(GG+4,4)}, v10, {srd(R_WS)}, s{T4} offen sc1")
    vml = []
    def issue(tagname): vml.append(tagname)
    def younger(tagname):
        last = max(i for i, t in enumerate(vml) if t == tagname)
        return len(vml) - 1 - last
    signaled = []
    def signal(p):
        a(f"v_mov_b32 v9, {pidx[p]}\nds_write_b32 v18, v9")
        signaled.append(p)
    def try_signals():
        for p in PIECES:
            if p in signaled: continue
            n = {"WO": 4}.get(p, 8)
            if vml.count(p) == n and younger(p) >= D:
                a(f"s_waitcnt vmcnt({younger(p)})")
                signal(p)
            else:
                break
    lin = int(cfg.get("lin", 1))
    def vstage(st):
        for q in range(8):
            if lin:
                a(f"""
                s_lshl_b32 s{T0}, s{S_WAVE}, 10
                s_add_u32 s{T0}, s{T0}, {st*32768 + q*4096}
                s_add_u32 s{T1}, s{T0}, {L_RING}
                s_mov_b32 m0, s{T1}
                s_nop 0
                buffer_load_dwordx4 v16, {srd(R_V)}, s{T0} offen{NT} lds
                """)
            else:
                if q % 4 == 0:
                    a(f"""
                    s_lshl_b32 s{T0}, s{S_WAVE}, 13
                    s_add_u32 s{T0}, s{T0}, {st*32768 + (q//4)*4096}
                    s_add_u32 s{T1}, s{T0}, {L_RING}
                    s_mov_b32 m0, s{T1}
                    s_nop 0
                    """)
                a(f"buffer_load_dwordx4 v{16 + q % 2}, {srd(R_V)}, s{T0} offen offset:{(q%4)*1024}{NT} lds")
            issue(f"V{st}")
            if q % 4 == 3: try_signals()
    qdelay = int(cfg.get("qdelay", 0))
    if qdelay: a(f"s_sleep {qdelay}")
    qloads(); issue("q"); issue("q")
    poll("q", list(range(QG, QG+8)), qloads, 41, f"s_waitcnt vmcnt(0)")
    stamp()
    xorN(16, "v_add_f32", list(range(QG, QG+8)), list(range(40, 48)))
    xorN(32, "v_add_f32", list(range(QG, QG+8)), list(range(40, 48)))
    a(f"""
    v_cvt_pk_bf16_f32 v42, v{QG}, v{QG+1}
    v_cvt_pk_bf16_f32 v43, v{QG+2}, v{QG+3}
    v_cvt_pk_bf16_f32 v44, v{QG+4}, v{QG+5}
    v_cvt_pk_bf16_f32 v45, v{QG+6}, v{QG+7}
    s_mul_i32 s{T0}, s{S_WAVE}, {Q_STR}
    s_add_u32 s{T0}, s{T0}, {L_Q}
    v_lshlrev_b32 v41, 3, v2
    v_add_u32 v41, s{T0}, v41
    s_mov_b64 exec, s[{M_16}:{M_16+1}]
    ds_write_b64 v41, v[42:43]
    ds_write_b64 v41, v[44:45] offset:128
    s_mov_b64 exec, -1
    """)
    flag_add(F_QR)
    a("s_setprio 0")
    vstage(0)
    vstage(1)
    gloads(); issue("g"); issue("g")
    vstage(2)
    b_wait(F_XB, xb_tiles)
    vstage(3)
    for f in tile_dma("WO"):
        f(); issue("WO")
    if dnlate:
        spin_ge(F_P0, 4)
        for f in tile_dma("DN"):
            f(); issue("DN")
    try_signals()
    stamp()
    poll("g", list(range(GG, GG+8)), gloads, 44, f"s_waitcnt vmcnt({younger('g')})")
    for e in range(4):
        a(f"v_add_f32 v{GG+e}, v{GG+e}, v{GG+4+e}")
    xorN(32, "v_add_f32", list(range(GG, GG+4)), [44,45,46,47])
    for e in range(4):
        a(f"v_mov_b32 v{GG+4+e}, v{GG+e}")
    a("s_nop 1")
    for e in range(4):
        a(f"v_permlane16_swap_b32 v{GG+e}, v{GG+4+e}")
    a("s_nop 0")
    for e in range(4):
        rne(GG+e, GG+e); rne(GG+4+e, GG+4+e)
    tm = [44, 45, 46, 47]
    for e in range(4): a(f"v_mul_f32 v{tm[e]}, v{GG+e}, v{GG+e}")
    for e in range(4): a(f"v_mul_f32 v{tm[e]}, v{tm[e]}, v{GG+e}")
    for e in range(4): a(f"v_mul_f32 v{tm[e]}, 0x3d372713, v{tm[e]}")
    for e in range(4): a(f"v_add_f32 v{tm[e]}, v{tm[e]}, v{GG+e}")
    for e in range(4): a(f"v_mul_f32 v{tm[e]}, 0xc0135761, v{tm[e]}")
    for e in range(4): a(f"v_exp_f32 v{tm[e]}, v{tm[e]}")
    a("s_nop 0")
    for e in range(4): a(f"v_add_f32 v{tm[e]}, 1.0, v{tm[e]}")
    for e in range(4): a(f"v_rcp_f32 v{tm[e]}, v{tm[e]}")
    a("s_nop 0")
    for e in range(4): a(f"v_mul_f32 v{GG+e}, v{GG+e}, v{tm[e]}")
    for e in range(4): rne(GG+e, GG+e)
    for e in range(4): a(f"v_mul_f32 v{GG+e}, v{GG+e}, v{GG+4+e}")
    a(f"""
    v_cvt_pk_bf16_f32 v44, v{GG}, v{GG+1}
    v_cvt_pk_bf16_f32 v45, v{GG+2}, v{GG+3}
    s_mul_i32 s{T0}, s{S_WAVE}, {H_STR}
    v_lshlrev_b32 v47, 3, v2
    v_add_u32 v47, s{T0}, v47
    s_mov_b64 exec, s[{M_16}:{M_16+1}]
    ds_write_b64 v47, v[44:45] offset:{L_H}
    s_mov_b64 exec, -1
    """)
    if dnlate:
        for p in PIECES:
            if p not in signaled:
                a(f"s_waitcnt vmcnt({younger(p)})"); signal(p)
        a("s_waitcnt vmcnt(0)")
        barrier(F_XB)
        dn_frags()
    else:
        xb_h = b_arrive(F_XB)
        for p in ("V1", "V2"):
            if p not in signaled:
                a(f"s_waitcnt vmcnt({younger(p)})"); signal(p)
        b_wait(F_XB, xb_h)
    a(f"""
    v_mul_u32_u24 v47, {H_STR}, v4
    v_lshl_add_u32 v47, v3, 4, v47
    """)
    HF = 64
    for kk in range(2):
        a(f"ds_read_b128 {vr(HF+4*kk,4)}, v47 offset:{L_H+kk*64}")
    a("s_waitcnt lgkmcnt(0)")
    DN_ACC = 80
    for kk in range(2):
        c = "0" if kk == 0 else vr(DN_ACC,4)
        a(f"v_mfma_f32_16x16x32_bf16 {vr(DN_ACC,4)}, {vr(DF+4*kk,4)}, {vr(HF+4*kk,4)}, {c}")
    a(f"""
    s_lshl_b32 s{T0}, s{S_WAVE}, 8
    v_lshlrev_b32 v47, 2, v4
    v_add_u32 v47, v47, v3
    v_lshlrev_b32 v47, 4, v47                     ; ((l&3)*4+g)*16
    v_add_u32 v47, s{T0}, v47
    s_nop 3
    s_mov_b64 exec, s[{M_H4}:{M_H4+1}]
    ds_write_b128 v47, {vr(DN_ACC,4)} offset:{L_DNP}
    s_mov_b64 exec, -1
    """)
    flag_add(F_DR)
    stamp()
    for p in PIECES:
        if p not in signaled:
            a(f"s_waitcnt vmcnt({younger(p)})"); signal(p)
    stamp()
    a("s_waitcnt lgkmcnt(0)\ns_branch L_end")
    x_stamps = nstamp[0]

    nstamp[0] = start_stamp
    a.label("L_qwave")
    VT[:] = [6, 8, 9, 10]
    a(f"s_setprio {int(cfg.get('qprio', 1))}")
    a(f"""
    s_lshl_b32 s{T0}, s{S_WAVE}, {12 if int(cfg.get("lin", 1)) else 15}
    v_lshlrev_b32 v16, 8, v2
    v_lshl_add_u32 v16, v3, 4, v16
    v_add_u32 v16, s{T0}, v16                     ; K voffset
    s_lshl_b32 s{T0}, s2, 17
    s_waitcnt lgkmcnt(0)
    s_add_u32 s{R_K}, s6, s{T0}
    s_addc_u32 s{R_K+1}, s7, 0
    s_mov_b32 s{R_K+2}, 131072
    s_mov_b32 s{R_K+3}, 0x20000
    """)
    if not earlybar: a("s_barrier")
    ws_srd()
    KB = 64
    for T in range(8):
        if T == 0: so = "0"
        else:
            a(f"s_mov_b32 s{T0}, {T*(16384 if int(cfg.get('lin', 1)) else 4096)}"); so = f"s{T0}"
        for j in range(4):
            r = KB + (T * 4 + j) * 4
            a(f"buffer_load_dwordx4 {vr(r,4)}, v16, {srd(R_K)}, {so} offen offset:{j*64}{NT}")
    stamp()
    common_regs()
    SAP, SOP, SML = 66, 67, 60
    a(f"""
    s_mov_b32 s{R_X}, s4
    s_mov_b32 s{R_X+1}, s5
    s_mov_b32 s{R_X+2}, 4096
    s_mov_b32 s{R_X+3}, 0x20000
    s_mov_b32 s{R_OUT}, s22
    s_mov_b32 s{R_OUT+1}, s23
    s_mov_b32 s{R_OUT+2}, 4096
    s_mov_b32 s{R_OUT+3}, 0x20000
    s_lshl_b32 s{SAP}, s{S_HKV}, 16
    s_lshl_b32 s{T1}, s{S_B}, 12
    s_add_u32 s{SAP}, s{SAP}, s{T1}
    s_lshl_b32 s{T1}, s{S_S}, 9
    s_add_u32 s{SAP}, s{SAP}, s{T1}
    s_add_u32 s{SAP}, s{SAP}, {AP_OFF}
    s_lshl_b32 s{SOP}, s{S_S}, 15
    s_lshl_b32 s{T1}, s{S_H}, 8
    s_add_u32 s{SOP}, s{SOP}, s{T1}
    s_add_u32 s{SOP}, s{SOP}, {OP_OFF}
    s_lshl_b32 s{SML}, s{S_HKV}, 11
    s_lshl_b32 s{T1}, s{S_B}, 9
    s_add_u32 s{SML}, s{SML}, s{T1}
    s_lshl_b32 s{T1}, s{S_S}, 6
    s_add_u32 s{SML}, s{SML}, s{T1}
    s_add_u32 s{SML}, s{SML}, {ML_OFF}
    s_lshl_b32 s{T1}, s{S_WAVE}, 7                ; cw*128
    v_lshlrev_b32 v11, 14, v2
    v_lshl_add_u32 v11, v3, 4, v11
    v_add_u32 v11, s{T1}, v11
    s_lshl_b32 s{T1}, s{S_WAVE}, 6
    v_lshlrev_b32 v13, 13, v2
    v_lshl_add_u32 v13, v3, 4, v13
    v_add_u32 v13, s{T1}, v13
    """)
    a(f"""
    v_mul_u32_u24 v41, {P_STR}, v4
    v_lshl_add_u32 v41, v3, 4, v41
    v_add_u32 v41, {L_P}, v41
    v_lshrrev_b32 v42, 2, v2
    v_lshl_add_u32 v42, v3, 2, v42                ; key_local
    v_and_b32 v43, 7, v42
    v_lshlrev_b32 v43, 1, v43
    v_lshrrev_b32 v44, 1, v4
    s_lshl_b32 s{T0}, s{S_WAVE}, 2
    v_add_u32 v44, s{T0}, v44
    v_xor_b32 v45, v44, v43
    v_lshlrev_b32 v45, 4, v45
    v_lshl_add_u32 v45, v42, 8, v45
    v_and_b32 v48, 1, v4
    v_lshl_add_u32 v20, v48, 3, v45
    v_add_u32 v20, {L_RING}, v20
    v_add_u32 v21, 65536, v20
    v_add_u32 v44, 2, v44
    v_xor_b32 v45, v44, v43
    v_lshlrev_b32 v45, 4, v45
    v_lshl_add_u32 v45, v42, 8, v45
    v_lshl_add_u32 v22, v48, 3, v45
    v_add_u32 v22, {L_RING}, v22
    v_add_u32 v23, 65536, v22
    v_lshlrev_b32 v40, 2, v2                      ; (l&15)*4
    s_lshl_b32 s{T0}, s{S_WAVE}, 6
    v_add_u32 v39, s{T0}, v40
    s_lshl_b32 s{T0}, s{S_WAVE}, 8
    s_lshr_b32 s{T1}, s{S_WAVE}, 1
    s_lshl_b32 s{T1}, s{T1}, 6
    s_and_b32 s{T2}, s{S_WAVE}, 1
    s_lshl_b32 s{T2}, s{T2}, 3
    s_add_u32 s{T1}, s{T1}, s{T2}
    s_cmp_eq_u32 s{T1}, s{T1}
    s_cselect_b32 s{T0}, s{T1 if int(cfg.get("lin", 1)) else T0}, s{T0}
    v_mul_u32_u24 v38, {P_STR}, v2
    v_lshl_add_u32 v38, v3, 4, v38
    v_add_u32 v38, s{T0}, v38
    s_waitcnt vmcnt(32)
    """)
    tag_setup()
    a(f"s_add_u32 s{T0}, s{S_EP}, 1\ns_nop 0\nv_mov_b32 v12, s{T0}\nv_not_b32 v17, v12")
    spin_ge(F_QR, 4)
    stamp()
    QF, SS = 48, 192
    for j in range(4):
        a(f"ds_read_b128 {vr(QF+4*j,4)}, v35 offset:{L_Q+j*64}")
    for TP in range(4):
        a(f"s_waitcnt vmcnt({24 - 8*TP})" + (" lgkmcnt(0)" if TP == 0 else ""))
        for j in range(4):
            for T in (2*TP, 2*TP+1):
                c = "0" if j == 0 else vr(SS+4*T,4)
                a(f"v_mfma_f32_16x16x32_bf16 {vr(SS+4*T,4)}, {vr(KB+(T*4+j)*4,4)}, {vr(QF+4*j,4)}, {c}")
        if TP > 0:
            for p in range(4*(TP-1), 4*TP):
                x0, x1 = SS + 2*p, SS + 2*p + 1
                a(f"""
                v_cvt_pk_bf16_f32 v42, v{x0}, v{x1}
                v_lshlrev_b32 v{x0}, 16, v42
                v_and_b32 v{x1}, 0xffff0000, v42
                v_mul_f32 v{x0}, 0x{SCALE:x}, v{x0}
                v_mul_f32 v{x1}, 0x{SCALE:x}, v{x1}
                v_cvt_pk_bf16_f32 v42, v{x0}, v{x1}
                v_lshlrev_b32 v{x0}, 16, v42
                v_and_b32 v{x1}, 0xffff0000, v42
                """)
    stamp()
    a("s_nop 7")
    for p in range(12, 16):
        x0, x1 = SS + 2*p, SS + 2*p + 1
        a(f"""
        v_cvt_pk_bf16_f32 v42, v{x0}, v{x1}
        v_lshlrev_b32 v{x0}, 16, v42
        v_and_b32 v{x1}, 0xffff0000, v42
        v_mul_f32 v{x0}, 0x{SCALE:x}, v{x0}
        v_mul_f32 v{x1}, 0x{SCALE:x}, v{x1}
        v_cvt_pk_bf16_f32 v42, v{x0}, v{x1}
        v_lshlrev_b32 v{x0}, 16, v42
        v_and_b32 v{x1}, 0xffff0000, v42
        """)
    a(f"v_max3_f32 v43, v{SS}, v{SS+1}, v{SS+2}\nv_max3_f32 v44, v{SS+3}, v{SS+4}, v{SS+5}")
    for p in range(6, 30, 4):
        a(f"v_max3_f32 v43, v43, v{SS+p}, v{SS+p+1}\nv_max3_f32 v44, v44, v{SS+p+2}, v{SS+p+3}")
    a(f"v_max3_f32 v43, v43, v{SS+30}, v{SS+31}\nv_max_f32 v43, v43, v44")
    xor16("v_max_f32", 43, 42)
    xor32("v_max_f32", 43, 42)
    a(f"""
    s_mov_b64 exec, s[{M_16}:{M_16+1}]
    ds_write_b32 v39, v43 offset:{L_WM}
    s_mov_b64 exec, -1
    """)
    barrier(F_CB)
    for w in range(4):
        a(f"ds_read_b32 v{48+w}, v40 offset:{L_WM+w*64}")
    a(f"""
    s_mov_b32 s{T1}, 0x{LOG2E:x}
    s_waitcnt lgkmcnt(0)
    v_max3_f32 v46, v48, v49, v50
    v_max_f32 v46, v46, v51
    v_mul_f32 v47, s{T1}, v46
    """)
    for p in range(32):
        a(f"v_fma_f32 v{SS+p}, v{SS+p}, s{T1}, -v47")
    for p in range(32):
        a(f"v_exp_f32 v{SS+p}, v{SS+p}")
    PP = 224
    a(f"v_cvt_pk_bf16_f32 v{PP}, v{SS}, v{SS+1}")
    for p in range(1, 16):
        a(f"v_cvt_pk_bf16_f32 v{PP+p}, v{SS+2*p}, v{SS+2*p+1}")
    a(f"s_mov_b64 exec, s[{M_H4}:{M_H4+1}]")
    if int(cfg.get("lin", 1)):
        for i in range(8):
            a(f"ds_write_b64 v38, {vr(PP+2*i,2)} offset:{L_P+i*128}")
    else:
      for st in range(4):
        a(f"ds_write_b128 v38, {vr(PP+4*st,4)} offset:{L_P+st*64}")
    a("s_mov_b64 exec, -1")
    a(f"v_add_f32 v43, v{SS}, v{SS+1}\nv_add_f32 v42, v{SS+2}, v{SS+3}")
    for p in range(4, 32, 2):
        a(f"v_add_f32 v43, v43, v{SS+p}\nv_add_f32 v42, v42, v{SS+p+1}")
    a("v_add_f32 v43, v43, v42")
    xor16("v_add_f32", 43, 42)
    xor32("v_add_f32", 43, 42)
    a(f"""
    s_mov_b64 exec, s[{M_16}:{M_16+1}]
    ds_write_b32 v39, v43 offset:{L_WL}
    s_mov_b64 exec, -1
    """)
    barrier(F_CB)
    stamp()
    for w in range(4):
        a(f"ds_read_b32 v{48+w}, v40 offset:{L_WL+w*64}")
    a(f"""
    s_waitcnt lgkmcnt(0)
    v_add_f32 v47, v48, v49
    v_add_f32 v48, v50, v51
    v_add_f32 v47, v47, v48
    v_mov_b32 v28, v46
    v_mov_b32 v29, v47
    v_mov_b32 v30, v12
    v_mov_b32 v31, v17
    """)
    ACC = 184
    firstpv = [True]
    def pv(st):
        wait_piece(f"V{st}")
        for q in range(4):
            kb = 4 * st + q
            off = (kb % 8) * 8192
            b0, b1 = (20, 22) if kb < 8 else (21, 23)
            r = 64 + 12 * q
            a(f"ds_read_b128 {vr(r,4)}, v41 offset:{kb*64}")
            a(f"ds_read_b64_tr_b16 {vr(r+4,2)}, v{b0} offset:{off}")
            a(f"ds_read_b64_tr_b16 {vr(r+6,2)}, v{b0} offset:{off+4096}")
            a(f"ds_read_b64_tr_b16 {vr(r+8,2)}, v{b1} offset:{off}")
            a(f"ds_read_b64_tr_b16 {vr(r+10,2)}, v{b1} offset:{off+4096}")
        for q in range(4):
            r = 64 + 12 * q
            a(f"s_waitcnt lgkmcnt({15 - 5 * q})")
            for dt in range(2):
                c = "0" if firstpv[0] else vr(ACC+4*dt,4)
                a(f"v_mfma_f32_16x16x32_bf16 {vr(ACC+4*dt,4)}, {vr(r+4+4*dt,4)}, {vr(r,4)}, {c}")
            firstpv[0] = False
    pv(0)
    flag_add(F_P0)
    pv(1); pv(2)
    stamp()
    AG, MG, WOF, DN2 = 128, 144, 152, 168
    a(f"""
    s_lshl_b32 s{T4}, s{S_H}, 14
    s_lshl_b32 s{T1}, s{S_WAVE}, 12
    s_add_u32 s{T4}, s{T4}, s{T1}
    s_add_u32 s{T4}, s{T4}, {AP_OFF}
    s_lshl_b32 s{T5}, s{S_HKV}, 11
    s_lshl_b32 s{T2}, s{S_WAVE}, 9
    s_add_u32 s{T5}, s{T5}, s{T2}
    s_lshl_b32 s{T2}, s{S_B}, 4
    s_add_u32 s{T5}, s{T5}, s{T2}
    s_add_u32 s{T5}, s{T5}, {ML_OFF}
    v_lshrrev_b32 v33, 5, v1
    v_lshlrev_b32 v33, 6, v33
    s_lshl_b32 s{T0}, s{S_WAVE}, 8
    v_lshlrev_b32 v47, 2, v4
    v_add_u32 v47, v47, v3
    v_lshlrev_b32 v47, 4, v47
    v_add_u32 v47, s{T0}, v47
    """)
    a(f"""
    v_mov_b32 v24, v47
    s_lshl_b32 s{T2}, s{S_B}, 10
    s_lshl_b32 s{T3}, s{S_S}, 7
    s_add_u32 s{T2}, s{T2}, s{T3}
    s_lshl_b32 s{T3}, s{S_WAVE}, 5
    s_add_u32 s{T2}, s{T2}, s{T3}
    v_lshlrev_b32 v25, 3, v4
    buffer_load_dwordx2 v[26:27], v25, {srd(R_X)}, s{T2} offen
    """)
    pv(3)
    a("s_nop 7")
    tag(range(ACC, ACC+8))
    a(f"""
    s_mov_b64 exec, s[{M_H4}:{M_H4+1}]
    buffer_store_dwordx4 {vr(ACC,4)}, v11, {srd(R_WS)}, s{SAP} offen sc1
    buffer_store_dwordx4 {vr(ACC+4,4)}, v11, {srd(R_WS)}, s{SAP} offen offset:64 sc1
    s_mov_b64 exec, -1
    s_cmp_lg_u32 s{S_WAVE}, 0
    s_cbranch_scc1 L_mlst_done
    s_mov_b64 exec, 15
    buffer_store_dwordx4 v[28:31], v5, {srd(R_WS)}, s{SML} offen sc1
    s_mov_b64 exec, -1
    """)
    a.label("L_mlst_done")
    stamp()
    AGR, MS = 128, [(144,), (152,)]
    light = int(cfg.get("light", 1))
    MGS = [192, 208]
    def ml_loads(i=0):
        for m in range(4):
            a(f"buffer_load_dwordx4 {vr(MGS[i]+4*m,4)}, v33, {srd(R_WS)}, s{T5} offen offset:{m*128} sc1")
    def ap_loads(i=0):
        for m in range(4):
            a(f"buffer_load_dwordx4 {vr(AGR+4*m,4)}, v5, {srd(R_WS)}, s{T4} offen offset:{m*1024} sc1")
    grp = int(cfg.get("grp", 0))
    def between1():
        spin_ge(F_DR, 4)
        a(f"ds_read_b128 {vr(DN2,4)}, v24 offset:{L_DNP}")
        wait_piece("WO")
        for kk in range(4):
            a(f"ds_read_b64_tr_b16 {vr(WOF+4*kk,2)}, v34 offset:{kk*4096}")
            a(f"ds_read_b64_tr_b16 {vr(WOF+4*kk+2,2)}, v34 offset:{kk*4096+512}")
    def weights(mg):
        ms = [mg + 4*m for m in range(4)]
        ls = [mg + 4*m + 1 for m in range(4)]
        a(f"""
        v_max3_f32 v36, v{ms[0]}, v{ms[1]}, v{ms[2]}
        v_max_f32 v36, v36, v{ms[3]}
        """)
        xor32("v_max_f32", 36, 37)
        for m in range(4):
            a(f"v_sub_f32 v{49+m}, v{ms[m]}, v36")
        for m in range(4):
            a(f"v_mul_f32 v{49+m}, s{T2}, v{49+m}")
        for m in range(4):
            a(f"v_exp_f32 v{49+m}, v{49+m}")
        a("s_nop 0")
        a(f"v_mul_f32 v48, v49, v{ls[0]}")
        for m in range(1, 4):
            a(f"v_fmac_f32 v48, v{49+m}, v{ls[m]}")
    a(f"s_mov_b32 s{T2}, 0x{LOG2E:x}")
    if grp == 3:
        MG = MGS[0]
        def mload(m):
            a(f"buffer_load_dwordx4 {vr(MG+4*m,4)}, v33, {srd(R_WS)}, s{T5} offen offset:{m*128} sc1")
        def aload(m):
            a(f"buffer_load_dwordx4 {vr(AGR+4*m,4)}, v5, {srd(R_WS)}, s{T4} offen offset:{m*1024} sc1")
        for m in range(4): mload(m)
        for r in range(AGR, AGR+16): a(f"v_mov_b32 v{r}, 0")
        if not dnlate: between1()
        SV, SM = T3, T1
        a(f"s_mov_b32 s{SV}, 0\ns_mov_b32 s{SM}, 0\ns_mov_b32 s{S_CNT}, 0")
        a.label("L_g1_loop")
        a(f"s_waitcnt vmcnt(0)\ns_bcnt1_i32_b32 s{T0}, s{SM}")
        for m in range(4):
            g = MG + 4*m; r = AGR + 4*m
            a(f"""
            s_bitcmp1_b32 s{SV}, {m}
            s_cbranch_scc1 L_g1_s{m}
            s_bitcmp1_b32 s{SM}, {m}
            s_cbranch_scc1 L_g1_a{m}
            v_xor_b32 v36, v{g+2}, v12
            v_bitop3_b32 v36, v36, v{g+3}, v17 bitop3:0xf6
            v_cmp_ne_u32 vcc, 0, v36
            s_cbranch_vccz L_g1_m{m}
            """)
            mload(m)
            a(f"s_cmp_lt_u32 s{T0}, 3\ns_cbranch_scc1 L_g1_s{m}")
            aload(m)
            a(f"s_branch L_g1_s{m}")
            a.label(f"L_g1_m{m}")
            a(f"s_bitset1_b32 s{SM}, {m}")
            a.label(f"L_g1_a{m}")
            for e in range(4): a(f"v_xor_b32 v{r+e}, v{r+e}, v{VT[e]}")
            a(f"""
            v_or3_b32 v36, v{r}, v{r+1}, v{r+2}
            v_or_b32 v36, v36, v{r+3}
            v_and_b32 v36, v36, v{VMSK}
            v_cmp_ne_u32 vcc, 0, v36
            s_cbranch_vccnz L_g1_r{m}
            s_bitset1_b32 s{SV}, {m}
            s_branch L_g1_s{m}
            """)
            a.label(f"L_g1_r{m}")
            aload(m)
            a.label(f"L_g1_s{m}")
        a(f"""
        s_cmp_eq_u32 s{SV}, 15
        s_cbranch_scc1 L_g1_done
        s_add_u32 s{S_CNT}, s{S_CNT}, 1
        s_cmp_lt_u32 s{S_CNT}, {POLL_LIMIT}
        s_cbranch_scc1 L_g1_loop
        s_waitcnt vmcnt(0)
        """)
        a.label("L_g1_done")
        weights(MG)
        xor32("v_add_f32", 48, 37)
        a("v_rcp_f32 v48, v48")
        if dnlate: between1()
        else: a("s_nop 0")
        for m in range(4):
            a(f"v_mul_f32 v{49+m}, v{49+m}, v48")
    elif grp == 2:
        MG = MGS[0]
        def mload(m):
            a(f"buffer_load_dwordx4 {vr(MG+4*m,4)}, v33, {srd(R_WS)}, s{T5} offen offset:{m*128} sc1")
        for m in range(4): mload(m)
        SV = T3
        a(f"s_mov_b32 s{SV}, 0\ns_mov_b32 s{S_CNT}, 0")
        a.label("L_g1_loop")
        a("s_waitcnt vmcnt(0)")
        for m in range(4):
            g = MG + 4*m
            a(f"""
            s_bitcmp1_b32 s{SV}, {m}
            s_cbranch_scc1 L_g1_s{m}
            v_xor_b32 v36, v{g+2}, v12
            v_bitop3_b32 v36, v36, v{g+3}, v17 bitop3:0xf6
            v_cmp_ne_u32 vcc, 0, v36
            s_cbranch_vccnz L_g1_r{m}
            s_bitset1_b32 s{SV}, {m}
            s_branch L_g1_s{m}
            """)
            a.label(f"L_g1_r{m}")
            mload(m)
            a.label(f"L_g1_s{m}")
        a(f"""
        s_cmp_eq_u32 s{SV}, 15
        s_cbranch_scc1 L_g1_done
        s_add_u32 s{S_CNT}, s{S_CNT}, 1
        s_cmp_lt_u32 s{S_CNT}, {POLL_LIMIT}
        s_cbranch_scc1 L_g1_loop
        s_waitcnt vmcnt(0)
        """)
        a.label("L_g1_done")
        ap_loads()
        weights(MG)
        between1()
        xor32("v_add_f32", 48, 37)
        a("v_rcp_f32 v48, v48")
        a("s_nop 0")
        for m in range(4):
            a(f"v_mul_f32 v{49+m}, v{49+m}, v48")
        poll("ap", list(range(AGR, AGR+16)), ap_loads, 36, "s_waitcnt vmcnt(0)")
    elif grp:
        MG = MGS[0]
        def gload(m):
            a(f"buffer_load_dwordx4 {vr(AGR+4*m,4)}, v5, {srd(R_WS)}, s{T4} offen offset:{m*1024} sc1")
            a(f"buffer_load_dwordx4 {vr(MG+4*m,4)}, v33, {srd(R_WS)}, s{T5} offen offset:{m*128} sc1")
        for m in range(4): gload(m)
        if not dnlate: between1()
        SV = T3
        a(f"s_mov_b32 s{SV}, 0\ns_mov_b32 s{S_CNT}, 0")
        a.label("L_g1_loop")
        a("s_waitcnt vmcnt(0)")
        for m in range(4):
            a(f"s_bitcmp1_b32 s{SV}, {m}\ns_cbranch_scc1 L_g1_s{m}")
            r = AGR + 4*m; g = MG + 4*m
            for e in range(4): a(f"v_xor_b32 v{r+e}, v{r+e}, v{VT[e]}")
            a(f"""
            v_or3_b32 v36, v{r}, v{r+1}, v{r+2}
            v_or_b32 v36, v36, v{r+3}
            v_and_b32 v36, v36, v{VMSK}
            v_bitop3_b32 v36, v36, v{g+2}, v12 bitop3:0xf6
            v_bitop3_b32 v36, v36, v{g+3}, v17 bitop3:0xf6
            v_cmp_ne_u32 vcc, 0, v36
            s_cbranch_vccnz L_g1_r{m}
            s_bitset1_b32 s{SV}, {m}
            s_branch L_g1_s{m}
            """)
            a.label(f"L_g1_r{m}")
            gload(m)
            a.label(f"L_g1_s{m}")
        a(f"""
        s_cmp_eq_u32 s{SV}, 15
        s_cbranch_scc1 L_g1_done
        s_add_u32 s{S_CNT}, s{S_CNT}, 1
        s_cmp_lt_u32 s{S_CNT}, {POLL_LIMIT}
        s_cbranch_scc1 L_g1_loop
        s_waitcnt vmcnt(0)
        """)
        a.label("L_g1_done")
        weights(MG)
        xor32("v_add_f32", 48, 37)
        a("v_rcp_f32 v48, v48")
        if dnlate: between1()
        else: a("s_nop 0")
        for m in range(4):
            a(f"v_mul_f32 v{49+m}, v{49+m}, v48")
    else:
        ml_loads(0)
        def consume_ml(i):
            ap_loads()
            weights(MGS[i])
        NS1 = int(cfg.get("ns1", 2))
        poll_stag("ml", [list(range(g, g+16)) for g in MGS[:NS1]], ml_loads, 4, 36, int(cfg.get("gap1", 3)), consume_ml, None, 0)
        between1()
        xor32("v_add_f32", 48, 37)
        a("v_rcp_f32 v48, v48")
        a("s_nop 0")
        for m in range(4):
            a(f"v_mul_f32 v{49+m}, v{49+m}, v48")
        poll("ap", list(range(AGR, AGR+16)), ap_loads, 36, "s_waitcnt vmcnt(0)")
    stamp()
    for e in range(4):
        a(f"v_mul_f32 v{44+e}, v49, v{AGR+e}")
    for m in range(1, 4):
        for e in range(4):
            a(f"v_fmac_f32 v{44+e}, v{49+m}, v{AGR+4*m+e}")
    xorN(32, "v_add_f32", [44,45,46,47], [36,37,38,39])
    a(f"""
    v_cvt_pk_bf16_f32 v42, v44, v45
    v_cvt_pk_bf16_f32 v43, v46, v47
    s_mul_i32 s{T2}, s{S_WAVE}, {Q_STR}
    v_lshlrev_b32 v41, 3, v1
    v_add_u32 v41, s{T2}, v41
    s_mov_b32 exec_lo, -1
    s_mov_b32 exec_hi, 0
    ds_write_b64 v41, v[42:43] offset:{L_OB}
    s_mov_b64 exec, -1
    """)
    barrier(F_CB)
    OF = 172
    for kk in range(4):
        a(f"ds_read_b128 {vr(OF+4*kk,4)}, v35 offset:{L_OB+kk*64}")
    for kk in range(4):
        a(f"s_waitcnt lgkmcnt({3-kk})")
        a(f"v_mfma_f32_16x16x32_bf16 {vr(DN2,4)}, {vr(WOF+4*kk,4)}, {vr(OF+4*kk,4)}, {vr(DN2,4)}")
    a("s_nop 7")
    tag(range(DN2, DN2+4))
    a(f"""
    s_mov_b64 exec, s[{M_H4}:{M_H4+1}]
    """)
    dual = int(cfg.get("dual", 1))
    if dual:
        a(f"s_add_u32 s{T0}, s{SOP}, {OPA_OFF - OP_OFF}")
        a(f"buffer_store_dwordx4 {vr(DN2,4)}, v13, {srd(R_WS)}, s{T0} offen")
    a(f"""
    buffer_store_dwordx4 {vr(DN2,4)}, v13, {srd(R_WS)}, s{SOP} offen sc1
    s_mov_b64 exec, -1
    """)
    stamp()
    a(f"""
    s_cmp_lg_u32 s{S_HKV}, 0
    s_cbranch_scc1 L_end
    s_lshl_b32 s{T0}, s{S_S}, 2
    s_add_u32 s{T0}, s{T0}, s{S_B}
    s_lshl_b32 s{T0}, s{T0}, 13
    s_lshl_b32 s{T1}, s{S_WAVE}, 6
    s_add_u32 s{T0}, s{T0}, s{T1}
    s_add_u32 s{T0}, s{T0}, {OP_OFF}
    s_add_u32 s{T1}, s{T0}, 4096                  ; heads 16..31
    s_lshl_b32 s{T2}, s{S_B}, 10
    s_lshl_b32 s{T3}, s{S_S}, 7
    s_add_u32 s{T2}, s{T2}, s{T3}
    s_lshl_b32 s{T3}, s{S_WAVE}, 5
    s_add_u32 s{T2}, s{T2}, s{T3}
    v_lshrrev_b32 v32, 2, v1
    v_lshlrev_b32 v32, 8, v32
    v_lshl_add_u32 v32, v4, 4, v32                ; (l>>2)*256 + (l&3)*16
    v_lshlrev_b32 v33, 3, v4                      ; (l&3)*8
    """)
    FGS = [224, 232, 240]
    NS2 = int(cfg.get("ns2", 2))
    if dual:
        a(f"s_add_u32 s{T4}, s{T0}, {OPA_OFF - OP_OFF}\ns_add_u32 s{T5}, s{T1}, {OPA_OFF - OP_OFF}")
    def fin_loads(i=0):
        b0, b1 = (T0, T1)
        if dual and i % 2 == 0: b0, b1 = T4, T5
        a(f"buffer_load_dwordx4 {vr(FGS[i],4)}, v32, {srd(R_WS)}, s{b0} offen sc1")
        a(f"buffer_load_dwordx4 {vr(FGS[i]+4,4)}, v32, {srd(R_WS)}, s{b1} offen sc1")
    FG = 44
    def consume2(i):
        f = FGS[i]
        for e in range(4):
            a(f"v_add_f32 v{FG+e}, v{f+e}, v{f+4+e}")
    if dual:
        def aloads(i):
            a(f"buffer_load_dwordx4 {vr(FGS[i],4)}, v32, {srd(R_WS)}, s{T4} offen sc1")
            a(f"buffer_load_dwordx4 {vr(FGS[i]+4,4)}, v32, {srd(R_WS)}, s{T5} offen sc1")
        aloads(0); aloads(2)
        a(f"s_mov_b32 s{S_CNT}, 0")
        a.label("L_fa_loop")
        for i in (0, 2):
            a("s_waitcnt vmcnt(2)")
            check(list(range(FGS[i], FGS[i]+8)), 38)
            a(f"s_cbranch_vccz L_fin_ok{i}")
            aloads(i)
        a(f"""
        s_add_u32 s{S_CNT}, s{S_CNT}, 1
        s_cmp_lt_u32 s{S_CNT}, {int(cfg.get("fastn", 10))}
        s_cbranch_scc1 L_fa_loop
        s_waitcnt vmcnt(0)
        """)
        fin_loads(0); fin_loads(1)
        a(f"s_mov_b32 s{S_CNT}, 0")
        a.label("L_fin_loop")
        for i in (0, 1):
            a("s_waitcnt vmcnt(2)")
            check(list(range(FGS[i], FGS[i]+8)), 38)
            a(f"s_cbranch_vccz L_fin_ok{i}")
            fin_loads(i)
        a(f"""
        s_add_u32 s{S_CNT}, s{S_CNT}, 1
        s_cmp_lt_u32 s{S_CNT}, {POLL_LIMIT}
        s_cbranch_scc1 L_fin_loop
        s_waitcnt vmcnt(0)
        """)
        for i in (0, 1, 2):
            a.label(f"L_fin_ok{i}")
            consume2(i)
            if i != 2: a("s_branch L_fin_done")
        a.label("L_fin_done")
    else:
        fin_loads(0)
        poll_stag("fin", [list(range(f, f+8)) for f in FGS[:NS2]], fin_loads, 2, 38, int(cfg.get("gap2", 3)), consume2)
    stamp()
    for ctl in ("row_ror:4", "row_ror:8"):
        a("s_nop 1")
        for e in range(4):
            a(f"v_add_f32_dpp v{FG+e}, v{FG+e}, v{FG+e} {ctl} row_mask:0xf bank_mask:0xf")
    a("s_nop 0")
    xorN(16, "v_add_f32", [FG, FG+1, FG+2, FG+3], [38,39,40,41])
    xorN(32, "v_add_f32", [FG, FG+1, FG+2, FG+3], [38,39,40,41])
    a(f"""
    v_lshlrev_b32 v40, 16, v26
    v_and_b32 v41, 0xffff0000, v26
    v_lshlrev_b32 v42, 16, v27
    v_and_b32 v43, 0xffff0000, v27
    v_add_f32 v40, v40, v{FG}
    v_add_f32 v41, v41, v{FG+1}
    v_add_f32 v42, v42, v{FG+2}
    v_add_f32 v43, v43, v{FG+3}
    v_cvt_pk_bf16_f32 v40, v40, v41
    v_cvt_pk_bf16_f32 v41, v42, v43
    s_mov_b64 exec, 15
    buffer_store_dwordx2 v[40:41], v33, {srd(R_OUT)}, s{T2} offen
    s_mov_b64 exec, -1
    s_cmp_lg_u32 s{S_WAVE}, 0
    s_cbranch_scc1 L_end
    s_cmp_lg_u32 s2, 0
    s_cbranch_scc1 L_end
    s_add_u32 s{S_EP}, s{S_EP}, 1
    v_mov_b32 v40, s{S_EP}
    v_mov_b32 v41, 0
    s_mov_b32 s{T1}, {EP_OFF}
    s_mov_b64 exec, 1
    buffer_store_dword v40, v41, {srd(R_WS)}, s{T1} offen sc1
    s_mov_b64 exec, -1
    """)
    a.label("L_end")
    if stamps:
        a(f"s_cmp_lg_u32 s{S_WAVE}, 0\ns_cbranch_scc1 L_exit")
        a(f"s_memrealtime s[{STAMP_REGS[NSTAMP-1]}:{STAMP_REGS[NSTAMP-1]+1}]")
        a(f"s_mov_b32 s{STAMP_REGS[10]}, s{S_CNT}\ns_mov_b32 s{STAMP_REGS[10]+1}, 0")
        a(f"""
        s_waitcnt lgkmcnt(0)
        s_add_u32 s{R_WS}, s{R_WS}, {STAMP_OFF}
        s_addc_u32 s{R_WS+1}, s{R_WS+1}, 0
        s_lshl_b32 s{T0}, s2, 1
        s_add_u32 s{T0}, s{T0}, s{S_ROLE}
        s_mul_i32 s{T0}, s{T0}, {NSTAMP*8}
        v_mov_b32 v2, s{T0}
        s_mov_b64 exec, 1
        """)
        for i in range(NSTAMP):
            r = STAMP_REGS[i]
            a(f"v_mov_b32 v4, s{r}\nv_mov_b32 v5, s{r+1}\nbuffer_store_dwordx2 v[4:5], v2, {srd(R_WS)}, 0 offen offset:{i*8}\ns_nop 1")
        print("stamps: X used", x_stamps, "Q used", nstamp[0])
    a.label("L_exit")
    a("s_endpgm")
    launch = f"grid=(256,1,1) block=(512,1,1) lds={L_END}"
    return file_text([launch], a.text(), [descriptor(kn, 256, 102)])

if __name__ == "__main__":
    out = sys.argv[1] if len(sys.argv) > 1 else "cdna_kernels/" + NAME + ".s"
    cfg = dict(kv.split("=") for kv in sys.argv[2:] if "=" in kv)
    open(out, "w").write(gen(stamps=("stamps" in sys.argv), cfg=cfg))
    print("wrote", out, "LDS", L_END)
```

```python
import sys
from asmlib import *

QP_OFF = 0x000000
GU_OFF = 0x040000
AP_OFF = 0x080000
ML_OFF = 0x100000
OP_OFF = 0x110000
OPA_OFF = 0x150000
EP_OFF = 0x1F0000
WS_SIZE = 0x200000
STAMP_OFF = 268435456 - (1 << 20)
import os
TAGMASK = int(os.environ.get('TAGMASK', '0x0F'), 0)

P_STR = 1040
Q_STR = 272
H_STR = 144
L_FL = 0
L_P = 64
L_XQ = L_P + 4 * P_STR
L_XG = L_XQ + 4 * Q_STR
L_Q = L_XG + 4 * Q_STR
L_OB = L_Q + 4 * Q_STR
L_H = L_OB + 4 * Q_STR
L_WM = L_H + 4 * H_STR
L_WL = L_WM + 256
L_DNP = L_WL + 256
L_SMALL_END = L_DNP + 1024
L_T0 = 11264
assert L_SMALL_END <= L_T0
L_RING = L_T0 + 16384
L_END = L_RING + 131072
L_GUT = L_RING + 98304
L_DNT = L_GUT + 16384
F_LPROG, F_CB, F_XB, F_QR, F_DR, F_P0, F_KC, F_R3 = 0, 16, 20, 24, 28, 32, 36, 40

LOG2E = 0x3FB8AA3B
SCALE = 0x3DB504F3
POLL_LIMIT = 20000
SPIN_LIMIT = 200000

S_WAVE, S_B, S_HKV, S_S, S_H = 28, 29, 30, 31, 32
T0, T1, T2, T3, T4, T5, T6 = 33, 34, 35, 36, 37, 38, 39
R_X, R_K, R_V, R_WQ, R_GU, R_DN, R_WO, R_WS, R_OUT = 40, 44, 48, 52, 56, 60, 64, 68, 76
S_EP = 72
S_PROG = 73
S_ROLE = 74
M_H4 = 80
M_16 = 82
M_T = 84
S_CNT = 86
S_SP = 87
STAMP_REGS = [90, 92, 94, 96, 98, 100, 4, 6, 8, 10, 12, 14]
NSTAMP = 12

def srd(r): return f"s[{r}:{r+3}]"
def vr(a, n): return f"v[{a}:{a+n-1}]"

def gen(stamps=False, nt=True, cfg=None):
    cfg = cfg or {}
    a = Asm()
    kn = NAME + "_kernel"
    NT = " nt" if nt else ""
    D = int(cfg.get("D", 12))
    nstamp = [0]; uid = [0]
    dnlate = int(cfg.get("dnlate", 0))
    def lab(p):
        uid[0] += 1
        return f"L_{p}_{uid[0]}"
    def stamp():
        if stamps:
            i = nstamp[0]; nstamp[0] += 1
            assert i < NSTAMP
            r = STAMP_REGS[i]
            a(f"s_memrealtime s[{r}:{r+1}]")
    def xor16(op, v, t):
        a(f"v_mov_b32 v{t}, v{v}\ns_nop 1\nv_permlane16_swap_b32 v{v}, v{t}\ns_nop 0\n{op} v{v}, v{v}, v{t}")
    def xor32(op, v, t):
        a(f"v_mov_b32 v{t}, v{v}\ns_nop 1\nv_permlane32_swap_b32 v{v}, v{t}\ns_nop 0\n{op} v{v}, v{v}, v{t}")
    def xorN(kind, op, regs, tmps):
        for v, t in zip(regs, tmps): a(f"v_mov_b32 v{t}, v{v}")
        a("s_nop 1")
        for v, t in zip(regs, tmps): a(f"v_permlane{kind}_swap_b32 v{v}, v{t}")
        a("s_nop 0")
        for v, t in zip(regs, tmps): a(f"{op} v{v}, v{v}, v{t}")
    def wave_sum(v, t):
        for ctl in ["quad_perm:[1,0,3,2]", "quad_perm:[2,3,0,1]", "row_half_mirror", "row_mirror"]:
            a(f"s_nop 1\nv_add_f32_dpp v{v}, v{v}, v{v} {ctl} row_mask:0xf bank_mask:0xf")
        a("s_nop 0")
        xor16("v_add_f32", v, t)
        xor32("v_add_f32", v, t)
    def rne(dst, src):
        a(f"v_cvt_pk_bf16_f32 v{dst}, v{src}, v{src}\nv_lshlrev_b32 v{dst}, 16, v{dst}")

    VF, VONE, VS = 14, 15, 252
    VTAG, VMSK = 6, 7
    VT = [6, 8, 13, 112]
    def spin_ge(off, val, four=False, keep=None):
        l0, l1 = lab("sp"), lab("spd")
        if keep is not None:
            a(f"s_cmp_ge_u32 s{keep}, {val}\ns_cbranch_scc1 {l1}")
        dst = keep if keep is not None else T6
        a(f"s_mov_b32 s{S_SP}, 0")
        a.label(l0)
        if four:
            a(f"ds_read_b128 {vr(VS,4)}, v{VF} offset:{off}\ns_waitcnt lgkmcnt(0)")
            a(f"v_min_u32 v{VS}, v{VS}, v{VS+1}\nv_min3_u32 v{VS}, v{VS}, v{VS+2}, v{VS+3}")
        else:
            a(f"ds_read_b32 v{VS}, v{VF} offset:{off}\ns_waitcnt lgkmcnt(0)")
        a(f"""
        s_nop 0
        v_readfirstlane_b32 s{dst}, v{VS}
        s_add_u32 s{S_SP}, s{S_SP}, 1
        s_cmp_ge_u32 s{dst}, {val}
        s_cbranch_scc1 {l1}
        s_cmp_ge_u32 s{S_SP}, {SPIN_LIMIT}
        s_cbranch_scc1 {l1}
        s_sleep 1
        s_branch {l0}
        """)
        a.label(l1)
    def flag_add(off):
        a(f"s_mov_b64 exec, 1\nds_add_u32 v{VF}, v{VONE} offset:{off}\ns_mov_b64 exec, -1")
    nb = {F_CB: 0, F_XB: 0}
    def b_arrive(f):
        nb[f] += 1
        flag_add(f)
        return nb[f]
    def b_wait(f, n):
        spin_ge(f, 4 * n)
    def barrier(f):
        b_wait(f, b_arrive(f))
    PIECES = ["V0", "V1", "V2", "V3", "WO"]
    pidx = {p: i + 1 for i, p in enumerate(PIECES)}
    def wait_piece(p):
        spin_ge(F_LPROG, pidx[p], four=True, keep=S_PROG)
    def tag(regs):
        for i, r in enumerate(regs): a(f"v_bfi_b32 v{r}, v{VMSK}, v{VT[i % 4]}, v{r}")
    def poll(name, regs, loads, acc, first_wait, backoff=0):
        a(f"s_mov_b32 s{S_CNT}, 0\n{first_wait}")
        a.label(f"L_{name}_chk")
        check(regs, acc)
        a(f"""
        s_cbranch_vccz L_{name}_ok
        s_add_u32 s{S_CNT}, s{S_CNT}, 1
        s_cmp_ge_u32 s{S_CNT}, {POLL_LIMIT}
        s_cbranch_scc1 L_{name}_ok
        """)
        if backoff: a(f"s_sleep {backoff}")
        loads()
        a(f"s_waitcnt vmcnt(0)\ns_branch L_{name}_chk")
        a.label(f"L_{name}_ok")
    def check(regs, acc, per=4):
        for i, r in enumerate(regs):
            a(f"v_xor_b32 v{r}, v{r}, v{VT[i % per]}")
        rs = list(regs)
        a(f"v_or3_b32 v{acc}, v{rs[0]}, v{rs[1]}, v{rs[2]}")
        k = 3
        while k + 1 < len(rs):
            a(f"v_or3_b32 v{acc}, v{acc}, v{rs[k]}, v{rs[k+1]}"); k += 2
        if k < len(rs):
            a(f"v_or_b32 v{acc}, v{acc}, v{rs[k]}")
        a(f"v_and_b32 v{acc}, v{acc}, v{VMSK}\nv_cmp_ne_u32 vcc, 0, v{acc}")
    def check_ml(regs, acc):
        for k in range(0, len(regs), 4):
            if k == 0:
                a(f"v_xor_b32 v{acc}, v{regs[2]}, v12")
            else:
                a(f"v_bitop3_b32 v{acc}, v{acc}, v{regs[k+2]}, v12 bitop3:0xf6")
            a(f"v_bitop3_b32 v{acc}, v{acc}, v{regs[k+3]}, v17 bitop3:0xf6")
        a(f"v_cmp_ne_u32 vcc, 0, v{acc}")
    def poll_stag(name, sets, loads, nloads, acc, gap, consume, between=None, per=4):
        n = len(sets)
        for i in range(1, n):
            if gap: a(f"s_sleep {gap}")
            loads(i)
        if between: between()
        a(f"s_mov_b32 s{S_CNT}, 0")
        a.label(f"L_{name}_loop")
        for i in range(n):
            a(f"s_waitcnt vmcnt({(n-1)*nloads})")
            (check_ml(sets[i], acc) if per == 0 else check(sets[i], acc, per))
            a(f"s_cbranch_vccz L_{name}_ok{i}")
            loads(i)
        a(f"""
        s_add_u32 s{S_CNT}, s{S_CNT}, 1
        s_cmp_lt_u32 s{S_CNT}, {POLL_LIMIT}
        s_cbranch_scc1 L_{name}_loop
        s_waitcnt vmcnt(0)
        """)
        for i in range(n):
            a.label(f"L_{name}_ok{i}")
            consume(i)
            if i != n - 1: a(f"s_branch L_{name}_done")
        a.label(f"L_{name}_done")
    def tag_setup():
        a(f"""
        v_readfirstlane_b32 s{S_EP}, v{VTAG}
        v_add_u32 v{VTAG}, 1, v{VTAG}
        """)
        for e in (3, 2, 1):
            a(f"v_add_u32 v{VT[e]}, {e * 0x35}, v{VTAG}\nv_and_b32 v{VT[e]}, {TAGMASK}, v{VT[e]}")
        a(f"v_and_b32 v{VTAG}, {TAGMASK}, v{VTAG}")
    def ws_srd():
        a(f"""
        s_mov_b32 s{R_WS}, s26
        s_mov_b32 s{R_WS+1}, s27
        s_mov_b32 s{R_WS+2}, {WS_SIZE}
        s_mov_b32 s{R_WS+3}, 0x20000
        s_mov_b32 s{T1}, {EP_OFF}
        v_mov_b32 v33, 0
        buffer_load_dword v{VTAG}, v33, {srd(R_WS)}, s{T1} offen sc1
        """)
    def common_regs():
        a(f"""
        s_mov_b32 s{M_H4}, 0x000F000F
        s_mov_b32 s{M_H4+1}, 0x000F000F
        s_mov_b32 s{M_16}, 0xFFFF
        s_mov_b32 s{M_16+1}, 0
        v_mov_b32 v{VMSK}, {TAGMASK}
        v_lshrrev_b32 v32, 2, v2
        v_lshl_add_u32 v32, v3, 3, v32
        v_lshlrev_b32 v32, 7, v32
        v_lshl_add_u32 v34, v4, 3, v32
        s_lshl_b32 s{T3}, s{S_WAVE}, 5
        s_add_u32 s{T3}, s{T3}, {L_T0}
        v_add_u32 v34, s{T3}, v34                     ; T0 + (8g+r)*128 + t*32 + c4*8
        v_mul_u32_u24 v35, {Q_STR}, v4
        v_lshl_add_u32 v35, v3, 4, v35                ; (l&3)*272 + g*16
        v_lshlrev_b32 v5, 4, v1                       ; l*16
        """)

    kernel_begin(a, kn)
    a(f"""
    s_cmp_ge_u32 s2, 256
    s_cbranch_scc1 L_exit
    s_load_dwordx16 s[4:19], s[0:1], 0
    s_load_dwordx8 s[20:27], s[0:1], 64
    """)
    stamp()
    for _ in range(int(cfg.get("diag_sleep", 0))): a("s_sleep 100")
    a(f"""
    v_and_b32 v1, 63, v0
    v_lshrrev_b32 v32, 6, v0
    v_and_b32 v2, 15, v1
    v_readfirstlane_b32 s{S_WAVE}, v32
    v_lshrrev_b32 v3, 4, v1
    v_and_b32 v4, 3, v1
    v_mov_b32 v{VF}, {L_FL}
    v_mov_b32 v{VONE}, 1
    s_lshr_b32 s{S_B}, s2, 6
    s_bfe_u32 s{S_HKV}, s2, 0x30003
    s_and_b32 s{S_S}, s2, 7
    s_lshl_b32 s{S_H}, s{S_HKV}, 2
    s_add_u32 s{S_H}, s{S_H}, s{S_B}
    s_mov_b32 s{S_PROG}, 0
    s_cmp_lg_u32 s{S_WAVE}, 0
    s_cbranch_scc1 L_noinit
    v_lshlrev_b32 v32, 2, v1
    v_mov_b32 v33, 0
    s_mov_b64 exec, 0xFFFF
    ds_write_b32 v32, v33 offset:{L_FL}
    s_mov_b64 exec, -1
    s_waitcnt lgkmcnt(0)
    """)
    a.label("L_noinit")
    earlybar = int(cfg.get("earlybar", 0))
    if earlybar: a("s_barrier")
    a(f"""
    s_lshr_b32 s{S_ROLE}, s{S_WAVE}, 2
    s_and_b32 s{S_WAVE}, s{S_WAVE}, 3
    s_cmp_eq_u32 s{S_ROLE}, 0
    s_cbranch_scc1 L_qwave
    """)
    start_stamp = nstamp[0]
    a(f"""
    s_setprio 3
    v_lshlrev_b32 v5, 4, v1
    s_lshl_b32 s{T0}, s{S_WAVE}, 10
    v_lshrrev_b32 v36, 3, v1
    v_and_b32 v37, 7, v1
    v_lshlrev_b32 v37, 4, v37
    v_lshl_add_u32 v22, v36, 13, v37
    s_lshl_b32 s{T2}, s{S_B}, 20
    s_lshl_b32 s{T1}, s{S_HKV}, 10
    s_add_u32 s{T2}, s{T2}, s{T1}
    s_lshl_b32 s{T1}, s{S_S}, 7
    s_add_u32 s{T4}, s{T2}, s{T1}
    s_waitcnt lgkmcnt(0)
    s_mov_b32 s{R_X}, s4
    s_mov_b32 s{R_X+1}, s5
    s_mov_b32 s{R_X+2}, 4096
    s_mov_b32 s{R_X+3}, 0x20000
    buffer_load_dwordx4 v[24:27], v5, {srd(R_X)}, s{T0} offen
    s_add_u32 s{R_WQ}, s10, s{T4}
    s_addc_u32 s{R_WQ+1}, s11, 0
    s_mov_b32 s{R_WQ+2}, {127*8192+128}
    s_mov_b32 s{R_WQ+3}, 0x20000
    """)
    ws_srd()
    def tile_dma(p):
        n_per = 2 if p == "DN" else 4
        stride = {"WQ": 8192, "GU": 3584, "WO": 1024, "DN": 1024}[p]
        vo = {"WQ": 22, "GU": 23, "WO": 21, "DN": 21}[p]
        R = {"WQ": R_WQ, "GU": R_GU, "WO": R_WO, "DN": R_DN}[p]
        LB = {"WQ": L_T0, "GU": L_GUT, "WO": L_T0, "DN": (L_RING if dnlate else L_DNT)}[p]
        out = []
        for q in range(n_per):
            def f(q=q):
                if q == 0:
                    a(f"""
                    s_mul_i32 s{T1}, s{S_WAVE}, {n_per*8*stride}
                    s_mul_i32 s{T0}, s{S_WAVE}, {n_per*1024}
                    s_add_u32 s{T0}, s{T0}, {LB}
                    """)
                else:
                    a(f"s_add_u32 s{T1}, s{T1}, {8*stride}\ns_add_u32 s{T0}, s{T0}, 1024")
                a(f"""
                s_mov_b32 m0, s{T0}
                s_nop 0
                buffer_load_dwordx4 v{vo}, {srd(R)}, s{T1} offen{NT} lds
                """)
            out.append(f)
        return out
    for f in tile_dma("WQ"): f()
    if not earlybar: a("s_barrier")
    a(f"""
    v_mul_u32_u24 v23, 3584, v36
    v_add_u32 v23, v23, v37
    v_lshl_add_u32 v21, v36, 10, v37
    s_and_b32 s{T0}, s{S_S}, 1
    s_cmp_eq_u32 s{T0}, 0
    s_cselect_b32 s{T2}, s16, s18
    s_cselect_b32 s{T3}, s17, s19
    s_lshr_b32 s{T0}, s{S_S}, 1
    s_mul_i32 s{T0}, s{T0}, {128*3584}
    s_lshl_b32 s{T1}, s{S_H}, 7
    s_add_u32 s{T0}, s{T0}, s{T1}
    s_add_u32 s{R_GU}, s{T2}, s{T0}
    s_addc_u32 s{R_GU+1}, s{T3}, 0
    s_cmp_lt_u32 s{S_H}, 28
    s_cselect_b32 s{R_GU+2}, {127*3584+128}, 0
    s_mov_b32 s{R_GU+3}, 0x20000
    """)
    for f in tile_dma("GU"): f()
    a(f"""
    s_lshl_b32 s{T0}, s{S_H}, 16
    s_lshl_b32 s{T1}, s{S_S}, 7
    s_add_u32 s{T0}, s{T0}, s{T1}
    s_add_u32 s{R_DN}, s20, s{T0}
    s_addc_u32 s{R_DN+1}, s21, 0
    s_cmp_lt_u32 s{S_H}, 28
    s_cselect_b32 s{R_DN+2}, {63*1024+128}, 0
    s_mov_b32 s{R_DN+3}, 0x20000
    """)
    if not dnlate:
        for f in tile_dma("DN"): f()
    pret = int(cfg.get("pret", 0))
    if pret:
        a(f"""
        s_lshl_b32 s{T0}, s{S_B}, 16
        s_lshl_b32 s{T1}, s{S_HKV}, 11
        s_add_u32 s{T0}, s{T0}, s{T1}
        s_lshl_b32 s{T1}, s{S_S}, 8
        s_add_u32 s{T0}, s{T0}, s{T1}
        s_lshl_b32 s{T1}, s{S_H}, 13
        s_lshl_b32 s{T2}, s{S_S}, 10
        s_add_u32 s{T1}, s{T1}, s{T2}
        s_add_u32 s{T1}, s{T1}, {GU_OFF}
        s_lshl_b32 s{T2}, s{S_HKV}, 16
        s_lshl_b32 s{T3}, s{S_B}, 12
        s_add_u32 s{T2}, s{T2}, s{T3}
        s_lshl_b32 s{T3}, s{S_S}, 9
        s_add_u32 s{T2}, s{T2}, s{T3}
        s_add_u32 s{T2}, s{T2}, {AP_OFF}
        s_lshl_b32 s{T3}, s{S_S}, 15
        s_lshl_b32 s{T4}, s{S_H}, 8
        s_add_u32 s{T3}, s{T3}, s{T4}
        s_add_u32 s{T3}, s{T3}, {OP_OFF}
        s_lshl_b32 s{T4}, s{S_HKV}, 11
        s_lshl_b32 s{T5}, s{S_B}, 9
        s_add_u32 s{T4}, s{T4}, s{T5}
        s_lshl_b32 s{T5}, s{S_S}, 6
        s_add_u32 s{T4}, s{T4}, s{T5}
        s_add_u32 s{T4}, s{T4}, {ML_OFF}
        s_cmp_eq_u32 s{S_WAVE}, 0
        s_cbranch_scc1 L_pt0
        s_cmp_eq_u32 s{S_WAVE}, 3
        s_cbranch_scc1 L_pt3
        v_lshrrev_b32 v100, 5, v1
        v_and_b32 v101, 31, v1
        v_lshlrev_b32 v100, 14, v100
        v_lshl_add_u32 v100, v101, 4, v100
        s_sub_u32 s{T5}, s{S_WAVE}, 1
        s_lshl_b32 s{T5}, s{T5}, 15
        s_add_u32 s{T2}, s{T2}, s{T5}
        buffer_load_dwordx4 v[104:107], v100, {srd(R_WS)}, s{T2} offen sc1
        buffer_load_dword v108, v100, {srd(R_WS)}, s{T2} offen sc1
        s_branch L_ptd
        """)
        a.label("L_pt0")
        a(f"""
        v_lshlrev_b32 v100, 14, v3
        v_lshl_add_u32 v100, v2, 4, v100
        buffer_load_dwordx4 v[104:107], v100, {srd(R_WS)}, s{T0} offen sc1
        buffer_load_dwordx4 v[108:111], v5, {srd(R_WS)}, s{T1} offen sc1
        s_branch L_ptd
        """)
        a.label("L_pt3")
        a(f"""
        v_lshlrev_b32 v100, 13, v3
        v_lshl_add_u32 v100, v2, 4, v100
        buffer_load_dwordx4 v[104:107], v100, {srd(R_WS)}, s{T3} offen sc1
        v_and_b32 v101, 3, v1
        v_lshlrev_b32 v101, 4, v101
        buffer_load_dwordx4 v[108:111], v101, {srd(R_WS)}, s{T4} offen sc1
        """)
        a.label("L_ptd")
    common_regs()
    npf = int(cfg.get("codepf", 0))
    a(f"""
    s_lshl_b32 s{T0}, s2, 17
    s_add_u32 s{R_V}, s8, s{T0}
    s_addc_u32 s{R_V+1}, s9, 0
    s_mov_b32 s{R_V+2}, 131072
    s_mov_b32 s{R_V+3}, 0x20000
    s_lshl_b32 s{T0}, s{S_H}, 17
    s_lshl_b32 s{T1}, s{S_S}, 7
    s_add_u32 s{T0}, s{T0}, s{T1}
    s_add_u32 s{R_WO}, s12, s{T0}
    s_addc_u32 s{R_WO+1}, s13, 0
    s_mov_b32 s{R_WO+2}, {127*1024+128}
    s_mov_b32 s{R_WO+3}, 0x20000
    """)
    for v in range(2):
        a(f"v_lshlrev_b32 v36, 1, v3\nv_add_u32 v36, {8*v}, v36\nv_xor_b32 v{16+v}, v2, v36\nv_lshlrev_b32 v{16+v}, 4, v{16+v}\nv_lshl_add_u32 v{16+v}, v3, 8, v{16+v}")
    if int(cfg.get("lin", 1)):
        a(f"""
        s_and_b32 s{T0}, s{S_WAVE}, 1
        s_cmp_eq_u32 s{T0}, 1
        s_cselect_b64 vcc, -1, 0
        v_cndmask_b32 v16, v16, v17, vcc
        """)
    SQP, SGU = 78, 79
    a(f"""
    s_lshl_b32 s{T4}, s{S_WAVE}, 2
    s_add_u32 s{T4}, s{T4}, {L_FL + F_LPROG}
    v_mov_b32 v18, s{T4}
    s_lshl_b32 s{SQP}, s{S_B}, 16
    s_lshl_b32 s{T1}, s{S_HKV}, 11
    s_add_u32 s{SQP}, s{SQP}, s{T1}
    s_lshl_b32 s{T1}, s{S_S}, 8
    s_add_u32 s{SQP}, s{SQP}, s{T1}
    s_add_u32 s{SQP}, s{SQP}, {QP_OFF}
    s_lshl_b32 s{SGU}, s{S_H}, 13
    s_lshl_b32 s{T1}, s{S_S}, 10
    s_add_u32 s{SGU}, s{SGU}, s{T1}
    s_add_u32 s{SGU}, s{SGU}, {GU_OFF}
    s_lshl_b32 s{T1}, s{S_WAVE}, 6                ; t*64
    v_lshlrev_b32 v11, 14, v2
    v_lshl_add_u32 v11, v3, 4, v11
    v_add_u32 v11, s{T1}, v11
    v_lshlrev_b32 v12, 8, v2
    v_lshl_add_u32 v12, v3, 4, v12
    v_add_u32 v12, s{T1}, v12
    v_add_u32 v19, {L_GUT - L_T0}, v34
    v_add_u32 v20, {(L_RING if dnlate else L_DNT) - L_T0}, v34
    s_waitcnt vmcnt({(8 if dnlate else 10) + (2 if pret else 0)})
    """)
    stamp()
    if npf:
        a(f"""
        s_cmp_ge_u32 s2, {npf}
        s_cbranch_scc1 L_nopf
        s_getpc_b64 s[{M_T}:{M_T+1}]
        """)
        a.label("L_pcref")
        a(f"""
        s_lshl_b32 s{T0}, s{S_WAVE}, 12
        v_add_u32 v100, s{T0}, v5
        s_mov_b32 s{T1}, L_exit-L_pcref-16
        """)
        for k in range(4):
            a(f"""
            v_add_u32 v101, {k*1024}, v100
            v_cmp_gt_u32 vcc, s{T1}, v101
            s_and_saveexec_b64 s[88:89], vcc
            s_cbranch_execz L_pfs{k}
            global_load_dwordx4 v[104:107], v101, s[{M_T}:{M_T+1}]
            """)
            a.label(f"L_pfs{k}")
            a("s_mov_b64 exec, -1")
        a.label("L_nopf")
    tag_setup()
    for e in range(4):
        a(f"v_lshlrev_b32 v{40+2*e}, 16, v{24+e}\nv_and_b32 v{41+2*e}, 0xffff0000, v{24+e}")
    a(f"""
    v_add_f32 v32, v40, v41
    v_add_f32 v33, v42, v43
    v_add_f32 v36, v44, v45
    v_add_f32 v37, v46, v47
    v_add_f32 v32, v32, v33
    v_add_f32 v36, v36, v37
    v_add_f32 v32, v32, v36
    """)
    wave_sum(32, 33)
    a("v_mul_f32 v32, 0x3b000000, v32")
    for e in range(8):
        a(f"v_sub_f32 v{48+e}, v{40+e}, v32")
    a("v_mul_f32 v33, v48, v48\nv_mul_f32 v36, v49, v49")
    for e in range(2, 8, 2):
        a(f"v_fmac_f32 v33, v{48+e}, v{48+e}\nv_fmac_f32 v36, v{49+e}, v{49+e}")
    a("v_add_f32 v33, v33, v36")
    wave_sum(33, 36)
    a("v_mul_f32 v33, 0x3b000000, v33")
    rne(32, 32); rne(33, 33)
    a("v_add_f32 v33, 0x3727c5ac, v33")
    rne(33, 33)
    a("v_sqrt_f32 v33, v33")
    for e in range(8):
        a(f"v_sub_f32 v{48+e}, v{40+e}, v32")
    rne(33, 33)
    a("v_rcp_f32 v33, v33")
    for e in range(0, 8, 2):
        a(f"v_cvt_pk_bf16_f32 v36, v{48+e}, v{49+e}\nv_lshlrev_b32 v{48+e}, 16, v36\nv_and_b32 v{49+e}, 0xffff0000, v36")
    for e in range(8):
        a(f"v_mul_f32 v{48+e}, v{48+e}, v33")
    for e in range(4):
        a(f"v_cvt_pk_bf16_f32 v{44+e}, v{48+2*e}, v{49+2*e}")
    a(f"""
    s_mul_i32 s{T0}, s{S_WAVE}, {Q_STR}
    v_lshlrev_b32 v32, 4, v2
    v_add_u32 v32, s{T0}, v32
    v_cmp_eq_u32 vcc, s{S_B}, v3
    s_and_saveexec_b64 s[{M_T}:{M_T+1}], vcc
    ds_write_b128 v32, v[44:47] offset:{L_XQ}
    s_mov_b64 exec, -1
    s_lshr_b32 s{T1}, s{S_S}, 1
    v_cmp_eq_u32 vcc, s{T1}, v3
    s_and_saveexec_b64 s[{M_T}:{M_T+1}], vcc
    ds_write_b128 v32, v[44:47] offset:{L_XG}
    s_mov_b64 exec, -1
    s_waitcnt vmcnt({(4 if dnlate else 6) + (2 if pret else 0)})
    """)
    barrier(F_XB)
    stamp()
    WF, XF, DA = 48, 64, 80
    def p1(xoff, voff, sbase, areg):
        for kk in range(4):
            a(f"ds_read_b128 {vr(XF+4*kk,4)}, v35 offset:{xoff+kk*64}")
        for kk in range(4):
            a(f"ds_read_b64_tr_b16 {vr(WF+4*kk,2)}, v{areg} offset:{kk*4096}")
            a(f"ds_read_b64_tr_b16 {vr(WF+4*kk+2,2)}, v{areg} offset:{kk*4096+512}")
        for kk in range(4):
            a(f"s_waitcnt lgkmcnt({6-2*kk})")
            c = "0" if kk == 0 else vr(DA,4)
            a(f"v_mfma_f32_16x16x32_bf16 {vr(DA,4)}, {vr(WF+4*kk,4)}, {vr(XF+4*kk,4)}, {c}")
        a("s_nop 7")
        tag(range(DA, DA+4))
        a(f"""
        s_mov_b64 exec, s[{M_H4}:{M_H4+1}]
        buffer_store_dwordx4 {vr(DA,4)}, v{voff}, {srd(R_WS)}, s{sbase} offen sc1
        s_mov_b64 exec, -1
        """)
    p1(L_XQ, 11, SQP, 34)
    stamp()
    a(f"s_waitcnt vmcnt({1 + (2 if pret else 0)})")
    barrier(F_XB)
    p1(L_XG, 12, SGU, 19)
    DF = 84
    def dn_frags():
        for kk in range(2):
            a(f"ds_read_b64_tr_b16 {vr(DF+4*kk,2)}, v20 offset:{kk*4096}")
            a(f"ds_read_b64_tr_b16 {vr(DF+4*kk+2,2)}, v20 offset:{kk*4096+512}")
    if not dnlate: dn_frags()
    xb_tiles = b_arrive(F_XB)
    flag_add(F_R3)
    stamp()
    QG, GG = 24, 92
    a(f"""
    s_lshl_b32 s{T0}, s{S_B}, 14
    s_lshl_b32 s{T1}, s{S_HKV}, 11
    s_add_u32 s{T0}, s{T0}, s{T1}
    s_lshl_b32 s{T1}, s{S_WAVE}, 9
    s_add_u32 s{T5}, s{T0}, s{T1}
    s_add_u32 s{T5}, s{T5}, {QP_OFF}
    v_lshlrev_b32 v38, 16, v3
    v_lshl_add_u32 v38, v2, 4, v38
    s_lshl_b32 s{T4}, s{S_H}, 13
    s_lshl_b32 s{T1}, s{S_WAVE}, 8
    s_add_u32 s{T4}, s{T4}, s{T1}
    s_add_u32 s{T4}, s{T4}, {GU_OFF}
    v_lshlrev_b32 v39, 10, v3
    v_lshl_add_u32 v39, v2, 4, v39
    v_add_u32 v10, 4096, v39
    """)
    def qloads():
        a(f"buffer_load_dwordx4 {vr(QG,4)}, v38, {srd(R_WS)}, s{T5} offen sc1")
        a(f"buffer_load_dwordx4 {vr(QG+4,4)}, v38, {srd(R_WS)}, s{T5} offen offset:256 sc1")
    def gloads():
        a(f"buffer_load_dwordx4 {vr(GG,4)}, v39, {srd(R_WS)}, s{T4} offen sc1")
        a(f"buffer_load_dwordx4 {vr(GG+4,4)}, v10, {srd(R_WS)}, s{T4} offen sc1")
    vml = []
    def issue(tagname): vml.append(tagname)
    def younger(tagname):
        last = max(i for i, t in enumerate(vml) if t == tagname)
        return len(vml) - 1 - last
    signaled = []
    def signal(p):
        a(f"v_mov_b32 v9, {pidx[p]}\nds_write_b32 v18, v9")
        signaled.append(p)
    def try_signals():
        for p in PIECES:
            if p in signaled: continue
            n = {"WO": 4}.get(p, 8)
            if vml.count(p) == n and younger(p) >= D:
                a(f"s_waitcnt vmcnt({younger(p)})")
                signal(p)
            else:
                break
    lin = int(cfg.get("lin", 1))
    def vstage(st):
        for q in range(8):
            if lin:
                a(f"""
                s_lshl_b32 s{T0}, s{S_WAVE}, 10
                s_add_u32 s{T0}, s{T0}, {st*32768 + q*4096}
                s_add_u32 s{T1}, s{T0}, {L_RING}
                s_mov_b32 m0, s{T1}
                s_nop 0
                buffer_load_dwordx4 v16, {srd(R_V)}, s{T0} offen{NT} lds
                """)
            else:
                if q % 4 == 0:
                    a(f"""
                    s_lshl_b32 s{T0}, s{S_WAVE}, 13
                    s_add_u32 s{T0}, s{T0}, {st*32768 + (q//4)*4096}
                    s_add_u32 s{T1}, s{T0}, {L_RING}
                    s_mov_b32 m0, s{T1}
                    s_nop 0
                    """)
                a(f"buffer_load_dwordx4 v{16 + q % 2}, {srd(R_V)}, s{T0} offen offset:{(q%4)*1024}{NT} lds")
            issue(f"V{st}")
            if q % 4 == 3: try_signals()
    qdelay = int(cfg.get("qdelay", 0))
    if qdelay: a(f"s_sleep {qdelay}")
    qloads(); issue("q"); issue("q")
    poll("q", list(range(QG, QG+8)), qloads, 41, f"s_waitcnt vmcnt(0)")
    stamp()
    xorN(16, "v_add_f32", list(range(QG, QG+8)), list(range(40, 48)))
    xorN(32, "v_add_f32", list(range(QG, QG+8)), list(range(40, 48)))
    a(f"""
    v_cvt_pk_bf16_f32 v42, v{QG}, v{QG+1}
    v_cvt_pk_bf16_f32 v43, v{QG+2}, v{QG+3}
    v_cvt_pk_bf16_f32 v44, v{QG+4}, v{QG+5}
    v_cvt_pk_bf16_f32 v45, v{QG+6}, v{QG+7}
    s_mul_i32 s{T0}, s{S_WAVE}, {Q_STR}
    s_add_u32 s{T0}, s{T0}, {L_Q}
    v_lshlrev_b32 v41, 3, v2
    v_add_u32 v41, s{T0}, v41
    s_mov_b64 exec, s[{M_16}:{M_16+1}]
    ds_write_b64 v41, v[42:43]
    ds_write_b64 v41, v[44:45] offset:128
    s_mov_b64 exec, -1
    """)
    flag_add(F_QR)
    a("s_setprio 0")
    spin_ge(F_KC, 4)
    vstage(0)
    spin_ge(F_KC, 8)
    vstage(1)
    gloads(); issue("g"); issue("g")
    spin_ge(F_KC, 12)
    vstage(2)
    b_wait(F_XB, xb_tiles)
    spin_ge(F_KC, 16)
    vstage(3)
    for f in tile_dma("WO"):
        f(); issue("WO")
    if dnlate:
        spin_ge(F_P0, 4)
        for f in tile_dma("DN"):
            f(); issue("DN")
    try_signals()
    stamp()
    poll("g", list(range(GG, GG+8)), gloads, 44, f"s_waitcnt vmcnt({younger('g')})")
    for e in range(4):
        a(f"v_add_f32 v{GG+e}, v{GG+e}, v{GG+4+e}")
    xorN(32, "v_add_f32", list(range(GG, GG+4)), [44,45,46,47])
    for e in range(4):
        a(f"v_mov_b32 v{GG+4+e}, v{GG+e}")
    a("s_nop 1")
    for e in range(4):
        a(f"v_permlane16_swap_b32 v{GG+e}, v{GG+4+e}")
    a("s_nop 0")
    for e in range(4):
        rne(GG+e, GG+e); rne(GG+4+e, GG+4+e)
    tm = [44, 45, 46, 47]
    for e in range(4): a(f"v_mul_f32 v{tm[e]}, v{GG+e}, v{GG+e}")
    for e in range(4): a(f"v_mul_f32 v{tm[e]}, v{tm[e]}, v{GG+e}")
    for e in range(4): a(f"v_mul_f32 v{tm[e]}, 0x3d372713, v{tm[e]}")
    for e in range(4): a(f"v_add_f32 v{tm[e]}, v{tm[e]}, v{GG+e}")
    for e in range(4): a(f"v_mul_f32 v{tm[e]}, 0xc0135761, v{tm[e]}")
    for e in range(4): a(f"v_exp_f32 v{tm[e]}, v{tm[e]}")
    a("s_nop 0")
    for e in range(4): a(f"v_add_f32 v{tm[e]}, 1.0, v{tm[e]}")
    for e in range(4): a(f"v_rcp_f32 v{tm[e]}, v{tm[e]}")
    a("s_nop 0")
    for e in range(4): a(f"v_mul_f32 v{GG+e}, v{GG+e}, v{tm[e]}")
    for e in range(4): rne(GG+e, GG+e)
    for e in range(4): a(f"v_mul_f32 v{GG+e}, v{GG+e}, v{GG+4+e}")
    a(f"""
    v_cvt_pk_bf16_f32 v44, v{GG}, v{GG+1}
    v_cvt_pk_bf16_f32 v45, v{GG+2}, v{GG+3}
    s_mul_i32 s{T0}, s{S_WAVE}, {H_STR}
    v_lshlrev_b32 v47, 3, v2
    v_add_u32 v47, s{T0}, v47
    s_mov_b64 exec, s[{M_16}:{M_16+1}]
    ds_write_b64 v47, v[44:45] offset:{L_H}
    s_mov_b64 exec, -1
    """)
    if dnlate:
        for p in PIECES:
            if p not in signaled:
                a(f"s_waitcnt vmcnt({younger(p)})"); signal(p)
        a("s_waitcnt vmcnt(0)")
        barrier(F_XB)
        dn_frags()
    else:
        xb_h = b_arrive(F_XB)
        for p in ("V1", "V2"):
            if p not in signaled:
                a(f"s_waitcnt vmcnt({younger(p)})"); signal(p)
        b_wait(F_XB, xb_h)
    a(f"""
    v_mul_u32_u24 v47, {H_STR}, v4
    v_lshl_add_u32 v47, v3, 4, v47
    """)
    HF = 64
    for kk in range(2):
        a(f"ds_read_b128 {vr(HF+4*kk,4)}, v47 offset:{L_H+kk*64}")
    a("s_waitcnt lgkmcnt(0)")
    DN_ACC = 80
    for kk in range(2):
        c = "0" if kk == 0 else vr(DN_ACC,4)
        a(f"v_mfma_f32_16x16x32_bf16 {vr(DN_ACC,4)}, {vr(DF+4*kk,4)}, {vr(HF+4*kk,4)}, {c}")
    a(f"""
    s_lshl_b32 s{T0}, s{S_WAVE}, 8
    v_lshlrev_b32 v47, 2, v4
    v_add_u32 v47, v47, v3
    v_lshlrev_b32 v47, 4, v47                     ; ((l&3)*4+g)*16
    v_add_u32 v47, s{T0}, v47
    s_nop 3
    s_mov_b64 exec, s[{M_H4}:{M_H4+1}]
    ds_write_b128 v47, {vr(DN_ACC,4)} offset:{L_DNP}
    s_mov_b64 exec, -1
    """)
    flag_add(F_DR)
    stamp()
    for p in PIECES:
        if p not in signaled:
            a(f"s_waitcnt vmcnt({younger(p)})"); signal(p)
    stamp()
    a("s_waitcnt lgkmcnt(0)\ns_branch L_end")
    x_stamps = nstamp[0]

    nstamp[0] = start_stamp
    a.label("L_qwave")
    VT[:] = [6, 8, 9, 10]
    a(f"s_setprio {int(cfg.get('qprio', 1))}")
    a(f"""
    s_lshl_b32 s{T0}, s{S_WAVE}, {12 if int(cfg.get("lin", 1)) else 15}
    v_lshlrev_b32 v16, 8, v2
    v_lshl_add_u32 v16, v3, 4, v16
    v_add_u32 v16, s{T0}, v16                     ; K voffset
    s_lshl_b32 s{T0}, s2, 17
    s_waitcnt lgkmcnt(0)
    s_add_u32 s{R_K}, s6, s{T0}
    s_addc_u32 s{R_K+1}, s7, 0
    s_mov_b32 s{R_K+2}, 131072
    s_mov_b32 s{R_K+3}, 0x20000
    """)
    if not earlybar: a("s_barrier")
    ws_srd()
    KB = 64
    for n in range(4):
        a(f"v_add_u32 v32, {4*n}, v3\nv_xor_b32 v{52+n}, v2, v32\nv_lshlrev_b32 v{52+n}, 4, v{52+n}\nv_lshl_add_u32 v{52+n}, v3, 8, v{52+n}")
    def kdma(T):
        a(f"""
        s_lshl_b32 s{T0}, s{S_WAVE}, 12
        s_add_u32 s{T0}, s{T0}, {T*16384}
        s_add_u32 s{T1}, s{T0}, {L_RING}
        s_mov_b32 m0, s{T1}
        s_nop 0
        """)
        for n in range(4):
            a(f"buffer_load_dwordx4 v{52+n}, {srd(R_K)}, s{T0} offen offset:{n*1024}{NT} lds")
    def kcopy(T):
        for j in range(4):
            r = KB + (T * 4 + j) * 4
            base = (56 if T < 4 else 60) + j
            a(f"ds_read_b128 {vr(r,4)}, v{base} offset:{(T*16384) % 65536}")
        if T % 2 == 1: flag_add(F_KC)
    for T in range(6): kdma(T)
    a(f"""
    s_lshl_b32 s{T0}, s{S_WAVE}, 12
    s_add_u32 s{T0}, s{T0}, {L_RING}
    v_lshlrev_b32 v32, 8, v2
    v_add_u32 v32, s{T0}, v32
    """)
    for j in range(4):
        a(f"v_add_u32 v33, {4*j}, v3\nv_xor_b32 v33, v33, v2\nv_lshl_add_u32 v{56+j}, v33, 4, v32\nv_add_u32 v{60+j}, 65536, v{56+j}")
    a("s_waitcnt vmcnt(16)")
    kcopy(0); kcopy(1)
    spin_ge(F_R3, 4)
    kdma(6); kdma(7)
    stamp()
    common_regs()
    SAP, SOP, SML = 66, 67, 60
    a(f"""
    s_mov_b32 s{R_X}, s4
    s_mov_b32 s{R_X+1}, s5
    s_mov_b32 s{R_X+2}, 4096
    s_mov_b32 s{R_X+3}, 0x20000
    s_mov_b32 s{R_OUT}, s22
    s_mov_b32 s{R_OUT+1}, s23
    s_mov_b32 s{R_OUT+2}, 4096
    s_mov_b32 s{R_OUT+3}, 0x20000
    s_lshl_b32 s{SAP}, s{S_HKV}, 16
    s_lshl_b32 s{T1}, s{S_B}, 12
    s_add_u32 s{SAP}, s{SAP}, s{T1}
    s_lshl_b32 s{T1}, s{S_S}, 9
    s_add_u32 s{SAP}, s{SAP}, s{T1}
    s_add_u32 s{SAP}, s{SAP}, {AP_OFF}
    s_lshl_b32 s{SOP}, s{S_S}, 15
    s_lshl_b32 s{T1}, s{S_H}, 8
    s_add_u32 s{SOP}, s{SOP}, s{T1}
    s_add_u32 s{SOP}, s{SOP}, {OP_OFF}
    s_lshl_b32 s{SML}, s{S_HKV}, 11
    s_lshl_b32 s{T1}, s{S_B}, 9
    s_add_u32 s{SML}, s{SML}, s{T1}
    s_lshl_b32 s{T1}, s{S_S}, 6
    s_add_u32 s{SML}, s{SML}, s{T1}
    s_add_u32 s{SML}, s{SML}, {ML_OFF}
    s_lshl_b32 s{T1}, s{S_WAVE}, 7                ; cw*128
    v_lshlrev_b32 v11, 14, v2
    v_lshl_add_u32 v11, v3, 4, v11
    v_add_u32 v11, s{T1}, v11
    s_lshl_b32 s{T1}, s{S_WAVE}, 6
    v_lshlrev_b32 v13, 13, v2
    v_lshl_add_u32 v13, v3, 4, v13
    v_add_u32 v13, s{T1}, v13
    """)
    a(f"""
    v_mul_u32_u24 v41, {P_STR}, v4
    v_lshl_add_u32 v41, v3, 4, v41
    v_add_u32 v41, {L_P}, v41
    v_lshrrev_b32 v42, 2, v2
    v_lshl_add_u32 v42, v3, 2, v42                ; key_local
    v_and_b32 v43, 7, v42
    v_lshlrev_b32 v43, 1, v43
    v_lshrrev_b32 v44, 1, v4
    s_lshl_b32 s{T0}, s{S_WAVE}, 2
    v_add_u32 v44, s{T0}, v44
    v_xor_b32 v45, v44, v43
    v_lshlrev_b32 v45, 4, v45
    v_lshl_add_u32 v45, v42, 8, v45
    v_and_b32 v48, 1, v4
    v_lshl_add_u32 v20, v48, 3, v45
    v_add_u32 v20, {L_RING}, v20
    v_add_u32 v21, 65536, v20
    v_add_u32 v44, 2, v44
    v_xor_b32 v45, v44, v43
    v_lshlrev_b32 v45, 4, v45
    v_lshl_add_u32 v45, v42, 8, v45
    v_lshl_add_u32 v22, v48, 3, v45
    v_add_u32 v22, {L_RING}, v22
    v_add_u32 v23, 65536, v22
    v_lshlrev_b32 v40, 2, v2                      ; (l&15)*4
    s_lshl_b32 s{T0}, s{S_WAVE}, 6
    v_add_u32 v39, s{T0}, v40
    s_lshl_b32 s{T0}, s{S_WAVE}, 8
    s_lshr_b32 s{T1}, s{S_WAVE}, 1
    s_lshl_b32 s{T1}, s{T1}, 6
    s_and_b32 s{T2}, s{S_WAVE}, 1
    s_lshl_b32 s{T2}, s{T2}, 3
    s_add_u32 s{T1}, s{T1}, s{T2}
    s_cmp_eq_u32 s{T1}, s{T1}
    s_cselect_b32 s{T0}, s{T1 if int(cfg.get("lin", 1)) else T0}, s{T0}
    v_mul_u32_u24 v38, {P_STR}, v2
    v_lshl_add_u32 v38, v3, 4, v38
    v_add_u32 v38, s{T0}, v38
    """)
    tag_setup()
    a(f"s_add_u32 s{T0}, s{S_EP}, 1\ns_nop 0\nv_mov_b32 v12, s{T0}\nv_not_b32 v17, v12")
    for T in range(2, 8):
        a(f"s_waitcnt vmcnt({4*(7-T)})")
        kcopy(T)
    stamp()
    spin_ge(F_QR, 4)
    QF, SS = 48, 192
    for j in range(4):
        a(f"ds_read_b128 {vr(QF+4*j,4)}, v35 offset:{L_Q+j*64}")
    a("s_waitcnt lgkmcnt(0)")
    for TP in range(4):
        for j in range(4):
            for T in (2*TP, 2*TP+1):
                c = "0" if j == 0 else vr(SS+4*T,4)
                a(f"v_mfma_f32_16x16x32_bf16 {vr(SS+4*T,4)}, {vr(KB+(T*4+j)*4,4)}, {vr(QF+4*j,4)}, {c}")
        if TP > 0:
            for p in range(4*(TP-1), 4*TP):
                x0, x1 = SS + 2*p, SS + 2*p + 1
                a(f"""
                v_cvt_pk_bf16_f32 v42, v{x0}, v{x1}
                v_lshlrev_b32 v{x0}, 16, v42
                v_and_b32 v{x1}, 0xffff0000, v42
                v_mul_f32 v{x0}, 0x{SCALE:x}, v{x0}
                v_mul_f32 v{x1}, 0x{SCALE:x}, v{x1}
                v_cvt_pk_bf16_f32 v42, v{x0}, v{x1}
                v_lshlrev_b32 v{x0}, 16, v42
                v_and_b32 v{x1}, 0xffff0000, v42
                """)
    stamp()
    a("s_nop 7")
    for p in range(12, 16):
        x0, x1 = SS + 2*p, SS + 2*p + 1
        a(f"""
        v_cvt_pk_bf16_f32 v42, v{x0}, v{x1}
        v_lshlrev_b32 v{x0}, 16, v42
        v_and_b32 v{x1}, 0xffff0000, v42
        v_mul_f32 v{x0}, 0x{SCALE:x}, v{x0}
        v_mul_f32 v{x1}, 0x{SCALE:x}, v{x1}
        v_cvt_pk_bf16_f32 v42, v{x0}, v{x1}
        v_lshlrev_b32 v{x0}, 16, v42
        v_and_b32 v{x1}, 0xffff0000, v42
        """)
    a(f"v_max3_f32 v43, v{SS}, v{SS+1}, v{SS+2}\nv_max3_f32 v44, v{SS+3}, v{SS+4}, v{SS+5}")
    for p in range(6, 30, 4):
        a(f"v_max3_f32 v43, v43, v{SS+p}, v{SS+p+1}\nv_max3_f32 v44, v44, v{SS+p+2}, v{SS+p+3}")
    a(f"v_max3_f32 v43, v43, v{SS+30}, v{SS+31}\nv_max_f32 v43, v43, v44")
    xor16("v_max_f32", 43, 42)
    xor32("v_max_f32", 43, 42)
    a(f"""
    s_mov_b64 exec, s[{M_16}:{M_16+1}]
    ds_write_b32 v39, v43 offset:{L_WM}
    s_mov_b64 exec, -1
    """)
    barrier(F_CB)
    for w in range(4):
        a(f"ds_read_b32 v{48+w}, v40 offset:{L_WM+w*64}")
    a(f"""
    s_mov_b32 s{T1}, 0x{LOG2E:x}
    s_waitcnt lgkmcnt(0)
    v_max3_f32 v46, v48, v49, v50
    v_max_f32 v46, v46, v51
    v_mul_f32 v47, s{T1}, v46
    """)
    for p in range(32):
        a(f"v_fma_f32 v{SS+p}, v{SS+p}, s{T1}, -v47")
    for p in range(32):
        a(f"v_exp_f32 v{SS+p}, v{SS+p}")
    PP = 224
    a(f"v_cvt_pk_bf16_f32 v{PP}, v{SS}, v{SS+1}")
    for p in range(1, 16):
        a(f"v_cvt_pk_bf16_f32 v{PP+p}, v{SS+2*p}, v{SS+2*p+1}")
    a(f"s_mov_b64 exec, s[{M_H4}:{M_H4+1}]")
    if int(cfg.get("lin", 1)):
        for i in range(8):
            a(f"ds_write_b64 v38, {vr(PP+2*i,2)} offset:{L_P+i*128}")
    else:
      for st in range(4):
        a(f"ds_write_b128 v38, {vr(PP+4*st,4)} offset:{L_P+st*64}")
    a("s_mov_b64 exec, -1")
    a(f"v_add_f32 v43, v{SS}, v{SS+1}\nv_add_f32 v42, v{SS+2}, v{SS+3}")
    for p in range(4, 32, 2):
        a(f"v_add_f32 v43, v43, v{SS+p}\nv_add_f32 v42, v42, v{SS+p+1}")
    a("v_add_f32 v43, v43, v42")
    xor16("v_add_f32", 43, 42)
    xor32("v_add_f32", 43, 42)
    a(f"""
    s_mov_b64 exec, s[{M_16}:{M_16+1}]
    ds_write_b32 v39, v43 offset:{L_WL}
    s_mov_b64 exec, -1
    """)
    barrier(F_CB)
    stamp()
    for w in range(4):
        a(f"ds_read_b32 v{48+w}, v40 offset:{L_WL+w*64}")
    a(f"""
    s_waitcnt lgkmcnt(0)
    v_add_f32 v47, v48, v49
    v_add_f32 v48, v50, v51
    v_add_f32 v47, v47, v48
    v_mov_b32 v28, v46
    v_mov_b32 v29, v47
    v_mov_b32 v30, v12
    v_mov_b32 v31, v17
    """)
    ACC = 184
    firstpv = [True]
    def pv(st):
        wait_piece(f"V{st}")
        for q in range(4):
            kb = 4 * st + q
            off = (kb % 8) * 8192
            b0, b1 = (20, 22) if kb < 8 else (21, 23)
            r = 64 + 12 * q
            a(f"ds_read_b128 {vr(r,4)}, v41 offset:{kb*64}")
            a(f"ds_read_b64_tr_b16 {vr(r+4,2)}, v{b0} offset:{off}")
            a(f"ds_read_b64_tr_b16 {vr(r+6,2)}, v{b0} offset:{off+4096}")
            a(f"ds_read_b64_tr_b16 {vr(r+8,2)}, v{b1} offset:{off}")
            a(f"ds_read_b64_tr_b16 {vr(r+10,2)}, v{b1} offset:{off+4096}")
        for q in range(4):
            r = 64 + 12 * q
            a(f"s_waitcnt lgkmcnt({15 - 5 * q})")
            for dt in range(2):
                c = "0" if firstpv[0] else vr(ACC+4*dt,4)
                a(f"v_mfma_f32_16x16x32_bf16 {vr(ACC+4*dt,4)}, {vr(r+4+4*dt,4)}, {vr(r,4)}, {c}")
            firstpv[0] = False
    pv(0)
    flag_add(F_P0)
    pv(1); pv(2)
    stamp()
    AG, MG, WOF, DN2 = 128, 144, 152, 168
    a(f"""
    s_lshl_b32 s{T4}, s{S_H}, 14
    s_lshl_b32 s{T1}, s{S_WAVE}, 12
    s_add_u32 s{T4}, s{T4}, s{T1}
    s_add_u32 s{T4}, s{T4}, {AP_OFF}
    s_lshl_b32 s{T5}, s{S_HKV}, 11
    s_lshl_b32 s{T2}, s{S_WAVE}, 9
    s_add_u32 s{T5}, s{T5}, s{T2}
    s_lshl_b32 s{T2}, s{S_B}, 4
    s_add_u32 s{T5}, s{T5}, s{T2}
    s_add_u32 s{T5}, s{T5}, {ML_OFF}
    v_lshrrev_b32 v33, 5, v1
    v_lshlrev_b32 v33, 6, v33
    s_lshl_b32 s{T0}, s{S_WAVE}, 8
    v_lshlrev_b32 v47, 2, v4
    v_add_u32 v47, v47, v3
    v_lshlrev_b32 v47, 4, v47
    v_add_u32 v47, s{T0}, v47
    """)
    a(f"""
    v_mov_b32 v24, v47
    s_lshl_b32 s{T2}, s{S_B}, 10
    s_lshl_b32 s{T3}, s{S_S}, 7
    s_add_u32 s{T2}, s{T2}, s{T3}
    s_lshl_b32 s{T3}, s{S_WAVE}, 5
    s_add_u32 s{T2}, s{T2}, s{T3}
    v_lshlrev_b32 v25, 3, v4
    buffer_load_dwordx2 v[26:27], v25, {srd(R_X)}, s{T2} offen
    """)
    pv(3)
    a("s_nop 7")
    tag(range(ACC, ACC+8))
    a(f"""
    s_mov_b64 exec, s[{M_H4}:{M_H4+1}]
    buffer_store_dwordx4 {vr(ACC,4)}, v11, {srd(R_WS)}, s{SAP} offen sc1
    buffer_store_dwordx4 {vr(ACC+4,4)}, v11, {srd(R_WS)}, s{SAP} offen offset:64 sc1
    s_mov_b64 exec, -1
    s_cmp_lg_u32 s{S_WAVE}, 0
    s_cbranch_scc1 L_mlst_done
    s_mov_b64 exec, 15
    buffer_store_dwordx4 v[28:31], v5, {srd(R_WS)}, s{SML} offen sc1
    s_mov_b64 exec, -1
    """)
    a.label("L_mlst_done")
    stamp()
    AGR, MS = 128, [(144,), (152,)]
    light = int(cfg.get("light", 1))
    MGS = [192, 208]
    def ml_loads(i=0):
        for m in range(4):
            a(f"buffer_load_dwordx4 {vr(MGS[i]+4*m,4)}, v33, {srd(R_WS)}, s{T5} offen offset:{m*128} sc1")
    def ap_loads(i=0):
        for m in range(4):
            a(f"buffer_load_dwordx4 {vr(AGR+4*m,4)}, v5, {srd(R_WS)}, s{T4} offen offset:{m*1024} sc1")
    grp = int(cfg.get("grp", 0))
    def between1():
        spin_ge(F_DR, 4)
        a(f"ds_read_b128 {vr(DN2,4)}, v24 offset:{L_DNP}")
        wait_piece("WO")
        for kk in range(4):
            a(f"ds_read_b64_tr_b16 {vr(WOF+4*kk,2)}, v34 offset:{kk*4096}")
            a(f"ds_read_b64_tr_b16 {vr(WOF+4*kk+2,2)}, v34 offset:{kk*4096+512}")
    def weights(mg):
        ms = [mg + 4*m for m in range(4)]
        ls = [mg + 4*m + 1 for m in range(4)]
        a(f"""
        v_max3_f32 v36, v{ms[0]}, v{ms[1]}, v{ms[2]}
        v_max_f32 v36, v36, v{ms[3]}
        """)
        xor32("v_max_f32", 36, 37)
        for m in range(4):
            a(f"v_sub_f32 v{49+m}, v{ms[m]}, v36")
        for m in range(4):
            a(f"v_mul_f32 v{49+m}, s{T2}, v{49+m}")
        for m in range(4):
            a(f"v_exp_f32 v{49+m}, v{49+m}")
        a("s_nop 0")
        a(f"v_mul_f32 v48, v49, v{ls[0]}")
        for m in range(1, 4):
            a(f"v_fmac_f32 v48, v{49+m}, v{ls[m]}")
    a(f"s_mov_b32 s{T2}, 0x{LOG2E:x}")
    if grp == 3:
        MG = MGS[0]
        def mload(m):
            a(f"buffer_load_dwordx4 {vr(MG+4*m,4)}, v33, {srd(R_WS)}, s{T5} offen offset:{m*128} sc1")
        def aload(m):
            a(f"buffer_load_dwordx4 {vr(AGR+4*m,4)}, v5, {srd(R_WS)}, s{T4} offen offset:{m*1024} sc1")
        for m in range(4): mload(m)
        for r in range(AGR, AGR+16): a(f"v_mov_b32 v{r}, 0")
        if not dnlate: between1()
        SV, SM = T3, T1
        a(f"s_mov_b32 s{SV}, 0\ns_mov_b32 s{SM}, 0\ns_mov_b32 s{S_CNT}, 0")
        a.label("L_g1_loop")
        a(f"s_waitcnt vmcnt(0)\ns_bcnt1_i32_b32 s{T0}, s{SM}")
        for m in range(4):
            g = MG + 4*m; r = AGR + 4*m
            a(f"""
            s_bitcmp1_b32 s{SV}, {m}
            s_cbranch_scc1 L_g1_s{m}
            s_bitcmp1_b32 s{SM}, {m}
            s_cbranch_scc1 L_g1_a{m}
            v_xor_b32 v36, v{g+2}, v12
            v_bitop3_b32 v36, v36, v{g+3}, v17 bitop3:0xf6
            v_cmp_ne_u32 vcc, 0, v36
            s_cbranch_vccz L_g1_m{m}
            """)
            mload(m)
            a(f"s_cmp_lt_u32 s{T0}, 3\ns_cbranch_scc1 L_g1_s{m}")
            aload(m)
            a(f"s_branch L_g1_s{m}")
            a.label(f"L_g1_m{m}")
            a(f"s_bitset1_b32 s{SM}, {m}")
            a.label(f"L_g1_a{m}")
            for e in range(4): a(f"v_xor_b32 v{r+e}, v{r+e}, v{VT[e]}")
            a(f"""
            v_or3_b32 v36, v{r}, v{r+1}, v{r+2}
            v_or_b32 v36, v36, v{r+3}
            v_and_b32 v36, v36, v{VMSK}
            v_cmp_ne_u32 vcc, 0, v36
            s_cbranch_vccnz L_g1_r{m}
            s_bitset1_b32 s{SV}, {m}
            s_branch L_g1_s{m}
            """)
            a.label(f"L_g1_r{m}")
            aload(m)
            a.label(f"L_g1_s{m}")
        a(f"""
        s_cmp_eq_u32 s{SV}, 15
        s_cbranch_scc1 L_g1_done
        s_add_u32 s{S_CNT}, s{S_CNT}, 1
        s_cmp_lt_u32 s{S_CNT}, {POLL_LIMIT}
        s_cbranch_scc1 L_g1_loop
        s_waitcnt vmcnt(0)
        """)
        a.label("L_g1_done")
        weights(MG)
        xor32("v_add_f32", 48, 37)
        a("v_rcp_f32 v48, v48")
        if dnlate: between1()
        else: a("s_nop 0")
        for m in range(4):
            a(f"v_mul_f32 v{49+m}, v{49+m}, v48")
    elif grp == 2:
        MG = MGS[0]
        def mload(m):
            a(f"buffer_load_dwordx4 {vr(MG+4*m,4)}, v33, {srd(R_WS)}, s{T5} offen offset:{m*128} sc1")
        for m in range(4): mload(m)
        SV = T3
        a(f"s_mov_b32 s{SV}, 0\ns_mov_b32 s{S_CNT}, 0")
        a.label("L_g1_loop")
        a("s_waitcnt vmcnt(0)")
        for m in range(4):
            g = MG + 4*m
            a(f"""
            s_bitcmp1_b32 s{SV}, {m}
            s_cbranch_scc1 L_g1_s{m}
            v_xor_b32 v36, v{g+2}, v12
            v_bitop3_b32 v36, v36, v{g+3}, v17 bitop3:0xf6
            v_cmp_ne_u32 vcc, 0, v36
            s_cbranch_vccnz L_g1_r{m}
            s_bitset1_b32 s{SV}, {m}
            s_branch L_g1_s{m}
            """)
            a.label(f"L_g1_r{m}")
            mload(m)
            a.label(f"L_g1_s{m}")
        a(f"""
        s_cmp_eq_u32 s{SV}, 15
        s_cbranch_scc1 L_g1_done
        s_add_u32 s{S_CNT}, s{S_CNT}, 1
        s_cmp_lt_u32 s{S_CNT}, {POLL_LIMIT}
        s_cbranch_scc1 L_g1_loop
        s_waitcnt vmcnt(0)
        """)
        a.label("L_g1_done")
        ap_loads()
        weights(MG)
        between1()
        xor32("v_add_f32", 48, 37)
        a("v_rcp_f32 v48, v48")
        a("s_nop 0")
        for m in range(4):
            a(f"v_mul_f32 v{49+m}, v{49+m}, v48")
        poll("ap", list(range(AGR, AGR+16)), ap_loads, 36, "s_waitcnt vmcnt(0)")
    elif grp:
        MG = MGS[0]
        def gload(m):
            a(f"buffer_load_dwordx4 {vr(AGR+4*m,4)}, v5, {srd(R_WS)}, s{T4} offen offset:{m*1024} sc1")
            a(f"buffer_load_dwordx4 {vr(MG+4*m,4)}, v33, {srd(R_WS)}, s{T5} offen offset:{m*128} sc1")
        for m in range(4): gload(m)
        if not dnlate: between1()
        SV = T3
        a(f"s_mov_b32 s{SV}, 0\ns_mov_b32 s{S_CNT}, 0")
        a.label("L_g1_loop")
        a("s_waitcnt vmcnt(0)")
        for m in range(4):
            a(f"s_bitcmp1_b32 s{SV}, {m}\ns_cbranch_scc1 L_g1_s{m}")
            r = AGR + 4*m; g = MG + 4*m
            for e in range(4): a(f"v_xor_b32 v{r+e}, v{r+e}, v{VT[e]}")
            a(f"""
            v_or3_b32 v36, v{r}, v{r+1}, v{r+2}
            v_or_b32 v36, v36, v{r+3}
            v_and_b32 v36, v36, v{VMSK}
            v_bitop3_b32 v36, v36, v{g+2}, v12 bitop3:0xf6
            v_bitop3_b32 v36, v36, v{g+3}, v17 bitop3:0xf6
            v_cmp_ne_u32 vcc, 0, v36
            s_cbranch_vccnz L_g1_r{m}
            s_bitset1_b32 s{SV}, {m}
            s_branch L_g1_s{m}
            """)
            a.label(f"L_g1_r{m}")
            gload(m)
            a.label(f"L_g1_s{m}")
        a(f"""
        s_cmp_eq_u32 s{SV}, 15
        s_cbranch_scc1 L_g1_done
        s_add_u32 s{S_CNT}, s{S_CNT}, 1
        s_cmp_lt_u32 s{S_CNT}, {POLL_LIMIT}
        s_cbranch_scc1 L_g1_loop
        s_waitcnt vmcnt(0)
        """)
        a.label("L_g1_done")
        weights(MG)
        xor32("v_add_f32", 48, 37)
        a("v_rcp_f32 v48, v48")
        if dnlate: between1()
        else: a("s_nop 0")
        for m in range(4):
            a(f"v_mul_f32 v{49+m}, v{49+m}, v48")
    else:
        ml_loads(0)
        def consume_ml(i):
            ap_loads()
            weights(MGS[i])
        NS1 = int(cfg.get("ns1", 2))
        poll_stag("ml", [list(range(g, g+16)) for g in MGS[:NS1]], ml_loads, 4, 36, int(cfg.get("gap1", 3)), consume_ml, None, 0)
        between1()
        xor32("v_add_f32", 48, 37)
        a("v_rcp_f32 v48, v48")
        a("s_nop 0")
        for m in range(4):
            a(f"v_mul_f32 v{49+m}, v{49+m}, v48")
        poll("ap", list(range(AGR, AGR+16)), ap_loads, 36, "s_waitcnt vmcnt(0)")
    stamp()
    for e in range(4):
        a(f"v_mul_f32 v{44+e}, v49, v{AGR+e}")
    for m in range(1, 4):
        for e in range(4):
            a(f"v_fmac_f32 v{44+e}, v{49+m}, v{AGR+4*m+e}")
    xorN(32, "v_add_f32", [44,45,46,47], [36,37,38,39])
    a(f"""
    v_cvt_pk_bf16_f32 v42, v44, v45
    v_cvt_pk_bf16_f32 v43, v46, v47
    s_mul_i32 s{T2}, s{S_WAVE}, {Q_STR}
    v_lshlrev_b32 v41, 3, v1
    v_add_u32 v41, s{T2}, v41
    s_mov_b32 exec_lo, -1
    s_mov_b32 exec_hi, 0
    ds_write_b64 v41, v[42:43] offset:{L_OB}
    s_mov_b64 exec, -1
    """)
    barrier(F_CB)
    OF = 172
    for kk in range(4):
        a(f"ds_read_b128 {vr(OF+4*kk,4)}, v35 offset:{L_OB+kk*64}")
    for kk in range(4):
        a(f"s_waitcnt lgkmcnt({3-kk})")
        a(f"v_mfma_f32_16x16x32_bf16 {vr(DN2,4)}, {vr(WOF+4*kk,4)}, {vr(OF+4*kk,4)}, {vr(DN2,4)}")
    a("s_nop 7")
    tag(range(DN2, DN2+4))
    a(f"""
    s_mov_b64 exec, s[{M_H4}:{M_H4+1}]
    """)
    dual = int(cfg.get("dual", 1))
    if dual:
        a(f"s_add_u32 s{T0}, s{SOP}, {OPA_OFF - OP_OFF}")
        a(f"buffer_store_dwordx4 {vr(DN2,4)}, v13, {srd(R_WS)}, s{T0} offen")
    a(f"""
    buffer_store_dwordx4 {vr(DN2,4)}, v13, {srd(R_WS)}, s{SOP} offen sc1
    s_mov_b64 exec, -1
    """)
    stamp()
    a(f"""
    s_cmp_lg_u32 s{S_HKV}, 0
    s_cbranch_scc1 L_end
    s_lshl_b32 s{T0}, s{S_S}, 2
    s_add_u32 s{T0}, s{T0}, s{S_B}
    s_lshl_b32 s{T0}, s{T0}, 13
    s_lshl_b32 s{T1}, s{S_WAVE}, 6
    s_add_u32 s{T0}, s{T0}, s{T1}
    s_add_u32 s{T0}, s{T0}, {OP_OFF}
    s_add_u32 s{T1}, s{T0}, 4096                  ; heads 16..31
    s_lshl_b32 s{T2}, s{S_B}, 10
    s_lshl_b32 s{T3}, s{S_S}, 7
    s_add_u32 s{T2}, s{T2}, s{T3}
    s_lshl_b32 s{T3}, s{S_WAVE}, 5
    s_add_u32 s{T2}, s{T2}, s{T3}
    v_lshrrev_b32 v32, 2, v1
    v_lshlrev_b32 v32, 8, v32
    v_lshl_add_u32 v32, v4, 4, v32                ; (l>>2)*256 + (l&3)*16
    v_lshlrev_b32 v33, 3, v4                      ; (l&3)*8
    """)
    FGS = [224, 232, 240]
    NS2 = int(cfg.get("ns2", 2))
    if dual:
        a(f"s_add_u32 s{T4}, s{T0}, {OPA_OFF - OP_OFF}\ns_add_u32 s{T5}, s{T1}, {OPA_OFF - OP_OFF}")
    def fin_loads(i=0):
        b0, b1 = (T0, T1)
        if dual and i % 2 == 0: b0, b1 = T4, T5
        a(f"buffer_load_dwordx4 {vr(FGS[i],4)}, v32, {srd(R_WS)}, s{b0} offen sc1")
        a(f"buffer_load_dwordx4 {vr(FGS[i]+4,4)}, v32, {srd(R_WS)}, s{b1} offen sc1")
    FG = 44
    def consume2(i):
        f = FGS[i]
        for e in range(4):
            a(f"v_add_f32 v{FG+e}, v{f+e}, v{f+4+e}")
    if dual:
        def aloads(i):
            a(f"buffer_load_dwordx4 {vr(FGS[i],4)}, v32, {srd(R_WS)}, s{T4} offen sc1")
            a(f"buffer_load_dwordx4 {vr(FGS[i]+4,4)}, v32, {srd(R_WS)}, s{T5} offen sc1")
        aloads(0); aloads(2)
        a(f"s_mov_b32 s{S_CNT}, 0")
        a.label("L_fa_loop")
        for i in (0, 2):
            a("s_waitcnt vmcnt(2)")
            check(list(range(FGS[i], FGS[i]+8)), 38)
            a(f"s_cbranch_vccz L_fin_ok{i}")
            aloads(i)
        a(f"""
        s_add_u32 s{S_CNT}, s{S_CNT}, 1
        s_cmp_lt_u32 s{S_CNT}, {int(cfg.get("fastn", 10))}
        s_cbranch_scc1 L_fa_loop
        s_waitcnt vmcnt(0)
        """)
        fin_loads(0); fin_loads(1)
        a(f"s_mov_b32 s{S_CNT}, 0")
        a.label("L_fin_loop")
        for i in (0, 1):
            a("s_waitcnt vmcnt(2)")
            check(list(range(FGS[i], FGS[i]+8)), 38)
            a(f"s_cbranch_vccz L_fin_ok{i}")
            fin_loads(i)
        a(f"""
        s_add_u32 s{S_CNT}, s{S_CNT}, 1
        s_cmp_lt_u32 s{S_CNT}, {POLL_LIMIT}
        s_cbranch_scc1 L_fin_loop
        s_waitcnt vmcnt(0)
        """)
        for i in (0, 1, 2):
            a.label(f"L_fin_ok{i}")
            consume2(i)
            if i != 2: a("s_branch L_fin_done")
        a.label("L_fin_done")
    else:
        fin_loads(0)
        poll_stag("fin", [list(range(f, f+8)) for f in FGS[:NS2]], fin_loads, 2, 38, int(cfg.get("gap2", 3)), consume2)
    stamp()
    for ctl in ("row_ror:4", "row_ror:8"):
        a("s_nop 1")
        for e in range(4):
            a(f"v_add_f32_dpp v{FG+e}, v{FG+e}, v{FG+e} {ctl} row_mask:0xf bank_mask:0xf")
    a("s_nop 0")
    xorN(16, "v_add_f32", [FG, FG+1, FG+2, FG+3], [38,39,40,41])
    xorN(32, "v_add_f32", [FG, FG+1, FG+2, FG+3], [38,39,40,41])
    a(f"""
    v_lshlrev_b32 v40, 16, v26
    v_and_b32 v41, 0xffff0000, v26
    v_lshlrev_b32 v42, 16, v27
    v_and_b32 v43, 0xffff0000, v27
    v_add_f32 v40, v40, v{FG}
    v_add_f32 v41, v41, v{FG+1}
    v_add_f32 v42, v42, v{FG+2}
    v_add_f32 v43, v43, v{FG+3}
    v_cvt_pk_bf16_f32 v40, v40, v41
    v_cvt_pk_bf16_f32 v41, v42, v43
    s_mov_b64 exec, 15
    buffer_store_dwordx2 v[40:41], v33, {srd(R_OUT)}, s{T2} offen
    s_mov_b64 exec, -1
    s_cmp_lg_u32 s{S_WAVE}, 0
    s_cbranch_scc1 L_end
    s_cmp_lg_u32 s2, 0
    s_cbranch_scc1 L_end
    s_add_u32 s{S_EP}, s{S_EP}, 1
    v_mov_b32 v40, s{S_EP}
    v_mov_b32 v41, 0
    s_mov_b32 s{T1}, {EP_OFF}
    s_mov_b64 exec, 1
    buffer_store_dword v40, v41, {srd(R_WS)}, s{T1} offen sc1
    s_mov_b64 exec, -1
    """)
    a.label("L_end")
    if stamps:
        a(f"s_cmp_lg_u32 s{S_WAVE}, 0\ns_cbranch_scc1 L_exit")
        a(f"s_memrealtime s[{STAMP_REGS[NSTAMP-1]}:{STAMP_REGS[NSTAMP-1]+1}]")
        a(f"s_mov_b32 s{STAMP_REGS[10]}, s{S_CNT}\ns_mov_b32 s{STAMP_REGS[10]+1}, 0")
        a(f"""
        s_waitcnt lgkmcnt(0)
        s_add_u32 s{R_WS}, s{R_WS}, {STAMP_OFF}
        s_addc_u32 s{R_WS+1}, s{R_WS+1}, 0
        s_lshl_b32 s{T0}, s2, 1
        s_add_u32 s{T0}, s{T0}, s{S_ROLE}
        s_mul_i32 s{T0}, s{T0}, {NSTAMP*8}
        v_mov_b32 v2, s{T0}
        s_mov_b64 exec, 1
        """)
        for i in range(NSTAMP):
            r = STAMP_REGS[i]
            a(f"v_mov_b32 v4, s{r}\nv_mov_b32 v5, s{r+1}\nbuffer_store_dwordx2 v[4:5], v2, {srd(R_WS)}, 0 offen offset:{i*8}\ns_nop 1")
        print("stamps: X used", x_stamps, "Q used", nstamp[0])
    a.label("L_exit")
    a("s_endpgm")
    launch = f"grid=(256,1,1) block=(512,1,1) lds={L_END}"
    return file_text([launch], a.text(), [descriptor(kn, 256, 102)])

if __name__ == "__main__":
    out = sys.argv[1] if len(sys.argv) > 1 else "cdna_kernels/" + NAME + ".s"
    cfg = dict(kv.split("=") for kv in sys.argv[2:] if "=" in kv)
    open(out, "w").write(gen(stamps=("stamps" in sys.argv), cfg=cfg))
    print("wrote", out, "LDS", L_END)
```

```python
import sys
from asmlib import *

QP_OFF = 0x000000
GU_OFF = 0x040000
AP_OFF = 0x080000
ML_OFF = 0x100000
OP_OFF = 0x110000
OPA_OFF = 0x150000
EP_OFF = 0x1F0000
WS_SIZE = 0x200000
STAMP_OFF = 268435456 - (1 << 20)
import os
TAGMASK = int(os.environ.get('TAGMASK', '0x0F'), 0)

P_STR = 1040
Q_STR = 272
H_STR = 144
L_FL = 0
L_P = 64
L_XQ = L_P + 4 * P_STR
L_XG = L_XQ + 4 * Q_STR
L_Q = L_XG + 4 * Q_STR
L_OB = L_Q + 4 * Q_STR
L_H = L_OB + 4 * Q_STR
L_WM = L_H + 4 * H_STR
L_WL = L_WM + 256
L_DNP = L_WL + 256
L_SMALL_END = L_DNP + 1024
L_T0 = 11264
assert L_SMALL_END <= L_T0
L_RING = L_T0 + 16384
L_END = L_RING + 131072
L_GUT = L_RING + 98304
L_DNT = L_GUT + 16384
F_LPROG, F_CB, F_XB, F_QR, F_DR, F_P0, F_KC, F_R3 = 0, 16, 20, 24, 28, 32, 36, 40

LOG2E = 0x3FB8AA3B
SCALE = 0x3DB504F3
POLL_LIMIT = 20000
SPIN_LIMIT = 200000

S_WAVE, S_B, S_HKV, S_S, S_H = 28, 29, 30, 31, 32
T0, T1, T2, T3, T4, T5, T6 = 33, 34, 35, 36, 37, 38, 39
R_X, R_K, R_V, R_WQ, R_GU, R_DN, R_WO, R_WS, R_OUT = 40, 44, 48, 52, 56, 60, 64, 68, 76
S_EP = 72
S_PROG = 73
S_ROLE = 74
M_H4 = 80
M_16 = 82
M_T = 84
S_CNT = 86
S_SP = 87
STAMP_REGS = [90, 92, 94, 96, 98, 100, 4, 6, 8, 10, 12, 14]
NSTAMP = 12

def srd(r): return f"s[{r}:{r+3}]"
def vr(a, n): return f"v[{a}:{a+n-1}]"

def gen(stamps=False, nt=True, cfg=None):
    cfg = cfg or {}
    a = Asm()
    kn = NAME + "_kernel"
    NT = " nt" if nt else ""
    if "ldflags" in cfg: NT = (" " + cfg["ldflags"].replace("+", " ")) if cfg["ldflags"] != "none" else ""
    D = int(cfg.get("D", 12))
    nstamp = [0]; uid = [0]
    dnlate = int(cfg.get("dnlate", 0))
    def lab(p):
        uid[0] += 1
        return f"L_{p}_{uid[0]}"
    def stamp():
        if stamps:
            i = nstamp[0]; nstamp[0] += 1
            assert i < NSTAMP
            r = STAMP_REGS[i]
            a(f"s_memrealtime s[{r}:{r+1}]")
    def xor16(op, v, t):
        a(f"v_mov_b32 v{t}, v{v}\ns_nop 1\nv_permlane16_swap_b32 v{v}, v{t}\ns_nop 0\n{op} v{v}, v{v}, v{t}")
    def xor32(op, v, t):
        a(f"v_mov_b32 v{t}, v{v}\ns_nop 1\nv_permlane32_swap_b32 v{v}, v{t}\ns_nop 0\n{op} v{v}, v{v}, v{t}")
    def xorN(kind, op, regs, tmps):
        for v, t in zip(regs, tmps): a(f"v_mov_b32 v{t}, v{v}")
        a("s_nop 1")
        for v, t in zip(regs, tmps): a(f"v_permlane{kind}_swap_b32 v{v}, v{t}")
        a("s_nop 0")
        for v, t in zip(regs, tmps): a(f"{op} v{v}, v{v}, v{t}")
    def wave_sum(v, t):
        for ctl in ["quad_perm:[1,0,3,2]", "quad_perm:[2,3,0,1]", "row_half_mirror", "row_mirror"]:
            a(f"s_nop 1\nv_add_f32_dpp v{v}, v{v}, v{v} {ctl} row_mask:0xf bank_mask:0xf")
        a("s_nop 0")
        xor16("v_add_f32", v, t)
        xor32("v_add_f32", v, t)
    def rne(dst, src):
        a(f"v_cvt_pk_bf16_f32 v{dst}, v{src}, v{src}\nv_lshlrev_b32 v{dst}, 16, v{dst}")

    VF, VONE, VS = 14, 15, 252
    VTAG, VMSK = 6, 7
    VT = [6, 8, 13, 112]
    def spin_ge(off, val, four=False, keep=None):
        l0, l1 = lab("sp"), lab("spd")
        if keep is not None:
            a(f"s_cmp_ge_u32 s{keep}, {val}\ns_cbranch_scc1 {l1}")
        dst = keep if keep is not None else T6
        a(f"s_mov_b32 s{S_SP}, 0")
        a.label(l0)
        if four:
            a(f"ds_read_b128 {vr(VS,4)}, v{VF} offset:{off}\ns_waitcnt lgkmcnt(0)")
            a(f"v_min_u32 v{VS}, v{VS}, v{VS+1}\nv_min3_u32 v{VS}, v{VS}, v{VS+2}, v{VS+3}")
        else:
            a(f"ds_read_b32 v{VS}, v{VF} offset:{off}\ns_waitcnt lgkmcnt(0)")
        a(f"""
        s_nop 0
        v_readfirstlane_b32 s{dst}, v{VS}
        s_add_u32 s{S_SP}, s{S_SP}, 1
        s_cmp_ge_u32 s{dst}, {val}
        s_cbranch_scc1 {l1}
        s_cmp_ge_u32 s{S_SP}, {SPIN_LIMIT}
        s_cbranch_scc1 {l1}
        s_sleep 1
        s_branch {l0}
        """)
        a.label(l1)
    def flag_add(off):
        a(f"s_mov_b64 exec, 1\nds_add_u32 v{VF}, v{VONE} offset:{off}\ns_mov_b64 exec, -1")
    nb = {F_CB: 0, F_XB: 0}
    def b_arrive(f):
        nb[f] += 1
        flag_add(f)
        return nb[f]
    def b_wait(f, n):
        spin_ge(f, 4 * n)
    def barrier(f):
        b_wait(f, b_arrive(f))
    PIECES = ["V0", "V1", "V2", "V3", "WO"]
    pidx = {p: i + 1 for i, p in enumerate(PIECES)}
    def wait_piece(p):
        spin_ge(F_LPROG, pidx[p], four=True, keep=S_PROG)
    def tag(regs):
        for i, r in enumerate(regs): a(f"v_bfi_b32 v{r}, v{VMSK}, v{VT[i % 4]}, v{r}")
    def poll(name, regs, loads, acc, first_wait, backoff=0):
        a(f"s_mov_b32 s{S_CNT}, 0\n{first_wait}")
        a.label(f"L_{name}_chk")
        check(regs, acc)
        a(f"""
        s_cbranch_vccz L_{name}_ok
        s_add_u32 s{S_CNT}, s{S_CNT}, 1
        s_cmp_ge_u32 s{S_CNT}, {POLL_LIMIT}
        s_cbranch_scc1 L_{name}_ok
        """)
        if backoff: a(f"s_sleep {backoff}")
        loads()
        a(f"s_waitcnt vmcnt(0)\ns_branch L_{name}_chk")
        a.label(f"L_{name}_ok")
    def check(regs, acc, per=4):
        for i, r in enumerate(regs):
            a(f"v_xor_b32 v{r}, v{r}, v{VT[i % per]}")
        rs = list(regs)
        a(f"v_or3_b32 v{acc}, v{rs[0]}, v{rs[1]}, v{rs[2]}")
        k = 3
        while k + 1 < len(rs):
            a(f"v_or3_b32 v{acc}, v{acc}, v{rs[k]}, v{rs[k+1]}"); k += 2
        if k < len(rs):
            a(f"v_or_b32 v{acc}, v{acc}, v{rs[k]}")
        a(f"v_and_b32 v{acc}, v{acc}, v{VMSK}\nv_cmp_ne_u32 vcc, 0, v{acc}")
    def check_ml(regs, acc):
        for k in range(0, len(regs), 4):
            if k == 0:
                a(f"v_xor_b32 v{acc}, v{regs[2]}, v12")
            else:
                a(f"v_bitop3_b32 v{acc}, v{acc}, v{regs[k+2]}, v12 bitop3:0xf6")
            a(f"v_bitop3_b32 v{acc}, v{acc}, v{regs[k+3]}, v17 bitop3:0xf6")
        a(f"v_cmp_ne_u32 vcc, 0, v{acc}")
    def poll_stag(name, sets, loads, nloads, acc, gap, consume, between=None, per=4):
        n = len(sets)
        for i in range(1, n):
            if gap: a(f"s_sleep {gap}")
            loads(i)
        if between: between()
        a(f"s_mov_b32 s{S_CNT}, 0")
        a.label(f"L_{name}_loop")
        for i in range(n):
            a(f"s_waitcnt vmcnt({(n-1)*nloads})")
            (check_ml(sets[i], acc) if per == 0 else check(sets[i], acc, per))
            a(f"s_cbranch_vccz L_{name}_ok{i}")
            loads(i)
        a(f"""
        s_add_u32 s{S_CNT}, s{S_CNT}, 1
        s_cmp_lt_u32 s{S_CNT}, {POLL_LIMIT}
        s_cbranch_scc1 L_{name}_loop
        s_waitcnt vmcnt(0)
        """)
        for i in range(n):
            a.label(f"L_{name}_ok{i}")
            consume(i)
            if i != n - 1: a(f"s_branch L_{name}_done")
        a.label(f"L_{name}_done")
    def tag_setup():
        a(f"""
        v_readfirstlane_b32 s{S_EP}, v{VTAG}
        v_add_u32 v{VTAG}, 1, v{VTAG}
        """)
        for e in (3, 2, 1):
            a(f"v_add_u32 v{VT[e]}, {e * 0x35}, v{VTAG}\nv_and_b32 v{VT[e]}, {TAGMASK}, v{VT[e]}")
        a(f"v_and_b32 v{VTAG}, {TAGMASK}, v{VTAG}")
    def ws_srd():
        a(f"""
        s_mov_b32 s{R_WS}, s26
        s_mov_b32 s{R_WS+1}, s27
        s_mov_b32 s{R_WS+2}, {WS_SIZE}
        s_mov_b32 s{R_WS+3}, 0x20000
        s_mov_b32 s{T1}, {EP_OFF}
        v_mov_b32 v33, 0
        buffer_load_dword v{VTAG}, v33, {srd(R_WS)}, s{T1} offen sc1
        """)
    def common_regs():
        a(f"""
        s_mov_b32 s{M_H4}, 0x000F000F
        s_mov_b32 s{M_H4+1}, 0x000F000F
        s_mov_b32 s{M_16}, 0xFFFF
        s_mov_b32 s{M_16+1}, 0
        v_mov_b32 v{VMSK}, {TAGMASK}
        v_lshrrev_b32 v32, 2, v2
        v_lshl_add_u32 v32, v3, 3, v32
        v_lshlrev_b32 v32, 7, v32
        v_lshl_add_u32 v34, v4, 3, v32
        s_lshl_b32 s{T3}, s{S_WAVE}, 5
        s_add_u32 s{T3}, s{T3}, {L_T0}
        v_add_u32 v34, s{T3}, v34                     ; T0 + (8g+r)*128 + t*32 + c4*8
        v_mul_u32_u24 v35, {Q_STR}, v4
        v_lshl_add_u32 v35, v3, 4, v35                ; (l&3)*272 + g*16
        v_lshlrev_b32 v5, 4, v1                       ; l*16
        """)

    kernel_begin(a, kn)
    a(f"""
    s_cmp_ge_u32 s2, 256
    s_cbranch_scc1 L_exit
    s_load_dwordx16 s[4:19], s[0:1], 0
    s_load_dwordx8 s[20:27], s[0:1], 64
    """)
    stamp()
    for _ in range(int(cfg.get("diag_sleep", 0))): a("s_sleep 100")
    a(f"""
    v_and_b32 v1, 63, v0
    v_lshrrev_b32 v32, 6, v0
    v_and_b32 v2, 15, v1
    v_readfirstlane_b32 s{S_WAVE}, v32
    v_lshrrev_b32 v3, 4, v1
    v_and_b32 v4, 3, v1
    v_mov_b32 v{VF}, {L_FL}
    v_mov_b32 v{VONE}, 1
    s_lshr_b32 s{S_B}, s2, 6
    s_bfe_u32 s{S_HKV}, s2, 0x30003
    s_and_b32 s{S_S}, s2, 7
    s_lshl_b32 s{S_H}, s{S_HKV}, 2
    s_add_u32 s{S_H}, s{S_H}, s{S_B}
    s_mov_b32 s{S_PROG}, 0
    s_cmp_lg_u32 s{S_WAVE}, 0
    s_cbranch_scc1 L_noinit
    v_lshlrev_b32 v32, 2, v1
    v_mov_b32 v33, 0
    s_mov_b64 exec, 0xFFFF
    ds_write_b32 v32, v33 offset:{L_FL}
    s_mov_b64 exec, -1
    s_waitcnt lgkmcnt(0)
    """)
    a.label("L_noinit")
    earlybar = int(cfg.get("earlybar", 0))
    if earlybar: a("s_barrier")
    a(f"""
    s_lshr_b32 s{S_ROLE}, s{S_WAVE}, 2
    s_and_b32 s{S_WAVE}, s{S_WAVE}, 3
    s_cmp_eq_u32 s{S_ROLE}, 0
    s_cbranch_scc1 L_qwave
    """)
    start_stamp = nstamp[0]
    a(f"""
    s_setprio 3
    v_lshlrev_b32 v5, 4, v1
    s_lshl_b32 s{T0}, s{S_WAVE}, 10
    v_lshrrev_b32 v36, 3, v1
    v_and_b32 v37, 7, v1
    v_lshlrev_b32 v37, 4, v37
    v_lshl_add_u32 v22, v36, 13, v37
    s_lshl_b32 s{T2}, s{S_B}, 20
    s_lshl_b32 s{T1}, s{S_HKV}, 10
    s_add_u32 s{T2}, s{T2}, s{T1}
    s_lshl_b32 s{T1}, s{S_S}, 7
    s_add_u32 s{T4}, s{T2}, s{T1}
    s_waitcnt lgkmcnt(0)
    s_mov_b32 s{R_X}, s4
    s_mov_b32 s{R_X+1}, s5
    s_mov_b32 s{R_X+2}, 4096
    s_mov_b32 s{R_X+3}, 0x20000
    buffer_load_dwordx4 v[24:27], v5, {srd(R_X)}, s{T0} offen
    s_add_u32 s{R_WQ}, s10, s{T4}
    s_addc_u32 s{R_WQ+1}, s11, 0
    s_mov_b32 s{R_WQ+2}, {127*8192+128}
    s_mov_b32 s{R_WQ+3}, 0x20000
    """)
    ws_srd()
    def tile_dma(p):
        n_per = 2 if p == "DN" else 4
        stride = {"WQ": 8192, "GU": 3584, "WO": 1024, "DN": 1024}[p]
        vo = {"WQ": 22, "GU": 23, "WO": 21, "DN": 21}[p]
        R = {"WQ": R_WQ, "GU": R_GU, "WO": R_WO, "DN": R_DN}[p]
        LB = {"WQ": L_T0, "GU": L_GUT, "WO": L_T0, "DN": (L_RING if dnlate else L_DNT)}[p]
        out = []
        for q in range(n_per):
            def f(q=q):
                if q == 0:
                    a(f"""
                    s_mul_i32 s{T1}, s{S_WAVE}, {n_per*8*stride}
                    s_mul_i32 s{T0}, s{S_WAVE}, {n_per*1024}
                    s_add_u32 s{T0}, s{T0}, {LB}
                    """)
                else:
                    a(f"s_add_u32 s{T1}, s{T1}, {8*stride}\ns_add_u32 s{T0}, s{T0}, 1024")
                a(f"""
                s_mov_b32 m0, s{T0}
                s_nop 0
                buffer_load_dwordx4 v{vo}, {srd(R)}, s{T1} offen{NT} lds
                """)
            out.append(f)
        return out
    for f in tile_dma("WQ"): f()
    if not earlybar: a("s_barrier")
    a(f"""
    v_mul_u32_u24 v23, 3584, v36
    v_add_u32 v23, v23, v37
    v_lshl_add_u32 v21, v36, 10, v37
    s_and_b32 s{T0}, s{S_S}, 1
    s_cmp_eq_u32 s{T0}, 0
    s_cselect_b32 s{T2}, s16, s18
    s_cselect_b32 s{T3}, s17, s19
    s_lshr_b32 s{T0}, s{S_S}, 1
    s_mul_i32 s{T0}, s{T0}, {128*3584}
    s_lshl_b32 s{T1}, s{S_H}, 7
    s_add_u32 s{T0}, s{T0}, s{T1}
    s_add_u32 s{R_GU}, s{T2}, s{T0}
    s_addc_u32 s{R_GU+1}, s{T3}, 0
    s_cmp_lt_u32 s{S_H}, 28
    s_cselect_b32 s{R_GU+2}, {127*3584+128}, 0
    s_mov_b32 s{R_GU+3}, 0x20000
    """)
    for f in tile_dma("GU"): f()
    a(f"""
    s_lshl_b32 s{T0}, s{S_H}, 16
    s_lshl_b32 s{T1}, s{S_S}, 7
    s_add_u32 s{T0}, s{T0}, s{T1}
    s_add_u32 s{R_DN}, s20, s{T0}
    s_addc_u32 s{R_DN+1}, s21, 0
    s_cmp_lt_u32 s{S_H}, 28
    s_cselect_b32 s{R_DN+2}, {63*1024+128}, 0
    s_mov_b32 s{R_DN+3}, 0x20000
    """)
    if not dnlate:
        for f in tile_dma("DN"): f()
    pret = int(cfg.get("pret", 0))
    if pret:
        a(f"""
        s_lshl_b32 s{T0}, s{S_B}, 16
        s_lshl_b32 s{T1}, s{S_HKV}, 11
        s_add_u32 s{T0}, s{T0}, s{T1}
        s_lshl_b32 s{T1}, s{S_S}, 8
        s_add_u32 s{T0}, s{T0}, s{T1}
        s_lshl_b32 s{T1}, s{S_H}, 13
        s_lshl_b32 s{T2}, s{S_S}, 10
        s_add_u32 s{T1}, s{T1}, s{T2}
        s_add_u32 s{T1}, s{T1}, {GU_OFF}
        s_lshl_b32 s{T2}, s{S_HKV}, 16
        s_lshl_b32 s{T3}, s{S_B}, 12
        s_add_u32 s{T2}, s{T2}, s{T3}
        s_lshl_b32 s{T3}, s{S_S}, 9
        s_add_u32 s{T2}, s{T2}, s{T3}
        s_add_u32 s{T2}, s{T2}, {AP_OFF}
        s_lshl_b32 s{T3}, s{S_S}, 15
        s_lshl_b32 s{T4}, s{S_H}, 8
        s_add_u32 s{T3}, s{T3}, s{T4}
        s_add_u32 s{T3}, s{T3}, {OP_OFF}
        s_lshl_b32 s{T4}, s{S_HKV}, 11
        s_lshl_b32 s{T5}, s{S_B}, 9
        s_add_u32 s{T4}, s{T4}, s{T5}
        s_lshl_b32 s{T5}, s{S_S}, 6
        s_add_u32 s{T4}, s{T4}, s{T5}
        s_add_u32 s{T4}, s{T4}, {ML_OFF}
        s_cmp_eq_u32 s{S_WAVE}, 0
        s_cbranch_scc1 L_pt0
        s_cmp_eq_u32 s{S_WAVE}, 3
        s_cbranch_scc1 L_pt3
        v_lshrrev_b32 v100, 5, v1
        v_and_b32 v101, 31, v1
        v_lshlrev_b32 v100, 14, v100
        v_lshl_add_u32 v100, v101, 4, v100
        s_sub_u32 s{T5}, s{S_WAVE}, 1
        s_lshl_b32 s{T5}, s{T5}, 15
        s_add_u32 s{T2}, s{T2}, s{T5}
        buffer_load_dwordx4 v[104:107], v100, {srd(R_WS)}, s{T2} offen sc1
        buffer_load_dword v108, v100, {srd(R_WS)}, s{T2} offen sc1
        s_branch L_ptd
        """)
        a.label("L_pt0")
        a(f"""
        v_lshlrev_b32 v100, 14, v3
        v_lshl_add_u32 v100, v2, 4, v100
        buffer_load_dwordx4 v[104:107], v100, {srd(R_WS)}, s{T0} offen sc1
        buffer_load_dwordx4 v[108:111], v5, {srd(R_WS)}, s{T1} offen sc1
        s_branch L_ptd
        """)
        a.label("L_pt3")
        a(f"""
        v_lshlrev_b32 v100, 13, v3
        v_lshl_add_u32 v100, v2, 4, v100
        buffer_load_dwordx4 v[104:107], v100, {srd(R_WS)}, s{T3} offen sc1
        v_and_b32 v101, 3, v1
        v_lshlrev_b32 v101, 4, v101
        buffer_load_dwordx4 v[108:111], v101, {srd(R_WS)}, s{T4} offen sc1
        """)
        a.label("L_ptd")
    common_regs()
    npf = int(cfg.get("codepf", 0))
    a(f"""
    s_lshl_b32 s{T0}, s2, 17
    s_add_u32 s{R_V}, s8, s{T0}
    s_addc_u32 s{R_V+1}, s9, 0
    s_mov_b32 s{R_V+2}, 131072
    s_mov_b32 s{R_V+3}, 0x20000
    s_lshl_b32 s{T0}, s{S_H}, 17
    s_lshl_b32 s{T1}, s{S_S}, 7
    s_add_u32 s{T0}, s{T0}, s{T1}
    s_add_u32 s{R_WO}, s12, s{T0}
    s_addc_u32 s{R_WO+1}, s13, 0
    s_mov_b32 s{R_WO+2}, {127*1024+128}
    s_mov_b32 s{R_WO+3}, 0x20000
    """)
    for v in range(2):
        a(f"v_lshlrev_b32 v36, 1, v3\nv_add_u32 v36, {8*v}, v36\nv_xor_b32 v{16+v}, v2, v36\nv_lshlrev_b32 v{16+v}, 4, v{16+v}\nv_lshl_add_u32 v{16+v}, v3, 8, v{16+v}")
    if int(cfg.get("lin", 1)):
        a(f"""
        s_and_b32 s{T0}, s{S_WAVE}, 1
        s_cmp_eq_u32 s{T0}, 1
        s_cselect_b64 vcc, -1, 0
        v_cndmask_b32 v16, v16, v17, vcc
        """)
    SQP, SGU = 78, 79
    a(f"""
    s_lshl_b32 s{T4}, s{S_WAVE}, 2
    s_add_u32 s{T4}, s{T4}, {L_FL + F_LPROG}
    v_mov_b32 v18, s{T4}
    s_lshl_b32 s{SQP}, s{S_B}, 16
    s_lshl_b32 s{T1}, s{S_HKV}, 11
    s_add_u32 s{SQP}, s{SQP}, s{T1}
    s_lshl_b32 s{T1}, s{S_S}, 8
    s_add_u32 s{SQP}, s{SQP}, s{T1}
    s_add_u32 s{SQP}, s{SQP}, {QP_OFF}
    s_lshl_b32 s{SGU}, s{S_H}, 13
    s_lshl_b32 s{T1}, s{S_S}, 10
    s_add_u32 s{SGU}, s{SGU}, s{T1}
    s_add_u32 s{SGU}, s{SGU}, {GU_OFF}
    s_lshl_b32 s{T1}, s{S_WAVE}, 6                ; t*64
    v_lshlrev_b32 v11, 14, v2
    v_lshl_add_u32 v11, v3, 4, v11
    v_add_u32 v11, s{T1}, v11
    v_lshlrev_b32 v12, 8, v2
    v_lshl_add_u32 v12, v3, 4, v12
    v_add_u32 v12, s{T1}, v12
    v_add_u32 v19, {L_GUT - L_T0}, v34
    v_add_u32 v20, {(L_RING if dnlate else L_DNT) - L_T0}, v34
    s_waitcnt vmcnt({(8 if dnlate else 10) + (2 if pret else 0)})
    """)
    stamp()
    if npf:
        a(f"""
        s_cmp_ge_u32 s2, {npf}
        s_cbranch_scc1 L_nopf
        s_getpc_b64 s[{M_T}:{M_T+1}]
        """)
        a.label("L_pcref")
        a(f"""
        s_lshl_b32 s{T0}, s{S_WAVE}, 12
        v_add_u32 v100, s{T0}, v5
        s_mov_b32 s{T1}, L_exit-L_pcref-16
        """)
        for k in range(4):
            a(f"""
            v_add_u32 v101, {k*1024}, v100
            v_cmp_gt_u32 vcc, s{T1}, v101
            s_and_saveexec_b64 s[88:89], vcc
            s_cbranch_execz L_pfs{k}
            global_load_dwordx4 v[104:107], v101, s[{M_T}:{M_T+1}]
            """)
            a.label(f"L_pfs{k}")
            a("s_mov_b64 exec, -1")
        a.label("L_nopf")
    tag_setup()
    for e in range(4):
        a(f"v_lshlrev_b32 v{40+2*e}, 16, v{24+e}\nv_and_b32 v{41+2*e}, 0xffff0000, v{24+e}")
    a(f"""
    v_add_f32 v32, v40, v41
    v_add_f32 v33, v42, v43
    v_add_f32 v36, v44, v45
    v_add_f32 v37, v46, v47
    v_add_f32 v32, v32, v33
    v_add_f32 v36, v36, v37
    v_add_f32 v32, v32, v36
    """)
    wave_sum(32, 33)
    a("v_mul_f32 v32, 0x3b000000, v32")
    for e in range(8):
        a(f"v_sub_f32 v{48+e}, v{40+e}, v32")
    a("v_mul_f32 v33, v48, v48\nv_mul_f32 v36, v49, v49")
    for e in range(2, 8, 2):
        a(f"v_fmac_f32 v33, v{48+e}, v{48+e}\nv_fmac_f32 v36, v{49+e}, v{49+e}")
    a("v_add_f32 v33, v33, v36")
    wave_sum(33, 36)
    a("v_mul_f32 v33, 0x3b000000, v33")
    rne(32, 32); rne(33, 33)
    a("v_add_f32 v33, 0x3727c5ac, v33")
    rne(33, 33)
    a("v_sqrt_f32 v33, v33")
    for e in range(8):
        a(f"v_sub_f32 v{48+e}, v{40+e}, v32")
    rne(33, 33)
    a("v_rcp_f32 v33, v33")
    for e in range(0, 8, 2):
        a(f"v_cvt_pk_bf16_f32 v36, v{48+e}, v{49+e}\nv_lshlrev_b32 v{48+e}, 16, v36\nv_and_b32 v{49+e}, 0xffff0000, v36")
    for e in range(8):
        a(f"v_mul_f32 v{48+e}, v{48+e}, v33")
    for e in range(4):
        a(f"v_cvt_pk_bf16_f32 v{44+e}, v{48+2*e}, v{49+2*e}")
    a(f"""
    s_mul_i32 s{T0}, s{S_WAVE}, {Q_STR}
    v_lshlrev_b32 v32, 4, v2
    v_add_u32 v32, s{T0}, v32
    v_cmp_eq_u32 vcc, s{S_B}, v3
    s_and_saveexec_b64 s[{M_T}:{M_T+1}], vcc
    ds_write_b128 v32, v[44:47] offset:{L_XQ}
    s_mov_b64 exec, -1
    s_lshr_b32 s{T1}, s{S_S}, 1
    v_cmp_eq_u32 vcc, s{T1}, v3
    s_and_saveexec_b64 s[{M_T}:{M_T+1}], vcc
    ds_write_b128 v32, v[44:47] offset:{L_XG}
    s_mov_b64 exec, -1
    s_waitcnt vmcnt({(4 if dnlate else 6) + (2 if pret else 0)})
    """)
    barrier(F_XB)
    stamp()
    WF, XF, DA = 48, 64, 80
    def p1(xoff, voff, sbase, areg):
        for kk in range(4):
            a(f"ds_read_b128 {vr(XF+4*kk,4)}, v35 offset:{xoff+kk*64}")
        for kk in range(4):
            a(f"ds_read_b64_tr_b16 {vr(WF+4*kk,2)}, v{areg} offset:{kk*4096}")
            a(f"ds_read_b64_tr_b16 {vr(WF+4*kk+2,2)}, v{areg} offset:{kk*4096+512}")
        for kk in range(4):
            a(f"s_waitcnt lgkmcnt({6-2*kk})")
            c = "0" if kk == 0 else vr(DA,4)
            a(f"v_mfma_f32_16x16x32_bf16 {vr(DA,4)}, {vr(WF+4*kk,4)}, {vr(XF+4*kk,4)}, {c}")
        a("s_nop 7")
        tag(range(DA, DA+4))
        a(f"""
        s_mov_b64 exec, s[{M_H4}:{M_H4+1}]
        buffer_store_dwordx4 {vr(DA,4)}, v{voff}, {srd(R_WS)}, s{sbase} offen sc1
        s_mov_b64 exec, -1
        """)
    p1(L_XQ, 11, SQP, 34)
    stamp()
    a(f"s_waitcnt vmcnt({1 + (2 if pret else 0)})")
    barrier(F_XB)
    p1(L_XG, 12, SGU, 19)
    DF = 84
    def dn_frags():
        for kk in range(2):
            a(f"ds_read_b64_tr_b16 {vr(DF+4*kk,2)}, v20 offset:{kk*4096}")
            a(f"ds_read_b64_tr_b16 {vr(DF+4*kk+2,2)}, v20 offset:{kk*4096+512}")
    if not dnlate: dn_frags()
    xb_tiles = b_arrive(F_XB)
    flag_add(F_R3)
    stamp()
    QG, GG = 24, 92
    a(f"""
    s_lshl_b32 s{T0}, s{S_B}, 14
    s_lshl_b32 s{T1}, s{S_HKV}, 11
    s_add_u32 s{T0}, s{T0}, s{T1}
    s_lshl_b32 s{T1}, s{S_WAVE}, 9
    s_add_u32 s{T5}, s{T0}, s{T1}
    s_add_u32 s{T5}, s{T5}, {QP_OFF}
    v_lshlrev_b32 v38, 16, v3
    v_lshl_add_u32 v38, v2, 4, v38
    s_lshl_b32 s{T4}, s{S_H}, 13
    s_lshl_b32 s{T1}, s{S_WAVE}, 8
    s_add_u32 s{T4}, s{T4}, s{T1}
    s_add_u32 s{T4}, s{T4}, {GU_OFF}
    v_lshlrev_b32 v39, 10, v3
    v_lshl_add_u32 v39, v2, 4, v39
    v_add_u32 v10, 4096, v39
    """)
    def qloads():
        a(f"buffer_load_dwordx4 {vr(QG,4)}, v38, {srd(R_WS)}, s{T5} offen sc1")
        a(f"buffer_load_dwordx4 {vr(QG+4,4)}, v38, {srd(R_WS)}, s{T5} offen offset:256 sc1")
    def gloads():
        a(f"buffer_load_dwordx4 {vr(GG,4)}, v39, {srd(R_WS)}, s{T4} offen sc1")
        a(f"buffer_load_dwordx4 {vr(GG+4,4)}, v10, {srd(R_WS)}, s{T4} offen sc1")
    vml = []
    def issue(tagname): vml.append(tagname)
    def younger(tagname):
        last = max(i for i, t in enumerate(vml) if t == tagname)
        return len(vml) - 1 - last
    signaled = []
    def signal(p):
        a(f"v_mov_b32 v9, {pidx[p]}\nds_write_b32 v18, v9")
        signaled.append(p)
    def try_signals():
        for p in PIECES:
            if p in signaled: continue
            n = {"WO": 4}.get(p, 8)
            if vml.count(p) == n and younger(p) >= D:
                a(f"s_waitcnt vmcnt({younger(p)})")
                signal(p)
            else:
                break
    lin = int(cfg.get("lin", 1))
    def vstage(st):
        for q in range(8):
            if lin:
                a(f"""
                s_lshl_b32 s{T0}, s{S_WAVE}, 10
                s_add_u32 s{T0}, s{T0}, {st*32768 + q*4096}
                s_add_u32 s{T1}, s{T0}, {L_RING}
                s_mov_b32 m0, s{T1}
                s_nop 0
                buffer_load_dwordx4 v16, {srd(R_V)}, s{T0} offen{NT} lds
                """)
            else:
                if q % 4 == 0:
                    a(f"""
                    s_lshl_b32 s{T0}, s{S_WAVE}, 13
                    s_add_u32 s{T0}, s{T0}, {st*32768 + (q//4)*4096}
                    s_add_u32 s{T1}, s{T0}, {L_RING}
                    s_mov_b32 m0, s{T1}
                    s_nop 0
                    """)
                a(f"buffer_load_dwordx4 v{16 + q % 2}, {srd(R_V)}, s{T0} offen offset:{(q%4)*1024}{NT} lds")
            issue(f"V{st}")
            if q % 4 == 3: try_signals()
    qdelay = int(cfg.get("qdelay", 0))
    if qdelay: a(f"s_sleep {qdelay}")
    qloads(); issue("q"); issue("q")
    poll("q", list(range(QG, QG+8)), qloads, 41, f"s_waitcnt vmcnt(0)")
    stamp()
    xorN(16, "v_add_f32", list(range(QG, QG+8)), list(range(40, 48)))
    xorN(32, "v_add_f32", list(range(QG, QG+8)), list(range(40, 48)))
    a(f"""
    v_cvt_pk_bf16_f32 v42, v{QG}, v{QG+1}
    v_cvt_pk_bf16_f32 v43, v{QG+2}, v{QG+3}
    v_cvt_pk_bf16_f32 v44, v{QG+4}, v{QG+5}
    v_cvt_pk_bf16_f32 v45, v{QG+6}, v{QG+7}
    s_mul_i32 s{T0}, s{S_WAVE}, {Q_STR}
    s_add_u32 s{T0}, s{T0}, {L_Q}
    v_lshlrev_b32 v41, 3, v2
    v_add_u32 v41, s{T0}, v41
    s_mov_b64 exec, s[{M_16}:{M_16+1}]
    ds_write_b64 v41, v[42:43]
    ds_write_b64 v41, v[44:45] offset:128
    s_mov_b64 exec, -1
    """)
    flag_add(F_QR)
    a("s_setprio 0")
    spin_ge(F_KC, 4)
    vstage(0)
    spin_ge(F_KC, 8)
    vstage(1)
    gloads(); issue("g"); issue("g")
    spin_ge(F_KC, 12)
    vstage(2)
    b_wait(F_XB, xb_tiles)
    spin_ge(F_KC, 16)
    vstage(3)
    for f in tile_dma("WO"):
        f(); issue("WO")
    if dnlate:
        spin_ge(F_P0, 4)
        for f in tile_dma("DN"):
            f(); issue("DN")
    try_signals()
    stamp()
    poll("g", list(range(GG, GG+8)), gloads, 44, f"s_waitcnt vmcnt({younger('g')})")
    for e in range(4):
        a(f"v_add_f32 v{GG+e}, v{GG+e}, v{GG+4+e}")
    xorN(32, "v_add_f32", list(range(GG, GG+4)), [44,45,46,47])
    for e in range(4):
        a(f"v_mov_b32 v{GG+4+e}, v{GG+e}")
    a("s_nop 1")
    for e in range(4):
        a(f"v_permlane16_swap_b32 v{GG+e}, v{GG+4+e}")
    a("s_nop 0")
    for e in range(4):
        rne(GG+e, GG+e); rne(GG+4+e, GG+4+e)
    tm = [44, 45, 46, 47]
    for e in range(4): a(f"v_mul_f32 v{tm[e]}, v{GG+e}, v{GG+e}")
    for e in range(4): a(f"v_mul_f32 v{tm[e]}, v{tm[e]}, v{GG+e}")
    for e in range(4): a(f"v_mul_f32 v{tm[e]}, 0x3d372713, v{tm[e]}")
    for e in range(4): a(f"v_add_f32 v{tm[e]}, v{tm[e]}, v{GG+e}")
    for e in range(4): a(f"v_mul_f32 v{tm[e]}, 0xc0135761, v{tm[e]}")
    for e in range(4): a(f"v_exp_f32 v{tm[e]}, v{tm[e]}")
    a("s_nop 0")
    for e in range(4): a(f"v_add_f32 v{tm[e]}, 1.0, v{tm[e]}")
    for e in range(4): a(f"v_rcp_f32 v{tm[e]}, v{tm[e]}")
    a("s_nop 0")
    for e in range(4): a(f"v_mul_f32 v{GG+e}, v{GG+e}, v{tm[e]}")
    for e in range(4): rne(GG+e, GG+e)
    for e in range(4): a(f"v_mul_f32 v{GG+e}, v{GG+e}, v{GG+4+e}")
    a(f"""
    v_cvt_pk_bf16_f32 v44, v{GG}, v{GG+1}
    v_cvt_pk_bf16_f32 v45, v{GG+2}, v{GG+3}
    s_mul_i32 s{T0}, s{S_WAVE}, {H_STR}
    v_lshlrev_b32 v47, 3, v2
    v_add_u32 v47, s{T0}, v47
    s_mov_b64 exec, s[{M_16}:{M_16+1}]
    ds_write_b64 v47, v[44:45] offset:{L_H}
    s_mov_b64 exec, -1
    """)
    if dnlate:
        for p in PIECES:
            if p not in signaled:
                a(f"s_waitcnt vmcnt({younger(p)})"); signal(p)
        a("s_waitcnt vmcnt(0)")
        barrier(F_XB)
        dn_frags()
    else:
        xb_h = b_arrive(F_XB)
        for p in ("V1", "V2"):
            if p not in signaled:
                a(f"s_waitcnt vmcnt({younger(p)})"); signal(p)
        b_wait(F_XB, xb_h)
    a(f"""
    v_mul_u32_u24 v47, {H_STR}, v4
    v_lshl_add_u32 v47, v3, 4, v47
    """)
    HF = 64
    for kk in range(2):
        a(f"ds_read_b128 {vr(HF+4*kk,4)}, v47 offset:{L_H+kk*64}")
    a("s_waitcnt lgkmcnt(0)")
    DN_ACC = 80
    for kk in range(2):
        c = "0" if kk == 0 else vr(DN_ACC,4)
        a(f"v_mfma_f32_16x16x32_bf16 {vr(DN_ACC,4)}, {vr(DF+4*kk,4)}, {vr(HF+4*kk,4)}, {c}")
    a(f"""
    s_lshl_b32 s{T0}, s{S_WAVE}, 8
    v_lshlrev_b32 v47, 2, v4
    v_add_u32 v47, v47, v3
    v_lshlrev_b32 v47, 4, v47                     ; ((l&3)*4+g)*16
    v_add_u32 v47, s{T0}, v47
    s_nop 3
    s_mov_b64 exec, s[{M_H4}:{M_H4+1}]
    ds_write_b128 v47, {vr(DN_ACC,4)} offset:{L_DNP}
    s_mov_b64 exec, -1
    """)
    flag_add(F_DR)
    stamp()
    for p in PIECES:
        if p not in signaled:
            a(f"s_waitcnt vmcnt({younger(p)})"); signal(p)
    stamp()
    a("s_waitcnt lgkmcnt(0)\ns_branch L_end")
    x_stamps = nstamp[0]

    nstamp[0] = start_stamp
    a.label("L_qwave")
    VT[:] = [6, 8, 9, 10]
    a(f"s_setprio {int(cfg.get('qprio', 1))}")
    a(f"""
    s_lshl_b32 s{T0}, s{S_WAVE}, {12 if int(cfg.get("lin", 1)) else 15}
    v_lshlrev_b32 v16, 8, v2
    v_lshl_add_u32 v16, v3, 4, v16
    v_add_u32 v16, s{T0}, v16                     ; K voffset
    s_lshl_b32 s{T0}, s2, 17
    s_waitcnt lgkmcnt(0)
    s_add_u32 s{R_K}, s6, s{T0}
    s_addc_u32 s{R_K+1}, s7, 0
    s_mov_b32 s{R_K+2}, 131072
    s_mov_b32 s{R_K+3}, 0x20000
    """)
    if not earlybar: a("s_barrier")
    ws_srd()
    KB = 64
    for n in range(4):
        a(f"v_add_u32 v32, {4*n}, v3\nv_xor_b32 v{52+n}, v2, v32\nv_lshlrev_b32 v{52+n}, 4, v{52+n}\nv_lshl_add_u32 v{52+n}, v3, 8, v{52+n}")
    def kdma(T):
        a(f"""
        s_lshl_b32 s{T0}, s{S_WAVE}, 12
        s_add_u32 s{T0}, s{T0}, {T*16384}
        s_add_u32 s{T1}, s{T0}, {L_RING}
        s_mov_b32 m0, s{T1}
        s_nop 0
        """)
        for n in range(4):
            a(f"buffer_load_dwordx4 v{52+n}, {srd(R_K)}, s{T0} offen offset:{n*1024}{NT} lds")
    def kcopy(T):
        for j in range(4):
            r = KB + (T * 4 + j) * 4
            base = (56 if T < 4 else 60) + j
            a(f"ds_read_b128 {vr(r,4)}, v{base} offset:{(T*16384) % 65536}")
        if T % 2 == 1: flag_add(F_KC)
    for T in range(6): kdma(T)
    a(f"""
    s_lshl_b32 s{T0}, s{S_WAVE}, 12
    s_add_u32 s{T0}, s{T0}, {L_RING}
    v_lshlrev_b32 v32, 8, v2
    v_add_u32 v32, s{T0}, v32
    """)
    for j in range(4):
        a(f"v_add_u32 v33, {4*j}, v3\nv_xor_b32 v33, v33, v2\nv_lshl_add_u32 v{56+j}, v33, 4, v32\nv_add_u32 v{60+j}, 65536, v{56+j}")
    a("s_waitcnt vmcnt(16)")
    kcopy(0); kcopy(1)
    spin_ge(F_R3, 4)
    kdma(6); kdma(7)
    stamp()
    common_regs()
    SAP, SOP, SML = 66, 67, 60
    a(f"""
    s_mov_b32 s{R_X}, s4
    s_mov_b32 s{R_X+1}, s5
    s_mov_b32 s{R_X+2}, 4096
    s_mov_b32 s{R_X+3}, 0x20000
    s_mov_b32 s{R_OUT}, s22
    s_mov_b32 s{R_OUT+1}, s23
    s_mov_b32 s{R_OUT+2}, 4096
    s_mov_b32 s{R_OUT+3}, 0x20000
    s_lshl_b32 s{SAP}, s{S_HKV}, 16
    s_lshl_b32 s{T1}, s{S_B}, 12
    s_add_u32 s{SAP}, s{SAP}, s{T1}
    s_lshl_b32 s{T1}, s{S_S}, 9
    s_add_u32 s{SAP}, s{SAP}, s{T1}
    s_add_u32 s{SAP}, s{SAP}, {AP_OFF}
    s_lshl_b32 s{SOP}, s{S_S}, 15
    s_lshl_b32 s{T1}, s{S_H}, 8
    s_add_u32 s{SOP}, s{SOP}, s{T1}
    s_add_u32 s{SOP}, s{SOP}, {OP_OFF}
    s_lshl_b32 s{SML}, s{S_HKV}, 11
    s_lshl_b32 s{T1}, s{S_B}, 9
    s_add_u32 s{SML}, s{SML}, s{T1}
    s_lshl_b32 s{T1}, s{S_S}, 6
    s_add_u32 s{SML}, s{SML}, s{T1}
    s_add_u32 s{SML}, s{SML}, {ML_OFF}
    s_lshl_b32 s{T1}, s{S_WAVE}, 7                ; cw*128
    v_lshlrev_b32 v11, 14, v2
    v_lshl_add_u32 v11, v3, 4, v11
    v_add_u32 v11, s{T1}, v11
    s_lshl_b32 s{T1}, s{S_WAVE}, 6
    v_lshlrev_b32 v13, 13, v2
    v_lshl_add_u32 v13, v3, 4, v13
    v_add_u32 v13, s{T1}, v13
    """)
    a(f"""
    v_mul_u32_u24 v41, {P_STR}, v4
    v_lshl_add_u32 v41, v3, 4, v41
    v_add_u32 v41, {L_P}, v41
    v_lshrrev_b32 v42, 2, v2
    v_lshl_add_u32 v42, v3, 2, v42                ; key_local
    v_and_b32 v43, 7, v42
    v_lshlrev_b32 v43, 1, v43
    v_lshrrev_b32 v44, 1, v4
    s_lshl_b32 s{T0}, s{S_WAVE}, 2
    v_add_u32 v44, s{T0}, v44
    v_xor_b32 v45, v44, v43
    v_lshlrev_b32 v45, 4, v45
    v_lshl_add_u32 v45, v42, 8, v45
    v_and_b32 v48, 1, v4
    v_lshl_add_u32 v20, v48, 3, v45
    v_add_u32 v20, {L_RING}, v20
    v_add_u32 v21, 65536, v20
    v_add_u32 v44, 2, v44
    v_xor_b32 v45, v44, v43
    v_lshlrev_b32 v45, 4, v45
    v_lshl_add_u32 v45, v42, 8, v45
    v_lshl_add_u32 v22, v48, 3, v45
    v_add_u32 v22, {L_RING}, v22
    v_add_u32 v23, 65536, v22
    v_lshlrev_b32 v40, 2, v2                      ; (l&15)*4
    s_lshl_b32 s{T0}, s{S_WAVE}, 6
    v_add_u32 v39, s{T0}, v40
    s_lshl_b32 s{T0}, s{S_WAVE}, 8
    s_lshr_b32 s{T1}, s{S_WAVE}, 1
    s_lshl_b32 s{T1}, s{T1}, 6
    s_and_b32 s{T2}, s{S_WAVE}, 1
    s_lshl_b32 s{T2}, s{T2}, 3
    s_add_u32 s{T1}, s{T1}, s{T2}
    s_cmp_eq_u32 s{T1}, s{T1}
    s_cselect_b32 s{T0}, s{T1 if int(cfg.get("lin", 1)) else T0}, s{T0}
    v_mul_u32_u24 v38, {P_STR}, v2
    v_lshl_add_u32 v38, v3, 4, v38
    v_add_u32 v38, s{T0}, v38
    """)
    tag_setup()
    a(f"s_add_u32 s{T0}, s{S_EP}, 1\ns_nop 0\nv_mov_b32 v12, s{T0}\nv_not_b32 v17, v12")
    for T in range(2, 8):
        a(f"s_waitcnt vmcnt({4*(7-T)})")
        kcopy(T)
    stamp()
    spin_ge(F_QR, 4)
    QF, SS = 48, 192
    for j in range(4):
        a(f"ds_read_b128 {vr(QF+4*j,4)}, v35 offset:{L_Q+j*64}")
    a("s_waitcnt lgkmcnt(0)")
    for TP in range(4):
        for j in range(4):
            for T in (2*TP, 2*TP+1):
                c = "0" if j == 0 else vr(SS+4*T,4)
                a(f"v_mfma_f32_16x16x32_bf16 {vr(SS+4*T,4)}, {vr(KB+(T*4+j)*4,4)}, {vr(QF+4*j,4)}, {c}")
        if TP > 0:
            for p in range(4*(TP-1), 4*TP):
                x0, x1 = SS + 2*p, SS + 2*p + 1
                a(f"""
                v_cvt_pk_bf16_f32 v42, v{x0}, v{x1}
                v_lshlrev_b32 v{x0}, 16, v42
                v_and_b32 v{x1}, 0xffff0000, v42
                v_mul_f32 v{x0}, 0x{SCALE:x}, v{x0}
                v_mul_f32 v{x1}, 0x{SCALE:x}, v{x1}
                v_cvt_pk_bf16_f32 v42, v{x0}, v{x1}
                v_lshlrev_b32 v{x0}, 16, v42
                v_and_b32 v{x1}, 0xffff0000, v42
                """)
    stamp()
    a("s_nop 7")
    for p in range(12, 16):
        x0, x1 = SS + 2*p, SS + 2*p + 1
        a(f"""
        v_cvt_pk_bf16_f32 v42, v{x0}, v{x1}
        v_lshlrev_b32 v{x0}, 16, v42
        v_and_b32 v{x1}, 0xffff0000, v42
        v_mul_f32 v{x0}, 0x{SCALE:x}, v{x0}
        v_mul_f32 v{x1}, 0x{SCALE:x}, v{x1}
        v_cvt_pk_bf16_f32 v42, v{x0}, v{x1}
        v_lshlrev_b32 v{x0}, 16, v42
        v_and_b32 v{x1}, 0xffff0000, v42
        """)
    a(f"v_max3_f32 v43, v{SS}, v{SS+1}, v{SS+2}\nv_max3_f32 v44, v{SS+3}, v{SS+4}, v{SS+5}")
    for p in range(6, 30, 4):
        a(f"v_max3_f32 v43, v43, v{SS+p}, v{SS+p+1}\nv_max3_f32 v44, v44, v{SS+p+2}, v{SS+p+3}")
    a(f"v_max3_f32 v43, v43, v{SS+30}, v{SS+31}\nv_max_f32 v43, v43, v44")
    xor16("v_max_f32", 43, 42)
    xor32("v_max_f32", 43, 42)
    a(f"""
    s_mov_b64 exec, s[{M_16}:{M_16+1}]
    ds_write_b32 v39, v43 offset:{L_WM}
    s_mov_b64 exec, -1
    """)
    barrier(F_CB)
    for w in range(4):
        a(f"ds_read_b32 v{48+w}, v40 offset:{L_WM+w*64}")
    a(f"""
    s_mov_b32 s{T1}, 0x{LOG2E:x}
    s_waitcnt lgkmcnt(0)
    v_max3_f32 v46, v48, v49, v50
    v_max_f32 v46, v46, v51
    v_mul_f32 v47, s{T1}, v46
    """)
    for p in range(32):
        a(f"v_fma_f32 v{SS+p}, v{SS+p}, s{T1}, -v47")
    for p in range(32):
        a(f"v_exp_f32 v{SS+p}, v{SS+p}")
    PP = 224
    a(f"v_cvt_pk_bf16_f32 v{PP}, v{SS}, v{SS+1}")
    for p in range(1, 16):
        a(f"v_cvt_pk_bf16_f32 v{PP+p}, v{SS+2*p}, v{SS+2*p+1}")
    a(f"s_mov_b64 exec, s[{M_H4}:{M_H4+1}]")
    if int(cfg.get("lin", 1)):
        for i in range(8):
            a(f"ds_write_b64 v38, {vr(PP+2*i,2)} offset:{L_P+i*128}")
    else:
      for st in range(4):
        a(f"ds_write_b128 v38, {vr(PP+4*st,4)} offset:{L_P+st*64}")
    a("s_mov_b64 exec, -1")
    a(f"v_add_f32 v43, v{SS}, v{SS+1}\nv_add_f32 v42, v{SS+2}, v{SS+3}")
    for p in range(4, 32, 2):
        a(f"v_add_f32 v43, v43, v{SS+p}\nv_add_f32 v42, v42, v{SS+p+1}")
    a("v_add_f32 v43, v43, v42")
    xor16("v_add_f32", 43, 42)
    xor32("v_add_f32", 43, 42)
    a(f"""
    s_mov_b64 exec, s[{M_16}:{M_16+1}]
    ds_write_b32 v39, v43 offset:{L_WL}
    s_mov_b64 exec, -1
    """)
    barrier(F_CB)
    stamp()
    for w in range(4):
        a(f"ds_read_b32 v{48+w}, v40 offset:{L_WL+w*64}")
    a(f"""
    s_waitcnt lgkmcnt(0)
    v_add_f32 v47, v48, v49
    v_add_f32 v48, v50, v51
    v_add_f32 v47, v47, v48
    v_mov_b32 v28, v46
    v_mov_b32 v29, v47
    v_mov_b32 v30, v12
    v_mov_b32 v31, v17
    """)
    ACC = 184
    firstpv = [True]
    mlearly = int(cfg.get("mlearly", 1))
    def ml_store(lbl):
        a(f"""
        s_cmp_lg_u32 s{S_WAVE}, 0
        s_cbranch_scc1 {lbl}
        s_mov_b64 exec, 15
        buffer_store_dwordx4 v[28:31], v5, {srd(R_WS)}, s{SML} offen sc1
        s_mov_b64 exec, -1
        """)
        a.label(lbl)
    def pv(st):
        wait_piece(f"V{st}")
        if st == 3 and mlearly: ml_store("L_mlst_early")
        for q in range(4):
            kb = 4 * st + q
            off = (kb % 8) * 8192
            b0, b1 = (20, 22) if kb < 8 else (21, 23)
            r = 64 + 12 * q
            a(f"ds_read_b128 {vr(r,4)}, v41 offset:{kb*64}")
            a(f"ds_read_b64_tr_b16 {vr(r+4,2)}, v{b0} offset:{off}")
            a(f"ds_read_b64_tr_b16 {vr(r+6,2)}, v{b0} offset:{off+4096}")
            a(f"ds_read_b64_tr_b16 {vr(r+8,2)}, v{b1} offset:{off}")
            a(f"ds_read_b64_tr_b16 {vr(r+10,2)}, v{b1} offset:{off+4096}")
        for q in range(4):
            r = 64 + 12 * q
            a(f"s_waitcnt lgkmcnt({15 - 5 * q})")
            for dt in range(2):
                c = "0" if firstpv[0] else vr(ACC+4*dt,4)
                a(f"v_mfma_f32_16x16x32_bf16 {vr(ACC+4*dt,4)}, {vr(r+4+4*dt,4)}, {vr(r,4)}, {c}")
            firstpv[0] = False
    pv(0)
    flag_add(F_P0)
    pv(1); pv(2)
    stamp()
    AG, MG, WOF, DN2 = 128, 144, 152, 168
    a(f"""
    s_lshl_b32 s{T4}, s{S_H}, 14
    s_lshl_b32 s{T1}, s{S_WAVE}, 12
    s_add_u32 s{T4}, s{T4}, s{T1}
    s_add_u32 s{T4}, s{T4}, {AP_OFF}
    s_lshl_b32 s{T5}, s{S_HKV}, 11
    s_lshl_b32 s{T2}, s{S_WAVE}, 9
    s_add_u32 s{T5}, s{T5}, s{T2}
    s_lshl_b32 s{T2}, s{S_B}, 4
    s_add_u32 s{T5}, s{T5}, s{T2}
    s_add_u32 s{T5}, s{T5}, {ML_OFF}
    v_lshrrev_b32 v33, 5, v1
    v_lshlrev_b32 v33, 6, v33
    s_lshl_b32 s{T0}, s{S_WAVE}, 8
    v_lshlrev_b32 v47, 2, v4
    v_add_u32 v47, v47, v3
    v_lshlrev_b32 v47, 4, v47
    v_add_u32 v47, s{T0}, v47
    """)
    a(f"""
    v_mov_b32 v24, v47
    s_lshl_b32 s{T2}, s{S_B}, 10
    s_lshl_b32 s{T3}, s{S_S}, 7
    s_add_u32 s{T2}, s{T2}, s{T3}
    s_lshl_b32 s{T3}, s{S_WAVE}, 5
    s_add_u32 s{T2}, s{T2}, s{T3}
    v_lshlrev_b32 v25, 3, v4
    buffer_load_dwordx2 v[26:27], v25, {srd(R_X)}, s{T2} offen
    """)
    pv(3)
    a("s_nop 7")
    tag(range(ACC, ACC+8))
    a(f"""
    s_mov_b64 exec, s[{M_H4}:{M_H4+1}]
    buffer_store_dwordx4 {vr(ACC,4)}, v11, {srd(R_WS)}, s{SAP} offen sc1
    buffer_store_dwordx4 {vr(ACC+4,4)}, v11, {srd(R_WS)}, s{SAP} offen offset:64 sc1
    s_mov_b64 exec, -1
    """)
    if not mlearly: ml_store("L_mlst_done")
    stamp()
    AGR, MS = 128, [(144,), (152,)]
    light = int(cfg.get("light", 1))
    MGS = [192, 208]
    def ml_loads(i=0):
        for m in range(4):
            a(f"buffer_load_dwordx4 {vr(MGS[i]+4*m,4)}, v33, {srd(R_WS)}, s{T5} offen offset:{m*128} sc1")
    def ap_loads(i=0):
        for m in range(4):
            a(f"buffer_load_dwordx4 {vr(AGR+4*m,4)}, v5, {srd(R_WS)}, s{T4} offen offset:{m*1024} sc1")
    grp = int(cfg.get("grp", 0))
    def between1():
        spin_ge(F_DR, 4)
        a(f"ds_read_b128 {vr(DN2,4)}, v24 offset:{L_DNP}")
        wait_piece("WO")
        for kk in range(4):
            a(f"ds_read_b64_tr_b16 {vr(WOF+4*kk,2)}, v34 offset:{kk*4096}")
            a(f"ds_read_b64_tr_b16 {vr(WOF+4*kk+2,2)}, v34 offset:{kk*4096+512}")
    def weights(mg):
        ms = [mg + 4*m for m in range(4)]
        ls = [mg + 4*m + 1 for m in range(4)]
        a(f"""
        v_max3_f32 v36, v{ms[0]}, v{ms[1]}, v{ms[2]}
        v_max_f32 v36, v36, v{ms[3]}
        """)
        xor32("v_max_f32", 36, 37)
        for m in range(4):
            a(f"v_sub_f32 v{49+m}, v{ms[m]}, v36")
        for m in range(4):
            a(f"v_mul_f32 v{49+m}, s{T2}, v{49+m}")
        for m in range(4):
            a(f"v_exp_f32 v{49+m}, v{49+m}")
        a("s_nop 0")
        a(f"v_mul_f32 v48, v49, v{ls[0]}")
        for m in range(1, 4):
            a(f"v_fmac_f32 v48, v{49+m}, v{ls[m]}")
    a(f"s_mov_b32 s{T2}, 0x{LOG2E:x}")
    if grp == 3:
        MG = MGS[0]
        def mload(m):
            a(f"buffer_load_dwordx4 {vr(MG+4*m,4)}, v33, {srd(R_WS)}, s{T5} offen offset:{m*128} sc1")
        def aload(m):
            a(f"buffer_load_dwordx4 {vr(AGR+4*m,4)}, v5, {srd(R_WS)}, s{T4} offen offset:{m*1024} sc1")
        for m in range(4): mload(m)
        for r in range(AGR, AGR+16): a(f"v_mov_b32 v{r}, 0")
        if not dnlate: between1()
        SV, SM = T3, T1
        a(f"s_mov_b32 s{SV}, 0\ns_mov_b32 s{SM}, 0\ns_mov_b32 s{S_CNT}, 0")
        a.label("L_g1_loop")
        a(f"s_waitcnt vmcnt(0)\ns_bcnt1_i32_b32 s{T0}, s{SM}")
        for m in range(4):
            g = MG + 4*m; r = AGR + 4*m
            a(f"""
            s_bitcmp1_b32 s{SV}, {m}
            s_cbranch_scc1 L_g1_s{m}
            s_bitcmp1_b32 s{SM}, {m}
            s_cbranch_scc1 L_g1_a{m}
            v_xor_b32 v36, v{g+2}, v12
            v_bitop3_b32 v36, v36, v{g+3}, v17 bitop3:0xf6
            v_cmp_ne_u32 vcc, 0, v36
            s_cbranch_vccz L_g1_m{m}
            """)
            mload(m)
            a(f"s_cmp_lt_u32 s{T0}, 3\ns_cbranch_scc1 L_g1_s{m}")
            aload(m)
            a(f"s_branch L_g1_s{m}")
            a.label(f"L_g1_m{m}")
            a(f"s_bitset1_b32 s{SM}, {m}")
            a.label(f"L_g1_a{m}")
            for e in range(4): a(f"v_xor_b32 v{r+e}, v{r+e}, v{VT[e]}")
            a(f"""
            v_or3_b32 v36, v{r}, v{r+1}, v{r+2}
            v_or_b32 v36, v36, v{r+3}
            v_and_b32 v36, v36, v{VMSK}
            v_cmp_ne_u32 vcc, 0, v36
            s_cbranch_vccnz L_g1_r{m}
            s_bitset1_b32 s{SV}, {m}
            s_branch L_g1_s{m}
            """)
            a.label(f"L_g1_r{m}")
            aload(m)
            a.label(f"L_g1_s{m}")
        a(f"""
        s_cmp_eq_u32 s{SV}, 15
        s_cbranch_scc1 L_g1_done
        s_add_u32 s{S_CNT}, s{S_CNT}, 1
        s_cmp_lt_u32 s{S_CNT}, {POLL_LIMIT}
        s_cbranch_scc1 L_g1_loop
        s_waitcnt vmcnt(0)
        """)
        a.label("L_g1_done")
        weights(MG)
        xor32("v_add_f32", 48, 37)
        a("v_rcp_f32 v48, v48")
        if dnlate: between1()
        else: a("s_nop 0")
        for m in range(4):
            a(f"v_mul_f32 v{49+m}, v{49+m}, v48")
    elif grp == 2:
        MG = MGS[0]
        def mload(m):
            a(f"buffer_load_dwordx4 {vr(MG+4*m,4)}, v33, {srd(R_WS)}, s{T5} offen offset:{m*128} sc1")
        for m in range(4): mload(m)
        SV = T3
        a(f"s_mov_b32 s{SV}, 0\ns_mov_b32 s{S_CNT}, 0")
        a.label("L_g1_loop")
        a("s_waitcnt vmcnt(0)")
        for m in range(4):
            g = MG + 4*m
            a(f"""
            s_bitcmp1_b32 s{SV}, {m}
            s_cbranch_scc1 L_g1_s{m}
            v_xor_b32 v36, v{g+2}, v12
            v_bitop3_b32 v36, v36, v{g+3}, v17 bitop3:0xf6
            v_cmp_ne_u32 vcc, 0, v36
            s_cbranch_vccnz L_g1_r{m}
            s_bitset1_b32 s{SV}, {m}
            s_branch L_g1_s{m}
            """)
            a.label(f"L_g1_r{m}")
            mload(m)
            a.label(f"L_g1_s{m}")
        a(f"""
        s_cmp_eq_u32 s{SV}, 15
        s_cbranch_scc1 L_g1_done
        s_add_u32 s{S_CNT}, s{S_CNT}, 1
        s_cmp_lt_u32 s{S_CNT}, {POLL_LIMIT}
        s_cbranch_scc1 L_g1_loop
        s_waitcnt vmcnt(0)
        """)
        a.label("L_g1_done")
        ap_loads()
        weights(MG)
        between1()
        xor32("v_add_f32", 48, 37)
        a("v_rcp_f32 v48, v48")
        a("s_nop 0")
        for m in range(4):
            a(f"v_mul_f32 v{49+m}, v{49+m}, v48")
        poll("ap", list(range(AGR, AGR+16)), ap_loads, 36, "s_waitcnt vmcnt(0)")
    elif grp:
        MG = MGS[0]
        def gload(m):
            a(f"buffer_load_dwordx4 {vr(AGR+4*m,4)}, v5, {srd(R_WS)}, s{T4} offen offset:{m*1024} sc1")
            a(f"buffer_load_dwordx4 {vr(MG+4*m,4)}, v33, {srd(R_WS)}, s{T5} offen offset:{m*128} sc1")
        for m in range(4): gload(m)
        if not dnlate: between1()
        SV = T3
        a(f"s_mov_b32 s{SV}, 0\ns_mov_b32 s{S_CNT}, 0")
        a.label("L_g1_loop")
        a("s_waitcnt vmcnt(0)")
        for m in range(4):
            a(f"s_bitcmp1_b32 s{SV}, {m}\ns_cbranch_scc1 L_g1_s{m}")
            r = AGR + 4*m; g = MG + 4*m
            for e in range(4): a(f"v_xor_b32 v{r+e}, v{r+e}, v{VT[e]}")
            a(f"""
            v_or3_b32 v36, v{r}, v{r+1}, v{r+2}
            v_or_b32 v36, v36, v{r+3}
            v_and_b32 v36, v36, v{VMSK}
            v_bitop3_b32 v36, v36, v{g+2}, v12 bitop3:0xf6
            v_bitop3_b32 v36, v36, v{g+3}, v17 bitop3:0xf6
            v_cmp_ne_u32 vcc, 0, v36
            s_cbranch_vccnz L_g1_r{m}
            s_bitset1_b32 s{SV}, {m}
            s_branch L_g1_s{m}
            """)
            a.label(f"L_g1_r{m}")
            gload(m)
            a.label(f"L_g1_s{m}")
        a(f"""
        s_cmp_eq_u32 s{SV}, 15
        s_cbranch_scc1 L_g1_done
        s_add_u32 s{S_CNT}, s{S_CNT}, 1
        s_cmp_lt_u32 s{S_CNT}, {POLL_LIMIT}
        s_cbranch_scc1 L_g1_loop
        s_waitcnt vmcnt(0)
        """)
        a.label("L_g1_done")
        weights(MG)
        xor32("v_add_f32", 48, 37)
        a("v_rcp_f32 v48, v48")
        if dnlate: between1()
        else: a("s_nop 0")
        for m in range(4):
            a(f"v_mul_f32 v{49+m}, v{49+m}, v48")
    else:
        ml_loads(0)
        def consume_ml(i):
            ap_loads()
            weights(MGS[i])
        NS1 = int(cfg.get("ns1", 2))
        poll_stag("ml", [list(range(g, g+16)) for g in MGS[:NS1]], ml_loads, 4, 36, int(cfg.get("gap1", 3)), consume_ml, None, 0)
        between1()
        xor32("v_add_f32", 48, 37)
        a("v_rcp_f32 v48, v48")
        a("s_nop 0")
        for m in range(4):
            a(f"v_mul_f32 v{49+m}, v{49+m}, v48")
        poll("ap", list(range(AGR, AGR+16)), ap_loads, 36, "s_waitcnt vmcnt(0)")
    stamp()
    for e in range(4):
        a(f"v_mul_f32 v{44+e}, v49, v{AGR+e}")
    for m in range(1, 4):
        for e in range(4):
            a(f"v_fmac_f32 v{44+e}, v{49+m}, v{AGR+4*m+e}")
    xorN(32, "v_add_f32", [44,45,46,47], [36,37,38,39])
    a(f"""
    v_cvt_pk_bf16_f32 v42, v44, v45
    v_cvt_pk_bf16_f32 v43, v46, v47
    s_mul_i32 s{T2}, s{S_WAVE}, {Q_STR}
    v_lshlrev_b32 v41, 3, v1
    v_add_u32 v41, s{T2}, v41
    s_mov_b32 exec_lo, -1
    s_mov_b32 exec_hi, 0
    ds_write_b64 v41, v[42:43] offset:{L_OB}
    s_mov_b64 exec, -1
    """)
    barrier(F_CB)
    OF = 172
    for kk in range(4):
        a(f"ds_read_b128 {vr(OF+4*kk,4)}, v35 offset:{L_OB+kk*64}")
    for kk in range(4):
        a(f"s_waitcnt lgkmcnt({3-kk})")
        a(f"v_mfma_f32_16x16x32_bf16 {vr(DN2,4)}, {vr(WOF+4*kk,4)}, {vr(OF+4*kk,4)}, {vr(DN2,4)}")
    a("s_nop 7")
    tag(range(DN2, DN2+4))
    a(f"""
    s_mov_b64 exec, s[{M_H4}:{M_H4+1}]
    """)
    dual = int(cfg.get("dual", 1))
    if dual:
        a(f"s_add_u32 s{T0}, s{SOP}, {OPA_OFF - OP_OFF}")
        a(f"buffer_store_dwordx4 {vr(DN2,4)}, v13, {srd(R_WS)}, s{T0} offen")
    a(f"""
    buffer_store_dwordx4 {vr(DN2,4)}, v13, {srd(R_WS)}, s{SOP} offen sc1
    s_mov_b64 exec, -1
    """)
    stamp()
    a(f"""
    s_cmp_lg_u32 s{S_HKV}, 0
    s_cbranch_scc1 L_end
    s_lshl_b32 s{T0}, s{S_S}, 2
    s_add_u32 s{T0}, s{T0}, s{S_B}
    s_lshl_b32 s{T0}, s{T0}, 13
    s_lshl_b32 s{T1}, s{S_WAVE}, 6
    s_add_u32 s{T0}, s{T0}, s{T1}
    s_add_u32 s{T0}, s{T0}, {OP_OFF}
    s_add_u32 s{T1}, s{T0}, 4096                  ; heads 16..31
    s_lshl_b32 s{T2}, s{S_B}, 10
    s_lshl_b32 s{T3}, s{S_S}, 7
    s_add_u32 s{T2}, s{T2}, s{T3}
    s_lshl_b32 s{T3}, s{S_WAVE}, 5
    s_add_u32 s{T2}, s{T2}, s{T3}
    v_lshrrev_b32 v32, 2, v1
    v_lshlrev_b32 v32, 8, v32
    v_lshl_add_u32 v32, v4, 4, v32                ; (l>>2)*256 + (l&3)*16
    v_lshlrev_b32 v33, 3, v4                      ; (l&3)*8
    """)
    FGS = [224, 232, 240]
    NS2 = int(cfg.get("ns2", 2))
    if dual:
        a(f"s_add_u32 s{T4}, s{T0}, {OPA_OFF - OP_OFF}\ns_add_u32 s{T5}, s{T1}, {OPA_OFF - OP_OFF}")
    def fin_loads(i=0):
        b0, b1 = (T0, T1)
        if dual and i % 2 == 0: b0, b1 = T4, T5
        a(f"buffer_load_dwordx4 {vr(FGS[i],4)}, v32, {srd(R_WS)}, s{b0} offen sc1")
        a(f"buffer_load_dwordx4 {vr(FGS[i]+4,4)}, v32, {srd(R_WS)}, s{b1} offen sc1")
    FG = 44
    def consume2(i):
        f = FGS[i]
        for e in range(4):
            a(f"v_add_f32 v{FG+e}, v{f+e}, v{f+4+e}")
    if dual:
        def aloads(i):
            a(f"buffer_load_dwordx4 {vr(FGS[i],4)}, v32, {srd(R_WS)}, s{T4} offen sc1")
            a(f"buffer_load_dwordx4 {vr(FGS[i]+4,4)}, v32, {srd(R_WS)}, s{T5} offen sc1")
        aloads(0); aloads(2)
        a(f"s_mov_b32 s{S_CNT}, 0")
        a.label("L_fa_loop")
        for i in (0, 2):
            a("s_waitcnt vmcnt(2)")
            check(list(range(FGS[i], FGS[i]+8)), 38)
            a(f"s_cbranch_vccz L_fin_ok{i}")
            aloads(i)
        a(f"""
        s_add_u32 s{S_CNT}, s{S_CNT}, 1
        s_cmp_lt_u32 s{S_CNT}, {int(cfg.get("fastn", 10))}
        s_cbranch_scc1 L_fa_loop
        s_waitcnt vmcnt(0)
        """)
        fin_loads(0); fin_loads(1)
        a(f"s_mov_b32 s{S_CNT}, 0")
        a.label("L_fin_loop")
        for i in (0, 1):
            a("s_waitcnt vmcnt(2)")
            check(list(range(FGS[i], FGS[i]+8)), 38)
            a(f"s_cbranch_vccz L_fin_ok{i}")
            fin_loads(i)
        a(f"""
        s_add_u32 s{S_CNT}, s{S_CNT}, 1
        s_cmp_lt_u32 s{S_CNT}, {POLL_LIMIT}
        s_cbranch_scc1 L_fin_loop
        s_waitcnt vmcnt(0)
        """)
        for i in (0, 1, 2):
            a.label(f"L_fin_ok{i}")
            consume2(i)
            if i != 2: a("s_branch L_fin_done")
        a.label("L_fin_done")
    else:
        fin_loads(0)
        poll_stag("fin", [list(range(f, f+8)) for f in FGS[:NS2]], fin_loads, 2, 38, int(cfg.get("gap2", 3)), consume2)
    stamp()
    for ctl in ("row_ror:4", "row_ror:8"):
        a("s_nop 1")
        for e in range(4):
            a(f"v_add_f32_dpp v{FG+e}, v{FG+e}, v{FG+e} {ctl} row_mask:0xf bank_mask:0xf")
    a("s_nop 0")
    xorN(16, "v_add_f32", [FG, FG+1, FG+2, FG+3], [38,39,40,41])
    xorN(32, "v_add_f32", [FG, FG+1, FG+2, FG+3], [38,39,40,41])
    a(f"""
    v_lshlrev_b32 v40, 16, v26
    v_and_b32 v41, 0xffff0000, v26
    v_lshlrev_b32 v42, 16, v27
    v_and_b32 v43, 0xffff0000, v27
    v_add_f32 v40, v40, v{FG}
    v_add_f32 v41, v41, v{FG+1}
    v_add_f32 v42, v42, v{FG+2}
    v_add_f32 v43, v43, v{FG+3}
    v_cvt_pk_bf16_f32 v40, v40, v41
    v_cvt_pk_bf16_f32 v41, v42, v43
    s_mov_b64 exec, 15
    buffer_store_dwordx2 v[40:41], v33, {srd(R_OUT)}, s{T2} offen
    s_mov_b64 exec, -1
    s_cmp_lg_u32 s{S_WAVE}, 0
    s_cbranch_scc1 L_end
    s_cmp_lg_u32 s2, 0
    s_cbranch_scc1 L_end
    s_add_u32 s{S_EP}, s{S_EP}, 1
    v_mov_b32 v40, s{S_EP}
    v_mov_b32 v41, 0
    s_mov_b32 s{T1}, {EP_OFF}
    s_mov_b64 exec, 1
    buffer_store_dword v40, v41, {srd(R_WS)}, s{T1} offen sc1
    s_mov_b64 exec, -1
    """)
    a.label("L_end")
    if stamps:
        a(f"s_cmp_lg_u32 s{S_WAVE}, 0\ns_cbranch_scc1 L_exit")
        a(f"s_memrealtime s[{STAMP_REGS[NSTAMP-1]}:{STAMP_REGS[NSTAMP-1]+1}]")
        a(f"s_mov_b32 s{STAMP_REGS[10]}, s{S_CNT}\ns_mov_b32 s{STAMP_REGS[10]+1}, 0")
        a(f"""
        s_waitcnt lgkmcnt(0)
        s_add_u32 s{R_WS}, s{R_WS}, {STAMP_OFF}
        s_addc_u32 s{R_WS+1}, s{R_WS+1}, 0
        s_lshl_b32 s{T0}, s2, 1
        s_add_u32 s{T0}, s{T0}, s{S_ROLE}
        s_mul_i32 s{T0}, s{T0}, {NSTAMP*8}
        v_mov_b32 v2, s{T0}
        s_mov_b64 exec, 1
        """)
        for i in range(NSTAMP):
            r = STAMP_REGS[i]
            a(f"v_mov_b32 v4, s{r}\nv_mov_b32 v5, s{r+1}\nbuffer_store_dwordx2 v[4:5], v2, {srd(R_WS)}, 0 offen offset:{i*8}\ns_nop 1")
        print("stamps: X used", x_stamps, "Q used", nstamp[0])
    a.label("L_exit")
    a("s_endpgm")
    launch = f"grid=(256,1,1) block=(512,1,1) lds={L_END}"
    return file_text([launch], a.text(), [descriptor(kn, 256, 102)])

if __name__ == "__main__":
    out = sys.argv[1] if len(sys.argv) > 1 else "cdna_kernels/" + NAME + ".s"
    cfg = dict(kv.split("=") for kv in sys.argv[2:] if "=" in kv)
    open(out, "w").write(gen(stamps=("stamps" in sys.argv), cfg=cfg))
    print("wrote", out, "LDS", L_END)
```

```python
NAME = "parallel_sum__gqa_block_cached__glu_gated_geglu__decode"

HEADER_COMMENT = """; Kernarg layout for this problem (96 bytes, ptrs only, base s[0:1]):
"""

DESIGN_COMMENT = """;
"""

class Asm:
    def __init__(self):
        self.lines = []
    def __call__(self, s=""):
        for l in s.split("\n"):
            self.lines.append("    " + l.strip() if l.strip() and not l.strip().endswith(":") else l.strip())
    def label(self, name):
        self.lines.append(name + ":")
    def comment(self, s):
        self.lines.append("    ; " + s)
    def text(self):
        return "\n".join(self.lines) + "\n"

def kernel_begin(a, name):
    a.lines.append(".globl %s" % name)
    a.lines.append(".p2align 8")
    a.lines.append(".type %s,@function" % name)
    a.lines.append("%s:" % name)

def descriptor(name, vgpr, sgpr, accum=None):
    if accum is None:
        accum = (vgpr + 3) // 4 * 4
    return """.amdhsa_kernel %s
  .amdhsa_next_free_vgpr %d
  .amdhsa_next_free_sgpr %d
  .amdhsa_accum_offset %d
  .amdhsa_group_segment_fixed_size 0
  .amdhsa_kernarg_size 96
  .amdhsa_user_sgpr_count 2
  .amdhsa_user_sgpr_kernarg_segment_ptr 1
  .amdhsa_system_sgpr_workgroup_id_x 1
.end_amdhsa_kernel
""" % (name, vgpr, sgpr, accum)

def file_text(launch_lines, body, descs):
    return (HEADER_COMMENT + "".join("; @launch %s\n" % l for l in launch_lines) + DESIGN_COMMENT
            + '.amdgcn_target "amdgcn-amd-amdhsa--gfx950"\n.text\n' + body
            + '.section .rodata,"a"\n.p2align 6\n' + "\n.p2align 6\n".join(descs))
```

```python
import sys
from asmlib import *

QP_OFF = 0x000000
GU_OFF = 0x040000
AP_OFF = 0x080000
ML_OFF = 0x100000
OP_OFF = 0x110000
OPA_OFF = 0x150000
EP_OFF = 0x1F0000
WS_SIZE = 0x200000
STAMP_OFF = 268435456 - (1 << 20)
import os
TAGMASK = int(os.environ.get('TAGMASK', '0x0F'), 0)

P_STR = 1040
Q_STR = 272
H_STR = 144
L_FL = 0
L_P = 64
L_XQ = L_P + 4 * P_STR
L_XG = L_XQ + 4 * Q_STR
L_Q = L_XG + 4 * Q_STR
L_OB = L_Q + 4 * Q_STR
L_H = L_OB + 4 * Q_STR
L_WM = L_H + 4 * H_STR
L_WL = L_WM + 256
L_DNP = L_WL + 256
L_SMALL_END = L_DNP + 1024
L_T0 = 11264
assert L_SMALL_END <= L_T0
L_RING = L_T0 + 16384
L_END = L_RING + 131072
L_GUT = L_RING + 98304
L_DNT = L_GUT + 16384
F_LPROG, F_CB, F_XB, F_QR, F_DR, F_P0, F_KC, F_R3 = 0, 16, 20, 24, 28, 32, 36, 40

LOG2E = 0x3FB8AA3B
SCALE = 0x3DB504F3
POLL_LIMIT = 20000
SPIN_LIMIT = 200000

S_WAVE, S_B, S_HKV, S_S, S_H = 28, 29, 30, 31, 32
T0, T1, T2, T3, T4, T5, T6 = 33, 34, 35, 36, 37, 38, 39
R_X, R_K, R_V, R_WQ, R_GU, R_DN, R_WO, R_WS, R_OUT = 40, 44, 48, 52, 56, 60, 64, 68, 76
S_EP = 72
S_PROG = 73
S_ROLE = 74
M_H4 = 80
M_16 = 82
M_T = 84
S_CNT = 86
S_SP = 87
STAMP_REGS = [90, 92, 94, 96, 98, 100, 4, 6, 8, 10, 12, 14, 16, 18]
NSTAMP = 14

def srd(r): return f"s[{r}:{r+3}]"
def vr(a, n): return f"v[{a}:{a+n-1}]"

def gen(stamps=False, nt=True, cfg=None):
    cfg = cfg or {}
    a = Asm()
    kn = NAME + "_kernel"
    NT = " nt" if nt else ""
    if "ldflags" in cfg: NT = (" " + cfg["ldflags"].replace("+", " ")) if cfg["ldflags"] != "none" else ""
    D = int(cfg.get("D", 12))
    nstamp = [0]; uid = [0]
    dnlate = int(cfg.get("dnlate", 0))
    def lab(p):
        uid[0] += 1
        return f"L_{p}_{uid[0]}"
    def stamp():
        if stamps:
            i = nstamp[0]; nstamp[0] += 1
            assert i < NSTAMP
            r = STAMP_REGS[i]
            a(f"s_memrealtime s[{r}:{r+1}]")
    def xor16(op, v, t):
        a(f"v_mov_b32 v{t}, v{v}\ns_nop 1\nv_permlane16_swap_b32 v{v}, v{t}\ns_nop 0\n{op} v{v}, v{v}, v{t}")
    def xor32(op, v, t):
        a(f"v_mov_b32 v{t}, v{v}\ns_nop 1\nv_permlane32_swap_b32 v{v}, v{t}\ns_nop 0\n{op} v{v}, v{v}, v{t}")
    def xorN(kind, op, regs, tmps):
        for v, t in zip(regs, tmps): a(f"v_mov_b32 v{t}, v{v}")
        a("s_nop 1")
        for v, t in zip(regs, tmps): a(f"v_permlane{kind}_swap_b32 v{v}, v{t}")
        a("s_nop 0")
        for v, t in zip(regs, tmps): a(f"{op} v{v}, v{v}, v{t}")
    def wave_sum(v, t):
        for ctl in ["quad_perm:[1,0,3,2]", "quad_perm:[2,3,0,1]", "row_half_mirror", "row_mirror"]:
            a(f"s_nop 1\nv_add_f32_dpp v{v}, v{v}, v{v} {ctl} row_mask:0xf bank_mask:0xf")
        a("s_nop 0")
        xor16("v_add_f32", v, t)
        xor32("v_add_f32", v, t)
    def rne(dst, src):
        a(f"v_cvt_pk_bf16_f32 v{dst}, v{src}, v{src}\nv_lshlrev_b32 v{dst}, 16, v{dst}")

    VF, VONE, VS = 14, 15, 252
    VTAG, VMSK = 6, 7
    VT = [6, 8, 13, 112]
    def spin_ge(off, val, four=False, keep=None):
        l0, l1 = lab("sp"), lab("spd")
        if keep is not None:
            a(f"s_cmp_ge_u32 s{keep}, {val}\ns_cbranch_scc1 {l1}")
        dst = keep if keep is not None else T6
        a(f"s_mov_b32 s{S_SP}, 0")
        a.label(l0)
        if four:
            a(f"ds_read_b128 {vr(VS,4)}, v{VF} offset:{off}\ns_waitcnt lgkmcnt(0)")
            a(f"v_min_u32 v{VS}, v{VS}, v{VS+1}\nv_min3_u32 v{VS}, v{VS}, v{VS+2}, v{VS+3}")
        else:
            a(f"ds_read_b32 v{VS}, v{VF} offset:{off}\ns_waitcnt lgkmcnt(0)")
        a(f"""
        s_nop 0
        v_readfirstlane_b32 s{dst}, v{VS}
        s_add_u32 s{S_SP}, s{S_SP}, 1
        s_cmp_ge_u32 s{dst}, {val}
        s_cbranch_scc1 {l1}
        s_cmp_ge_u32 s{S_SP}, {SPIN_LIMIT}
        s_cbranch_scc1 {l1}
        s_sleep 1
        s_branch {l0}
        """)
        a.label(l1)
    def flag_add(off):
        a(f"s_mov_b64 exec, 1\nds_add_u32 v{VF}, v{VONE} offset:{off}\ns_mov_b64 exec, -1")
    nb = {F_CB: 0, F_XB: 0}
    def b_arrive(f):
        nb[f] += 1
        flag_add(f)
        return nb[f]
    def b_wait(f, n):
        spin_ge(f, 4 * n)
    def barrier(f):
        b_wait(f, b_arrive(f))
    split3 = int(cfg.get("split3", 0))
    PIECES = ["V0", "V1", "V2", "V3a", "V3b", "WO"] if split3 else ["V0", "V1", "V2", "V3", "WO"]
    pidx = {p: i + 1 for i, p in enumerate(PIECES)}
    def wait_piece(p):
        spin_ge(F_LPROG, pidx[p], four=True, keep=S_PROG)
    def tag(regs):
        for i, r in enumerate(regs): a(f"v_bfi_b32 v{r}, v{VMSK}, v{VT[i % 4]}, v{r}")
    def poll(name, regs, loads, acc, first_wait, backoff=0):
        a(f"s_mov_b32 s{S_CNT}, 0\n{first_wait}")
        a.label(f"L_{name}_chk")
        check(regs, acc)
        a(f"""
        s_cbranch_vccz L_{name}_ok
        s_add_u32 s{S_CNT}, s{S_CNT}, 1
        s_cmp_ge_u32 s{S_CNT}, {POLL_LIMIT}
        s_cbranch_scc1 L_{name}_ok
        """)
        if backoff: a(f"s_sleep {backoff}")
        loads()
        a(f"s_waitcnt vmcnt(0)\ns_branch L_{name}_chk")
        a.label(f"L_{name}_ok")
    def check(regs, acc, per=4):
        for i, r in enumerate(regs):
            a(f"v_xor_b32 v{r}, v{r}, v{VT[i % per]}")
        rs = list(regs)
        a(f"v_or3_b32 v{acc}, v{rs[0]}, v{rs[1]}, v{rs[2]}")
        k = 3
        while k + 1 < len(rs):
            a(f"v_or3_b32 v{acc}, v{acc}, v{rs[k]}, v{rs[k+1]}"); k += 2
        if k < len(rs):
            a(f"v_or_b32 v{acc}, v{acc}, v{rs[k]}")
        a(f"v_and_b32 v{acc}, v{acc}, v{VMSK}\nv_cmp_ne_u32 vcc, 0, v{acc}")
    def check_ml(regs, acc):
        for k in range(0, len(regs), 4):
            if k == 0:
                a(f"v_xor_b32 v{acc}, v{regs[2]}, v12")
            else:
                a(f"v_bitop3_b32 v{acc}, v{acc}, v{regs[k+2]}, v12 bitop3:0xf6")
            a(f"v_bitop3_b32 v{acc}, v{acc}, v{regs[k+3]}, v17 bitop3:0xf6")
        a(f"v_cmp_ne_u32 vcc, 0, v{acc}")
    def poll_stag(name, sets, loads, nloads, acc, gap, consume, between=None, per=4):
        n = len(sets)
        for i in range(1, n):
            if gap: a(f"s_sleep {gap}")
            loads(i)
        if between: between()
        a(f"s_mov_b32 s{S_CNT}, 0")
        a.label(f"L_{name}_loop")
        for i in range(n):
            a(f"s_waitcnt vmcnt({(n-1)*nloads})")
            (check_ml(sets[i], acc) if per == 0 else check(sets[i], acc, per))
            a(f"s_cbranch_vccz L_{name}_ok{i}")
            loads(i)
        a(f"""
        s_add_u32 s{S_CNT}, s{S_CNT}, 1
        s_cmp_lt_u32 s{S_CNT}, {POLL_LIMIT}
        s_cbranch_scc1 L_{name}_loop
        s_waitcnt vmcnt(0)
        """)
        for i in range(n):
            a.label(f"L_{name}_ok{i}")
            consume(i)
            if i != n - 1: a(f"s_branch L_{name}_done")
        a.label(f"L_{name}_done")
    def tag_setup():
        a(f"""
        v_readfirstlane_b32 s{S_EP}, v{VTAG}
        v_add_u32 v{VTAG}, 1, v{VTAG}
        """)
        for e in (3, 2, 1):
            a(f"v_add_u32 v{VT[e]}, {e * 0x35}, v{VTAG}\nv_and_b32 v{VT[e]}, {TAGMASK}, v{VT[e]}")
        a(f"v_and_b32 v{VTAG}, {TAGMASK}, v{VTAG}")
    def ws_srd():
        a(f"""
        s_mov_b32 s{R_WS}, s26
        s_mov_b32 s{R_WS+1}, s27
        s_mov_b32 s{R_WS+2}, {WS_SIZE}
        s_mov_b32 s{R_WS+3}, 0x20000
        s_mov_b32 s{T1}, {EP_OFF}
        v_mov_b32 v33, 0
        buffer_load_dword v{VTAG}, v33, {srd(R_WS)}, s{T1} offen sc1
        """)
    def common_regs():
        a(f"""
        s_mov_b32 s{M_H4}, 0x000F000F
        s_mov_b32 s{M_H4+1}, 0x000F000F
        s_mov_b32 s{M_16}, 0xFFFF
        s_mov_b32 s{M_16+1}, 0
        v_mov_b32 v{VMSK}, {TAGMASK}
        v_lshrrev_b32 v32, 2, v2
        v_lshl_add_u32 v32, v3, 3, v32
        v_lshlrev_b32 v32, 7, v32
        v_lshl_add_u32 v34, v4, 3, v32
        s_lshl_b32 s{T3}, s{S_WAVE}, 5
        s_add_u32 s{T3}, s{T3}, {L_T0}
        v_add_u32 v34, s{T3}, v34                     ; T0 + (8g+r)*128 + t*32 + c4*8
        v_mul_u32_u24 v35, {Q_STR}, v4
        v_lshl_add_u32 v35, v3, 4, v35                ; (l&3)*272 + g*16
        v_lshlrev_b32 v5, 4, v1                       ; l*16
        """)

    kernel_begin(a, kn)
    a(f"""
    s_cmp_ge_u32 s2, 256
    s_cbranch_scc1 L_exit
    s_load_dwordx16 s[4:19], s[0:1], 0
    s_load_dwordx8 s[20:27], s[0:1], 64
    """)
    stamp()
    for _ in range(int(cfg.get("diag_sleep", 0))): a("s_sleep 100")
    a(f"""
    v_and_b32 v1, 63, v0
    v_lshrrev_b32 v32, 6, v0
    v_and_b32 v2, 15, v1
    v_readfirstlane_b32 s{S_WAVE}, v32
    v_lshrrev_b32 v3, 4, v1
    v_and_b32 v4, 3, v1
    v_mov_b32 v{VF}, {L_FL}
    v_mov_b32 v{VONE}, 1
    s_lshr_b32 s{S_B}, s2, 6
    s_bfe_u32 s{S_HKV}, s2, 0x30003
    s_and_b32 s{S_S}, s2, 7
    s_lshl_b32 s{S_H}, s{S_HKV}, 2
    s_add_u32 s{S_H}, s{S_H}, s{S_B}
    s_mov_b32 s{S_PROG}, 0
    s_cmp_lg_u32 s{S_WAVE}, 0
    s_cbranch_scc1 L_noinit
    v_lshlrev_b32 v32, 2, v1
    v_mov_b32 v33, 0
    s_mov_b64 exec, 0xFFFF
    ds_write_b32 v32, v33 offset:{L_FL}
    s_mov_b64 exec, -1
    s_waitcnt lgkmcnt(0)
    """)
    a.label("L_noinit")
    earlybar = int(cfg.get("earlybar", 0))
    if earlybar: a("s_barrier")
    a(f"""
    s_lshr_b32 s{S_ROLE}, s{S_WAVE}, 2
    s_and_b32 s{S_WAVE}, s{S_WAVE}, 3
    s_cmp_eq_u32 s{S_ROLE}, 0
    s_cbranch_scc1 L_qwave
    """)
    start_stamp = nstamp[0]
    a(f"""
    s_setprio 3
    v_lshlrev_b32 v5, 4, v1
    s_lshl_b32 s{T0}, s{S_WAVE}, 10
    v_lshrrev_b32 v36, 3, v1
    v_and_b32 v37, 7, v1
    v_lshlrev_b32 v37, 4, v37
    v_lshl_add_u32 v22, v36, 13, v37
    s_lshl_b32 s{T2}, s{S_B}, 20
    s_lshl_b32 s{T1}, s{S_HKV}, 10
    s_add_u32 s{T2}, s{T2}, s{T1}
    s_lshl_b32 s{T1}, s{S_S}, 7
    s_add_u32 s{T4}, s{T2}, s{T1}
    s_waitcnt lgkmcnt(0)
    s_mov_b32 s{R_X}, s4
    s_mov_b32 s{R_X+1}, s5
    s_mov_b32 s{R_X+2}, 4096
    s_mov_b32 s{R_X+3}, 0x20000
    buffer_load_dwordx4 v[24:27], v5, {srd(R_X)}, s{T0} offen
    s_add_u32 s{R_WQ}, s10, s{T4}
    s_addc_u32 s{R_WQ+1}, s11, 0
    s_mov_b32 s{R_WQ+2}, {127*8192+128}
    s_mov_b32 s{R_WQ+3}, 0x20000
    """)
    ws_srd()
    def tile_dma(p):
        n_per = 2 if p == "DN" else 4
        stride = {"WQ": 8192, "GU": 3584, "WO": 1024, "DN": 1024}[p]
        vo = {"WQ": 22, "GU": 23, "WO": 21, "DN": 21}[p]
        R = {"WQ": R_WQ, "GU": R_GU, "WO": R_WO, "DN": R_DN}[p]
        LB = {"WQ": L_T0, "GU": L_GUT, "WO": L_T0, "DN": (L_RING if dnlate else L_DNT)}[p]
        out = []
        for q in range(n_per):
            def f(q=q):
                if q == 0:
                    a(f"""
                    s_mul_i32 s{T1}, s{S_WAVE}, {n_per*8*stride}
                    s_mul_i32 s{T0}, s{S_WAVE}, {n_per*1024}
                    s_add_u32 s{T0}, s{T0}, {LB}
                    """)
                else:
                    a(f"s_add_u32 s{T1}, s{T1}, {8*stride}\ns_add_u32 s{T0}, s{T0}, 1024")
                a(f"""
                s_mov_b32 m0, s{T0}
                s_nop 0
                buffer_load_dwordx4 v{vo}, {srd(R)}, s{T1} offen{NT} lds
                """)
            out.append(f)
        return out
    for f in tile_dma("WQ"): f()
    if not earlybar: a("s_barrier")
    a(f"""
    v_mul_u32_u24 v23, 3584, v36
    v_add_u32 v23, v23, v37
    v_lshl_add_u32 v21, v36, 10, v37
    s_and_b32 s{T0}, s{S_S}, 1
    s_cmp_eq_u32 s{T0}, 0
    s_cselect_b32 s{T2}, s16, s18
    s_cselect_b32 s{T3}, s17, s19
    s_lshr_b32 s{T0}, s{S_S}, 1
    s_mul_i32 s{T0}, s{T0}, {128*3584}
    s_lshl_b32 s{T1}, s{S_H}, 7
    s_add_u32 s{T0}, s{T0}, s{T1}
    s_add_u32 s{R_GU}, s{T2}, s{T0}
    s_addc_u32 s{R_GU+1}, s{T3}, 0
    s_cmp_lt_u32 s{S_H}, 28
    s_cselect_b32 s{R_GU+2}, {127*3584+128}, 0
    s_mov_b32 s{R_GU+3}, 0x20000
    """)
    gulate = int(cfg.get("gulate", 1))
    if not gulate:
        for f in tile_dma("GU"): f()
    a(f"""
    s_lshl_b32 s{T0}, s{S_H}, 16
    s_lshl_b32 s{T1}, s{S_S}, 7
    s_add_u32 s{T0}, s{T0}, s{T1}
    s_add_u32 s{R_DN}, s20, s{T0}
    s_addc_u32 s{R_DN+1}, s21, 0
    s_cmp_lt_u32 s{S_H}, 28
    s_cselect_b32 s{R_DN+2}, {63*1024+128}, 0
    s_mov_b32 s{R_DN+3}, 0x20000
    """)
    if not dnlate and not gulate:
        for f in tile_dma("DN"): f()
    pret = int(cfg.get("pret", 0))
    if pret:
        a(f"""
        s_lshl_b32 s{T0}, s{S_B}, 16
        s_lshl_b32 s{T1}, s{S_HKV}, 11
        s_add_u32 s{T0}, s{T0}, s{T1}
        s_lshl_b32 s{T1}, s{S_S}, 8
        s_add_u32 s{T0}, s{T0}, s{T1}
        s_lshl_b32 s{T1}, s{S_H}, 13
        s_lshl_b32 s{T2}, s{S_S}, 10
        s_add_u32 s{T1}, s{T1}, s{T2}
        s_add_u32 s{T1}, s{T1}, {GU_OFF}
        s_lshl_b32 s{T2}, s{S_HKV}, 16
        s_lshl_b32 s{T3}, s{S_B}, 12
        s_add_u32 s{T2}, s{T2}, s{T3}
        s_lshl_b32 s{T3}, s{S_S}, 9
        s_add_u32 s{T2}, s{T2}, s{T3}
        s_add_u32 s{T2}, s{T2}, {AP_OFF}
        s_lshl_b32 s{T3}, s{S_S}, 15
        s_lshl_b32 s{T4}, s{S_H}, 8
        s_add_u32 s{T3}, s{T3}, s{T4}
        s_add_u32 s{T3}, s{T3}, {OP_OFF}
        s_lshl_b32 s{T4}, s{S_HKV}, 11
        s_lshl_b32 s{T5}, s{S_B}, 9
        s_add_u32 s{T4}, s{T4}, s{T5}
        s_lshl_b32 s{T5}, s{S_S}, 6
        s_add_u32 s{T4}, s{T4}, s{T5}
        s_add_u32 s{T4}, s{T4}, {ML_OFF}
        s_cmp_eq_u32 s{S_WAVE}, 0
        s_cbranch_scc1 L_pt0
        s_cmp_eq_u32 s{S_WAVE}, 3
        s_cbranch_scc1 L_pt3
        v_lshrrev_b32 v100, 5, v1
        v_and_b32 v101, 31, v1
        v_lshlrev_b32 v100, 14, v100
        v_lshl_add_u32 v100, v101, 4, v100
        s_sub_u32 s{T5}, s{S_WAVE}, 1
        s_lshl_b32 s{T5}, s{T5}, 15
        s_add_u32 s{T2}, s{T2}, s{T5}
        buffer_load_dwordx4 v[104:107], v100, {srd(R_WS)}, s{T2} offen sc1
        buffer_load_dword v108, v100, {srd(R_WS)}, s{T2} offen sc1
        s_branch L_ptd
        """)
        a.label("L_pt0")
        a(f"""
        v_lshlrev_b32 v100, 14, v3
        v_lshl_add_u32 v100, v2, 4, v100
        buffer_load_dwordx4 v[104:107], v100, {srd(R_WS)}, s{T0} offen sc1
        buffer_load_dwordx4 v[108:111], v5, {srd(R_WS)}, s{T1} offen sc1
        s_branch L_ptd
        """)
        a.label("L_pt3")
        a(f"""
        v_lshlrev_b32 v100, 13, v3
        v_lshl_add_u32 v100, v2, 4, v100
        buffer_load_dwordx4 v[104:107], v100, {srd(R_WS)}, s{T3} offen sc1
        v_and_b32 v101, 3, v1
        v_lshlrev_b32 v101, 4, v101
        buffer_load_dwordx4 v[108:111], v101, {srd(R_WS)}, s{T4} offen sc1
        """)
        a.label("L_ptd")
    common_regs()
    npf = int(cfg.get("codepf", 0))
    a(f"""
    s_lshl_b32 s{T0}, s2, 17
    s_add_u32 s{R_V}, s8, s{T0}
    s_addc_u32 s{R_V+1}, s9, 0
    s_mov_b32 s{R_V+2}, 131072
    s_mov_b32 s{R_V+3}, 0x20000
    s_lshl_b32 s{T0}, s{S_H}, 17
    s_lshl_b32 s{T1}, s{S_S}, 7
    s_add_u32 s{T0}, s{T0}, s{T1}
    s_add_u32 s{R_WO}, s12, s{T0}
    s_addc_u32 s{R_WO+1}, s13, 0
    s_mov_b32 s{R_WO+2}, {127*1024+128}
    s_mov_b32 s{R_WO+3}, 0x20000
    """)
    for v in range(2):
        a(f"v_lshlrev_b32 v36, 1, v3\nv_add_u32 v36, {8*v}, v36\nv_xor_b32 v{16+v}, v2, v36\nv_lshlrev_b32 v{16+v}, 4, v{16+v}\nv_lshl_add_u32 v{16+v}, v3, 8, v{16+v}")
    if int(cfg.get("lin", 1)):
        a(f"""
        s_and_b32 s{T0}, s{S_WAVE}, 1
        s_cmp_eq_u32 s{T0}, 1
        s_cselect_b64 vcc, -1, 0
        v_cndmask_b32 v16, v16, v17, vcc
        """)
    SQP, SGU = 78, 79
    a(f"""
    s_lshl_b32 s{T4}, s{S_WAVE}, 2
    s_add_u32 s{T4}, s{T4}, {L_FL + F_LPROG}
    v_mov_b32 v18, s{T4}
    s_lshl_b32 s{SQP}, s{S_B}, 16
    s_lshl_b32 s{T1}, s{S_HKV}, 11
    s_add_u32 s{SQP}, s{SQP}, s{T1}
    s_lshl_b32 s{T1}, s{S_S}, 8
    s_add_u32 s{SQP}, s{SQP}, s{T1}
    s_add_u32 s{SQP}, s{SQP}, {QP_OFF}
    s_lshl_b32 s{SGU}, s{S_H}, 13
    s_lshl_b32 s{T1}, s{S_S}, 10
    s_add_u32 s{SGU}, s{SGU}, s{T1}
    s_add_u32 s{SGU}, s{SGU}, {GU_OFF}
    s_lshl_b32 s{T1}, s{S_WAVE}, 6                ; t*64
    v_lshlrev_b32 v11, 14, v2
    v_lshl_add_u32 v11, v3, 4, v11
    v_add_u32 v11, s{T1}, v11
    v_lshlrev_b32 v12, 8, v2
    v_lshl_add_u32 v12, v3, 4, v12
    v_add_u32 v12, s{T1}, v12
    v_add_u32 v19, {L_GUT - L_T0}, v34
    v_add_u32 v20, {(L_RING if dnlate else L_DNT) - L_T0}, v34
    s_waitcnt vmcnt({4 if gulate else (8 if dnlate else 10) + (2 if pret else 0)})
    """)
    stamp()
    if npf:
        a(f"""
        s_cmp_ge_u32 s2, {npf}
        s_cbranch_scc1 L_nopf
        s_getpc_b64 s[{M_T}:{M_T+1}]
        """)
        a.label("L_pcref")
        a(f"""
        s_lshl_b32 s{T0}, s{S_WAVE}, 12
        v_add_u32 v100, s{T0}, v5
        s_mov_b32 s{T1}, L_exit-L_pcref-16
        """)
        for k in range(4):
            a(f"""
            v_add_u32 v101, {k*1024}, v100
            v_cmp_gt_u32 vcc, s{T1}, v101
            s_and_saveexec_b64 s[88:89], vcc
            s_cbranch_execz L_pfs{k}
            global_load_dwordx4 v[104:107], v101, s[{M_T}:{M_T+1}]
            """)
            a.label(f"L_pfs{k}")
            a("s_mov_b64 exec, -1")
        a.label("L_nopf")
    tag_setup()
    for e in range(4):
        a(f"v_lshlrev_b32 v{40+2*e}, 16, v{24+e}\nv_and_b32 v{41+2*e}, 0xffff0000, v{24+e}")
    a(f"""
    v_add_f32 v32, v40, v41
    v_add_f32 v33, v42, v43
    v_add_f32 v36, v44, v45
    v_add_f32 v37, v46, v47
    v_add_f32 v32, v32, v33
    v_add_f32 v36, v36, v37
    v_add_f32 v32, v32, v36
    """)
    wave_sum(32, 33)
    a("v_mul_f32 v32, 0x3b000000, v32")
    for e in range(8):
        a(f"v_sub_f32 v{48+e}, v{40+e}, v32")
    a("v_mul_f32 v33, v48, v48\nv_mul_f32 v36, v49, v49")
    for e in range(2, 8, 2):
        a(f"v_fmac_f32 v33, v{48+e}, v{48+e}\nv_fmac_f32 v36, v{49+e}, v{49+e}")
    a("v_add_f32 v33, v33, v36")
    wave_sum(33, 36)
    a("v_mul_f32 v33, 0x3b000000, v33")
    rne(32, 32); rne(33, 33)
    a("v_add_f32 v33, 0x3727c5ac, v33")
    rne(33, 33)
    a("v_sqrt_f32 v33, v33")
    for e in range(8):
        a(f"v_sub_f32 v{48+e}, v{40+e}, v32")
    rne(33, 33)
    a("v_rcp_f32 v33, v33")
    for e in range(0, 8, 2):
        a(f"v_cvt_pk_bf16_f32 v36, v{48+e}, v{49+e}\nv_lshlrev_b32 v{48+e}, 16, v36\nv_and_b32 v{49+e}, 0xffff0000, v36")
    for e in range(8):
        a(f"v_mul_f32 v{48+e}, v{48+e}, v33")
    for e in range(4):
        a(f"v_cvt_pk_bf16_f32 v{44+e}, v{48+2*e}, v{49+2*e}")
    a(f"""
    s_mul_i32 s{T0}, s{S_WAVE}, {Q_STR}
    v_lshlrev_b32 v32, 4, v2
    v_add_u32 v32, s{T0}, v32
    v_cmp_eq_u32 vcc, s{S_B}, v3
    s_and_saveexec_b64 s[{M_T}:{M_T+1}], vcc
    ds_write_b128 v32, v[44:47] offset:{L_XQ}
    s_mov_b64 exec, -1
    s_lshr_b32 s{T1}, s{S_S}, 1
    v_cmp_eq_u32 vcc, s{T1}, v3
    s_and_saveexec_b64 s[{M_T}:{M_T+1}], vcc
    ds_write_b128 v32, v[44:47] offset:{L_XG}
    s_mov_b64 exec, -1
    s_waitcnt vmcnt({0 if gulate else (4 if dnlate else 6) + (2 if pret else 0)})
    """)
    barrier(F_XB)
    stamp()
    WF, XF, DA = 48, 64, 80
    def p1(xoff, voff, sbase, areg):
        for kk in range(4):
            a(f"ds_read_b128 {vr(XF+4*kk,4)}, v35 offset:{xoff+kk*64}")
        for kk in range(4):
            a(f"ds_read_b64_tr_b16 {vr(WF+4*kk,2)}, v{areg} offset:{kk*4096}")
            a(f"ds_read_b64_tr_b16 {vr(WF+4*kk+2,2)}, v{areg} offset:{kk*4096+512}")
        for kk in range(4):
            a(f"s_waitcnt lgkmcnt({6-2*kk})")
            c = "0" if kk == 0 else vr(DA,4)
            a(f"v_mfma_f32_16x16x32_bf16 {vr(DA,4)}, {vr(WF+4*kk,4)}, {vr(XF+4*kk,4)}, {c}")
        a("s_nop 7")
        tag(range(DA, DA+4))
        a(f"""
        s_mov_b64 exec, s[{M_H4}:{M_H4+1}]
        buffer_store_dwordx4 {vr(DA,4)}, v{voff}, {srd(R_WS)}, s{sbase} offen sc1
        s_mov_b64 exec, -1
        """)
    if gulate:
        for f in tile_dma("GU"): f()
        for f in tile_dma("DN"): f()
    p1(L_XQ, 11, SQP, 34)
    stamp()
    a(f"s_waitcnt vmcnt({1 + (2 if pret else 0)})")
    barrier(F_XB)
    p1(L_XG, 12, SGU, 19)
    DF = 84
    def dn_frags():
        for kk in range(2):
            a(f"ds_read_b64_tr_b16 {vr(DF+4*kk,2)}, v20 offset:{kk*4096}")
            a(f"ds_read_b64_tr_b16 {vr(DF+4*kk+2,2)}, v20 offset:{kk*4096+512}")
    if not dnlate: dn_frags()
    xb_tiles = b_arrive(F_XB)
    flag_add(F_R3)
    stamp()
    QG, GG = 24, 92
    a(f"""
    s_lshl_b32 s{T0}, s{S_B}, 14
    s_lshl_b32 s{T1}, s{S_HKV}, 11
    s_add_u32 s{T0}, s{T0}, s{T1}
    s_lshl_b32 s{T1}, s{S_WAVE}, 9
    s_add_u32 s{T5}, s{T0}, s{T1}
    s_add_u32 s{T5}, s{T5}, {QP_OFF}
    v_lshlrev_b32 v38, 16, v3
    v_lshl_add_u32 v38, v2, 4, v38
    s_lshl_b32 s{T4}, s{S_H}, 13
    s_lshl_b32 s{T1}, s{S_WAVE}, 8
    s_add_u32 s{T4}, s{T4}, s{T1}
    s_add_u32 s{T4}, s{T4}, {GU_OFF}
    v_lshlrev_b32 v39, 10, v3
    v_lshl_add_u32 v39, v2, 4, v39
    v_add_u32 v10, 4096, v39
    """)
    def qloads():
        a(f"buffer_load_dwordx4 {vr(QG,4)}, v38, {srd(R_WS)}, s{T5} offen sc1")
        a(f"buffer_load_dwordx4 {vr(QG+4,4)}, v38, {srd(R_WS)}, s{T5} offen offset:256 sc1")
    def gloads():
        a(f"buffer_load_dwordx4 {vr(GG,4)}, v39, {srd(R_WS)}, s{T4} offen sc1")
        a(f"buffer_load_dwordx4 {vr(GG+4,4)}, v10, {srd(R_WS)}, s{T4} offen sc1")
    vml = []
    def issue(tagname): vml.append(tagname)
    def younger(tagname):
        last = max(i for i, t in enumerate(vml) if t == tagname)
        return len(vml) - 1 - last
    signaled = []
    def signal(p):
        a(f"v_mov_b32 v9, {pidx[p]}\nds_write_b32 v18, v9")
        signaled.append(p)
    def try_signals():
        for p in PIECES:
            if p in signaled: continue
            n = {"WO": 4, "V3a": 4, "V3b": 4}.get(p, 8)
            if vml.count(p) == n and younger(p) >= D:
                a(f"s_waitcnt vmcnt({younger(p)})")
                signal(p)
            else:
                break
    lin = int(cfg.get("lin", 1))
    def vstage(st):
        for q in range(8):
            if lin:
                a(f"""
                s_lshl_b32 s{T0}, s{S_WAVE}, 10
                s_add_u32 s{T0}, s{T0}, {st*32768 + q*4096}
                s_add_u32 s{T1}, s{T0}, {L_RING}
                s_mov_b32 m0, s{T1}
                s_nop 0
                buffer_load_dwordx4 v16, {srd(R_V)}, s{T0} offen{NT} lds
                """)
            else:
                if q % 4 == 0:
                    a(f"""
                    s_lshl_b32 s{T0}, s{S_WAVE}, 13
                    s_add_u32 s{T0}, s{T0}, {st*32768 + (q//4)*4096}
                    s_add_u32 s{T1}, s{T0}, {L_RING}
                    s_mov_b32 m0, s{T1}
                    s_nop 0
                    """)
                a(f"buffer_load_dwordx4 v{16 + q % 2}, {srd(R_V)}, s{T0} offen offset:{(q%4)*1024}{NT} lds")
            issue(f"V{st}" if not (split3 and st == 3) else ("V3a" if q < 4 else "V3b"))
            if q % 4 == 3: try_signals()
    qdelay = int(cfg.get("qdelay", 0))
    if qdelay: a(f"s_sleep {qdelay}")
    qloads(); issue("q"); issue("q")
    poll("q", list(range(QG, QG+8)), qloads, 41, f"s_waitcnt vmcnt(0)")
    stamp()
    xorN(16, "v_add_f32", list(range(QG, QG+8)), list(range(40, 48)))
    xorN(32, "v_add_f32", list(range(QG, QG+8)), list(range(40, 48)))
    a(f"""
    v_cvt_pk_bf16_f32 v42, v{QG}, v{QG+1}
    v_cvt_pk_bf16_f32 v43, v{QG+2}, v{QG+3}
    v_cvt_pk_bf16_f32 v44, v{QG+4}, v{QG+5}
    v_cvt_pk_bf16_f32 v45, v{QG+6}, v{QG+7}
    s_mul_i32 s{T0}, s{S_WAVE}, {Q_STR}
    s_add_u32 s{T0}, s{T0}, {L_Q}
    v_lshlrev_b32 v41, 3, v2
    v_add_u32 v41, s{T0}, v41
    s_mov_b64 exec, s[{M_16}:{M_16+1}]
    ds_write_b64 v41, v[42:43]
    ds_write_b64 v41, v[44:45] offset:128
    s_mov_b64 exec, -1
    """)
    flag_add(F_QR)
    a("s_setprio 0")
    spin_ge(F_KC, 4)
    vstage(0)
    spin_ge(F_KC, 8)
    vstage(1)
    gloads(); issue("g"); issue("g")
    spin_ge(F_KC, 12)
    vstage(2)
    b_wait(F_XB, xb_tiles)
    spin_ge(F_KC, 16)
    vstage(3)
    for f in tile_dma("WO"):
        f(); issue("WO")
    if dnlate:
        spin_ge(F_P0, 4)
        for f in tile_dma("DN"):
            f(); issue("DN")
    try_signals()
    stamp()
    poll("g", list(range(GG, GG+8)), gloads, 44, f"s_waitcnt vmcnt({younger('g')})")
    for e in range(4):
        a(f"v_add_f32 v{GG+e}, v{GG+e}, v{GG+4+e}")
    xorN(32, "v_add_f32", list(range(GG, GG+4)), [44,45,46,47])
    for e in range(4):
        a(f"v_mov_b32 v{GG+4+e}, v{GG+e}")
    a("s_nop 1")
    for e in range(4):
        a(f"v_permlane16_swap_b32 v{GG+e}, v{GG+4+e}")
    a("s_nop 0")
    for e in range(4):
        rne(GG+e, GG+e); rne(GG+4+e, GG+4+e)
    tm = [44, 45, 46, 47]
    for e in range(4): a(f"v_mul_f32 v{tm[e]}, v{GG+e}, v{GG+e}")
    for e in range(4): a(f"v_mul_f32 v{tm[e]}, v{tm[e]}, v{GG+e}")
    for e in range(4): a(f"v_mul_f32 v{tm[e]}, 0x3d372713, v{tm[e]}")
    for e in range(4): a(f"v_add_f32 v{tm[e]}, v{tm[e]}, v{GG+e}")
    for e in range(4): a(f"v_mul_f32 v{tm[e]}, 0xc0135761, v{tm[e]}")
    for e in range(4): a(f"v_exp_f32 v{tm[e]}, v{tm[e]}")
    a("s_nop 0")
    for e in range(4): a(f"v_add_f32 v{tm[e]}, 1.0, v{tm[e]}")
    for e in range(4): a(f"v_rcp_f32 v{tm[e]}, v{tm[e]}")
    a("s_nop 0")
    for e in range(4): a(f"v_mul_f32 v{GG+e}, v{GG+e}, v{tm[e]}")
    for e in range(4): rne(GG+e, GG+e)
    for e in range(4): a(f"v_mul_f32 v{GG+e}, v{GG+e}, v{GG+4+e}")
    a(f"""
    v_cvt_pk_bf16_f32 v44, v{GG}, v{GG+1}
    v_cvt_pk_bf16_f32 v45, v{GG+2}, v{GG+3}
    s_mul_i32 s{T0}, s{S_WAVE}, {H_STR}
    v_lshlrev_b32 v47, 3, v2
    v_add_u32 v47, s{T0}, v47
    s_mov_b64 exec, s[{M_16}:{M_16+1}]
    ds_write_b64 v47, v[44:45] offset:{L_H}
    s_mov_b64 exec, -1
    """)
    if dnlate:
        for p in PIECES:
            if p not in signaled:
                a(f"s_waitcnt vmcnt({younger(p)})"); signal(p)
        a("s_waitcnt vmcnt(0)")
        barrier(F_XB)
        dn_frags()
    else:
        xb_h = b_arrive(F_XB)
        for p in ("V1", "V2"):
            if p not in signaled:
                a(f"s_waitcnt vmcnt({younger(p)})"); signal(p)
        b_wait(F_XB, xb_h)
    a(f"""
    v_mul_u32_u24 v47, {H_STR}, v4
    v_lshl_add_u32 v47, v3, 4, v47
    """)
    HF = 64
    for kk in range(2):
        a(f"ds_read_b128 {vr(HF+4*kk,4)}, v47 offset:{L_H+kk*64}")
    a("s_waitcnt lgkmcnt(0)")
    DN_ACC = 80
    for kk in range(2):
        c = "0" if kk == 0 else vr(DN_ACC,4)
        a(f"v_mfma_f32_16x16x32_bf16 {vr(DN_ACC,4)}, {vr(DF+4*kk,4)}, {vr(HF+4*kk,4)}, {c}")
    a(f"""
    s_lshl_b32 s{T0}, s{S_WAVE}, 8
    v_lshlrev_b32 v47, 2, v4
    v_add_u32 v47, v47, v3
    v_lshlrev_b32 v47, 4, v47                     ; ((l&3)*4+g)*16
    v_add_u32 v47, s{T0}, v47
    s_nop 3
    s_mov_b64 exec, s[{M_H4}:{M_H4+1}]
    ds_write_b128 v47, {vr(DN_ACC,4)} offset:{L_DNP}
    s_mov_b64 exec, -1
    """)
    flag_add(F_DR)
    stamp()
    for p in PIECES:
        if p not in signaled:
            a(f"s_waitcnt vmcnt({younger(p)})"); signal(p)
    stamp()
    a("s_waitcnt lgkmcnt(0)\ns_branch L_end")
    x_stamps = nstamp[0]

    nstamp[0] = start_stamp
    a.label("L_qwave")
    VT[:] = [6, 8, 9, 10]
    a(f"s_setprio {int(cfg.get('qprio', 1))}")
    a(f"""
    s_lshl_b32 s{T0}, s{S_WAVE}, {12 if int(cfg.get("lin", 1)) else 15}
    v_lshlrev_b32 v16, 8, v2
    v_lshl_add_u32 v16, v3, 4, v16
    v_add_u32 v16, s{T0}, v16                     ; K voffset
    s_lshl_b32 s{T0}, s2, 17
    s_waitcnt lgkmcnt(0)
    s_add_u32 s{R_K}, s6, s{T0}
    s_addc_u32 s{R_K+1}, s7, 0
    s_mov_b32 s{R_K+2}, 131072
    s_mov_b32 s{R_K+3}, 0x20000
    """)
    if cfg.get("k0stamp"): stamp()
    if not earlybar: a("s_barrier")
    if cfg.get("k0stamp"): stamp()
    kfirst = int(cfg.get("kfirst", 1))
    if not kfirst: ws_srd()
    KB = 64
    for n in range(4):
        a(f"v_add_u32 v32, {4*n}, v3\nv_xor_b32 v{52+n}, v2, v32\nv_lshlrev_b32 v{52+n}, 4, v{52+n}\nv_lshl_add_u32 v{52+n}, v3, 8, v{52+n}")
    def kdma(T):
        a(f"""
        s_lshl_b32 s{T0}, s{S_WAVE}, 12
        s_add_u32 s{T0}, s{T0}, {T*16384}
        s_add_u32 s{T1}, s{T0}, {L_RING}
        s_mov_b32 m0, s{T1}
        s_nop 0
        """)
        for n in range(4):
            a(f"buffer_load_dwordx4 v{52+n}, {srd(R_K)}, s{T0} offen offset:{n*1024}{NT} lds")
    def kcopy(T):
        for j in range(4):
            r = KB + (T * 4 + j) * 4
            base = (56 if T < 4 else 60) + j
            a(f"ds_read_b128 {vr(r,4)}, v{base} offset:{(T*16384) % 65536}")
        if T % 2 == 1: flag_add(F_KC)
    for T in range(6):
        kdma(T)
        if T == 0 and cfg.get("k0stamp"): stamp()
        if T == 0 and kfirst: ws_srd()
    a(f"""
    s_lshl_b32 s{T0}, s{S_WAVE}, 12
    s_add_u32 s{T0}, s{T0}, {L_RING}
    v_lshlrev_b32 v32, 8, v2
    v_add_u32 v32, s{T0}, v32
    """)
    for j in range(4):
        a(f"v_add_u32 v33, {4*j}, v3\nv_xor_b32 v33, v33, v2\nv_lshl_add_u32 v{56+j}, v33, 4, v32\nv_add_u32 v{60+j}, 65536, v{56+j}")
    a("s_waitcnt vmcnt(16)")
    kcopy(0); kcopy(1)
    spin_ge(F_R3, 4)
    kdma(6); kdma(7)
    stamp()
    common_regs()
    SAP, SOP, SML = 66, 67, 60
    a(f"""
    s_mov_b32 s{R_X}, s4
    s_mov_b32 s{R_X+1}, s5
    s_mov_b32 s{R_X+2}, 4096
    s_mov_b32 s{R_X+3}, 0x20000
    s_mov_b32 s{R_OUT}, s22
    s_mov_b32 s{R_OUT+1}, s23
    s_mov_b32 s{R_OUT+2}, 4096
    s_mov_b32 s{R_OUT+3}, 0x20000
    s_lshl_b32 s{SAP}, s{S_HKV}, 16
    s_lshl_b32 s{T1}, s{S_B}, 12
    s_add_u32 s{SAP}, s{SAP}, s{T1}
    s_lshl_b32 s{T1}, s{S_S}, 9
    s_add_u32 s{SAP}, s{SAP}, s{T1}
    s_add_u32 s{SAP}, s{SAP}, {AP_OFF}
    s_lshl_b32 s{SOP}, s{S_S}, 15
    s_lshl_b32 s{T1}, s{S_H}, 8
    s_add_u32 s{SOP}, s{SOP}, s{T1}
    s_add_u32 s{SOP}, s{SOP}, {OP_OFF}
    s_lshl_b32 s{SML}, s{S_HKV}, 11
    s_lshl_b32 s{T1}, s{S_B}, 9
    s_add_u32 s{SML}, s{SML}, s{T1}
    s_lshl_b32 s{T1}, s{S_S}, 6
    s_add_u32 s{SML}, s{SML}, s{T1}
    s_add_u32 s{SML}, s{SML}, {ML_OFF}
    s_lshl_b32 s{T1}, s{S_WAVE}, 7                ; cw*128
    v_lshlrev_b32 v11, 14, v2
    v_lshl_add_u32 v11, v3, 4, v11
    v_add_u32 v11, s{T1}, v11
    s_lshl_b32 s{T1}, s{S_WAVE}, 6
    v_lshlrev_b32 v13, 13, v2
    v_lshl_add_u32 v13, v3, 4, v13
    v_add_u32 v13, s{T1}, v13
    """)
    a(f"""
    v_mul_u32_u24 v41, {P_STR}, v4
    v_lshl_add_u32 v41, v3, 4, v41
    v_add_u32 v41, {L_P}, v41
    v_lshrrev_b32 v42, 2, v2
    v_lshl_add_u32 v42, v3, 2, v42                ; key_local
    v_and_b32 v43, 7, v42
    v_lshlrev_b32 v43, 1, v43
    v_lshrrev_b32 v44, 1, v4
    s_lshl_b32 s{T0}, s{S_WAVE}, 2
    v_add_u32 v44, s{T0}, v44
    v_xor_b32 v45, v44, v43
    v_lshlrev_b32 v45, 4, v45
    v_lshl_add_u32 v45, v42, 8, v45
    v_and_b32 v48, 1, v4
    v_lshl_add_u32 v20, v48, 3, v45
    v_add_u32 v20, {L_RING}, v20
    v_add_u32 v21, 65536, v20
    v_add_u32 v44, 2, v44
    v_xor_b32 v45, v44, v43
    v_lshlrev_b32 v45, 4, v45
    v_lshl_add_u32 v45, v42, 8, v45
    v_lshl_add_u32 v22, v48, 3, v45
    v_add_u32 v22, {L_RING}, v22
    v_add_u32 v23, 65536, v22
    v_lshlrev_b32 v40, 2, v2                      ; (l&15)*4
    s_lshl_b32 s{T0}, s{S_WAVE}, 6
    v_add_u32 v39, s{T0}, v40
    s_lshl_b32 s{T0}, s{S_WAVE}, 8
    s_lshr_b32 s{T1}, s{S_WAVE}, 1
    s_lshl_b32 s{T1}, s{T1}, 6
    s_and_b32 s{T2}, s{S_WAVE}, 1
    s_lshl_b32 s{T2}, s{T2}, 3
    s_add_u32 s{T1}, s{T1}, s{T2}
    s_cmp_eq_u32 s{T1}, s{T1}
    s_cselect_b32 s{T0}, s{T1 if int(cfg.get("lin", 1)) else T0}, s{T0}
    v_mul_u32_u24 v38, {P_STR}, v2
    v_lshl_add_u32 v38, v3, 4, v38
    v_add_u32 v38, s{T0}, v38
    """)
    tag_setup()
    a(f"s_add_u32 s{T0}, s{S_EP}, 1\ns_nop 0\nv_mov_b32 v12, s{T0}\nv_not_b32 v17, v12")
    for T in range(2, 8):
        a(f"s_waitcnt vmcnt({4*(7-T)})")
        kcopy(T)
    stamp()
    spin_ge(F_QR, 4)
    QF, SS = 48, 192
    for j in range(4):
        a(f"ds_read_b128 {vr(QF+4*j,4)}, v35 offset:{L_Q+j*64}")
    a("s_waitcnt lgkmcnt(0)")
    for TP in range(4):
        for j in range(4):
            for T in (2*TP, 2*TP+1):
                c = "0" if j == 0 else vr(SS+4*T,4)
                a(f"v_mfma_f32_16x16x32_bf16 {vr(SS+4*T,4)}, {vr(KB+(T*4+j)*4,4)}, {vr(QF+4*j,4)}, {c}")
        if TP > 0:
            for p in range(4*(TP-1), 4*TP):
                x0, x1 = SS + 2*p, SS + 2*p + 1
                a(f"""
                v_cvt_pk_bf16_f32 v42, v{x0}, v{x1}
                v_lshlrev_b32 v{x0}, 16, v42
                v_and_b32 v{x1}, 0xffff0000, v42
                v_mul_f32 v{x0}, 0x{SCALE:x}, v{x0}
                v_mul_f32 v{x1}, 0x{SCALE:x}, v{x1}
                v_cvt_pk_bf16_f32 v42, v{x0}, v{x1}
                v_lshlrev_b32 v{x0}, 16, v42
                v_and_b32 v{x1}, 0xffff0000, v42
                """)
    stamp()
    a("s_nop 7")
    for p in range(12, 16):
        x0, x1 = SS + 2*p, SS + 2*p + 1
        a(f"""
        v_cvt_pk_bf16_f32 v42, v{x0}, v{x1}
        v_lshlrev_b32 v{x0}, 16, v42
        v_and_b32 v{x1}, 0xffff0000, v42
        v_mul_f32 v{x0}, 0x{SCALE:x}, v{x0}
        v_mul_f32 v{x1}, 0x{SCALE:x}, v{x1}
        v_cvt_pk_bf16_f32 v42, v{x0}, v{x1}
        v_lshlrev_b32 v{x0}, 16, v42
        v_and_b32 v{x1}, 0xffff0000, v42
        """)
    a(f"v_max3_f32 v43, v{SS}, v{SS+1}, v{SS+2}\nv_max3_f32 v44, v{SS+3}, v{SS+4}, v{SS+5}")
    for p in range(6, 30, 4):
        a(f"v_max3_f32 v43, v43, v{SS+p}, v{SS+p+1}\nv_max3_f32 v44, v44, v{SS+p+2}, v{SS+p+3}")
    a(f"v_max3_f32 v43, v43, v{SS+30}, v{SS+31}\nv_max_f32 v43, v43, v44")
    xor16("v_max_f32", 43, 42)
    xor32("v_max_f32", 43, 42)
    a(f"""
    s_mov_b64 exec, s[{M_16}:{M_16+1}]
    ds_write_b32 v39, v43 offset:{L_WM}
    s_mov_b64 exec, -1
    """)
    barrier(F_CB)
    for w in range(4):
        a(f"ds_read_b32 v{48+w}, v40 offset:{L_WM+w*64}")
    a(f"""
    s_mov_b32 s{T1}, 0x{LOG2E:x}
    s_waitcnt lgkmcnt(0)
    v_max3_f32 v46, v48, v49, v50
    v_max_f32 v46, v46, v51
    v_mul_f32 v47, s{T1}, v46
    """)
    for p in range(32):
        a(f"v_fma_f32 v{SS+p}, v{SS+p}, s{T1}, -v47")
    for p in range(32):
        a(f"v_exp_f32 v{SS+p}, v{SS+p}")
    PP = 224
    a(f"v_cvt_pk_bf16_f32 v{PP}, v{SS}, v{SS+1}")
    for p in range(1, 16):
        a(f"v_cvt_pk_bf16_f32 v{PP+p}, v{SS+2*p}, v{SS+2*p+1}")
    a(f"s_mov_b64 exec, s[{M_H4}:{M_H4+1}]")
    if int(cfg.get("lin", 1)):
        for i in range(8):
            a(f"ds_write_b64 v38, {vr(PP+2*i,2)} offset:{L_P+i*128}")
    else:
      for st in range(4):
        a(f"ds_write_b128 v38, {vr(PP+4*st,4)} offset:{L_P+st*64}")
    a("s_mov_b64 exec, -1")
    a(f"v_add_f32 v43, v{SS}, v{SS+1}\nv_add_f32 v42, v{SS+2}, v{SS+3}")
    for p in range(4, 32, 2):
        a(f"v_add_f32 v43, v43, v{SS+p}\nv_add_f32 v42, v42, v{SS+p+1}")
    a("v_add_f32 v43, v43, v42")
    xor16("v_add_f32", 43, 42)
    xor32("v_add_f32", 43, 42)
    a(f"""
    s_mov_b64 exec, s[{M_16}:{M_16+1}]
    ds_write_b32 v39, v43 offset:{L_WL}
    s_mov_b64 exec, -1
    """)
    barrier(F_CB)
    stamp()
    for w in range(4):
        a(f"ds_read_b32 v{48+w}, v40 offset:{L_WL+w*64}")
    a(f"""
    s_waitcnt lgkmcnt(0)
    v_add_f32 v47, v48, v49
    v_add_f32 v48, v50, v51
    v_add_f32 v47, v47, v48
    v_mov_b32 v28, v46
    v_mov_b32 v29, v47
    v_mov_b32 v30, v12
    v_mov_b32 v31, v17
    """)
    ACC = 184
    firstpv = [True]
    mlearly = int(cfg.get("mlearly", 1))
    def ml_store(lbl):
        a(f"""
        s_cmp_lg_u32 s{S_WAVE}, 0
        s_cbranch_scc1 {lbl}
        s_mov_b64 exec, 15
        buffer_store_dwordx4 v[28:31], v5, {srd(R_WS)}, s{SML} offen sc1
        s_mov_b64 exec, -1
        """)
        a.label(lbl)
    def pv_part(st, qs):
        n = len(qs)
        for q in qs:
            kb = 4 * st + q
            off = (kb % 8) * 8192
            b0, b1 = (20, 22) if kb < 8 else (21, 23)
            r = 64 + 12 * q
            a(f"ds_read_b128 {vr(r,4)}, v41 offset:{kb*64}")
            a(f"ds_read_b64_tr_b16 {vr(r+4,2)}, v{b0} offset:{off}")
            a(f"ds_read_b64_tr_b16 {vr(r+6,2)}, v{b0} offset:{off+4096}")
            a(f"ds_read_b64_tr_b16 {vr(r+8,2)}, v{b1} offset:{off}")
            a(f"ds_read_b64_tr_b16 {vr(r+10,2)}, v{b1} offset:{off+4096}")
        for k, q in enumerate(qs):
            r = 64 + 12 * q
            a(f"s_waitcnt lgkmcnt({5 * (n - 1 - k)})")
            for dt in range(2):
                c = "0" if firstpv[0] else vr(ACC+4*dt,4)
                a(f"v_mfma_f32_16x16x32_bf16 {vr(ACC+4*dt,4)}, {vr(r+4+4*dt,4)}, {vr(r,4)}, {c}")
            firstpv[0] = False
    def pv(st):
        if st == 3 and split3:
            wait_piece("V3a")
            if mlearly == 2: ml_store("L_mlst_early")
            pv_part(3, [0, 1])
            wait_piece("V3b")
            if mlearly == 1: ml_store("L_mlst_early")
            pv_part(3, [2, 3])
        else:
            wait_piece(f"V{st}")
            if st == 3 and mlearly: ml_store("L_mlst_early")
            pv_part(st, [0, 1, 2, 3])
    pv(0)
    flag_add(F_P0)
    pv(1); pv(2)
    stamp()
    AG, MG, WOF, DN2 = 128, 144, 152, 168
    a(f"""
    s_lshl_b32 s{T4}, s{S_H}, 14
    s_lshl_b32 s{T1}, s{S_WAVE}, 12
    s_add_u32 s{T4}, s{T4}, s{T1}
    s_add_u32 s{T4}, s{T4}, {AP_OFF}
    s_lshl_b32 s{T5}, s{S_HKV}, 11
    s_lshl_b32 s{T2}, s{S_WAVE}, 9
    s_add_u32 s{T5}, s{T5}, s{T2}
    s_lshl_b32 s{T2}, s{S_B}, 4
    s_add_u32 s{T5}, s{T5}, s{T2}
    s_add_u32 s{T5}, s{T5}, {ML_OFF}
    v_lshrrev_b32 v33, 5, v1
    v_lshlrev_b32 v33, 6, v33
    s_lshl_b32 s{T0}, s{S_WAVE}, 8
    v_lshlrev_b32 v47, 2, v4
    v_add_u32 v47, v47, v3
    v_lshlrev_b32 v47, 4, v47
    v_add_u32 v47, s{T0}, v47
    """)
    a(f"""
    v_mov_b32 v24, v47
    s_lshl_b32 s{T2}, s{S_B}, 10
    s_lshl_b32 s{T3}, s{S_S}, 7
    s_add_u32 s{T2}, s{T2}, s{T3}
    s_lshl_b32 s{T3}, s{S_WAVE}, 5
    s_add_u32 s{T2}, s{T2}, s{T3}
    v_lshlrev_b32 v25, 3, v4
    buffer_load_dwordx2 v[26:27], v25, {srd(R_X)}, s{T2} offen
    """)
    pv(3)
    a("s_nop 7")
    tag(range(ACC, ACC+8))
    a(f"""
    s_mov_b64 exec, s[{M_H4}:{M_H4+1}]
    buffer_store_dwordx4 {vr(ACC,4)}, v11, {srd(R_WS)}, s{SAP} offen sc1
    buffer_store_dwordx4 {vr(ACC+4,4)}, v11, {srd(R_WS)}, s{SAP} offen offset:64 sc1
    s_mov_b64 exec, -1
    """)
    if not mlearly: ml_store("L_mlst_done")
    stamp()
    AGR, MS = 128, [(144,), (152,)]
    light = int(cfg.get("light", 1))
    MGS = [192, 208]
    def ml_loads(i=0):
        for m in range(4):
            a(f"buffer_load_dwordx4 {vr(MGS[i]+4*m,4)}, v33, {srd(R_WS)}, s{T5} offen offset:{m*128} sc1")
    def ap_loads(i=0):
        for m in range(4):
            a(f"buffer_load_dwordx4 {vr(AGR+4*m,4)}, v5, {srd(R_WS)}, s{T4} offen offset:{m*1024} sc1")
    grp = int(cfg.get("grp", 0))
    def between1():
        spin_ge(F_DR, 4)
        a(f"ds_read_b128 {vr(DN2,4)}, v24 offset:{L_DNP}")
        wait_piece("WO")
        for kk in range(4):
            a(f"ds_read_b64_tr_b16 {vr(WOF+4*kk,2)}, v34 offset:{kk*4096}")
            a(f"ds_read_b64_tr_b16 {vr(WOF+4*kk+2,2)}, v34 offset:{kk*4096+512}")
    def weights(mg):
        ms = [mg + 4*m for m in range(4)]
        ls = [mg + 4*m + 1 for m in range(4)]
        a(f"""
        v_max3_f32 v36, v{ms[0]}, v{ms[1]}, v{ms[2]}
        v_max_f32 v36, v36, v{ms[3]}
        """)
        xor32("v_max_f32", 36, 37)
        for m in range(4):
            a(f"v_sub_f32 v{49+m}, v{ms[m]}, v36")
        for m in range(4):
            a(f"v_mul_f32 v{49+m}, s{T2}, v{49+m}")
        for m in range(4):
            a(f"v_exp_f32 v{49+m}, v{49+m}")
        a("s_nop 0")
        a(f"v_mul_f32 v48, v49, v{ls[0]}")
        for m in range(1, 4):
            a(f"v_fmac_f32 v48, v{49+m}, v{ls[m]}")
    a(f"s_mov_b32 s{T2}, 0x{LOG2E:x}")
    if grp == 3:
        MG = MGS[0]
        def mload(m):
            a(f"buffer_load_dwordx4 {vr(MG+4*m,4)}, v33, {srd(R_WS)}, s{T5} offen offset:{m*128} sc1")
        def aload(m):
            a(f"buffer_load_dwordx4 {vr(AGR+4*m,4)}, v5, {srd(R_WS)}, s{T4} offen offset:{m*1024} sc1")
        for m in range(4): mload(m)
        for r in range(AGR, AGR+16): a(f"v_mov_b32 v{r}, 0")
        if not dnlate: between1()
        SV, SM = T3, T1
        a(f"s_mov_b32 s{SV}, 0\ns_mov_b32 s{SM}, 0\ns_mov_b32 s{S_CNT}, 0")
        a.label("L_g1_loop")
        a(f"s_waitcnt vmcnt(0)\ns_bcnt1_i32_b32 s{T0}, s{SM}")
        for m in range(4):
            g = MG + 4*m; r = AGR + 4*m
            a(f"""
            s_bitcmp1_b32 s{SV}, {m}
            s_cbranch_scc1 L_g1_s{m}
            s_bitcmp1_b32 s{SM}, {m}
            s_cbranch_scc1 L_g1_a{m}
            v_xor_b32 v36, v{g+2}, v12
            v_bitop3_b32 v36, v36, v{g+3}, v17 bitop3:0xf6
            v_cmp_ne_u32 vcc, 0, v36
            s_cbranch_vccz L_g1_m{m}
            """)
            mload(m)
            a(f"s_cmp_lt_u32 s{T0}, 3\ns_cbranch_scc1 L_g1_s{m}")
            aload(m)
            a(f"s_branch L_g1_s{m}")
            a.label(f"L_g1_m{m}")
            a(f"s_bitset1_b32 s{SM}, {m}")
            a.label(f"L_g1_a{m}")
            for e in range(4): a(f"v_xor_b32 v{r+e}, v{r+e}, v{VT[e]}")
            a(f"""
            v_or3_b32 v36, v{r}, v{r+1}, v{r+2}
            v_or_b32 v36, v36, v{r+3}
            v_and_b32 v36, v36, v{VMSK}
            v_cmp_ne_u32 vcc, 0, v36
            s_cbranch_vccnz L_g1_r{m}
            s_bitset1_b32 s{SV}, {m}
            s_branch L_g1_s{m}
            """)
            a.label(f"L_g1_r{m}")
            aload(m)
            a.label(f"L_g1_s{m}")
        a(f"""
        s_cmp_eq_u32 s{SV}, 15
        s_cbranch_scc1 L_g1_done
        s_add_u32 s{S_CNT}, s{S_CNT}, 1
        s_cmp_lt_u32 s{S_CNT}, {POLL_LIMIT}
        s_cbranch_scc1 L_g1_loop
        s_waitcnt vmcnt(0)
        """)
        a.label("L_g1_done")
        weights(MG)
        xor32("v_add_f32", 48, 37)
        a("v_rcp_f32 v48, v48")
        if dnlate: between1()
        else: a("s_nop 0")
        for m in range(4):
            a(f"v_mul_f32 v{49+m}, v{49+m}, v48")
    elif grp == 2:
        MG = MGS[0]
        def mload(m):
            a(f"buffer_load_dwordx4 {vr(MG+4*m,4)}, v33, {srd(R_WS)}, s{T5} offen offset:{m*128} sc1")
        for m in range(4): mload(m)
        SV = T3
        a(f"s_mov_b32 s{SV}, 0\ns_mov_b32 s{S_CNT}, 0")
        a.label("L_g1_loop")
        a("s_waitcnt vmcnt(0)")
        for m in range(4):
            g = MG + 4*m
            a(f"""
            s_bitcmp1_b32 s{SV}, {m}
            s_cbranch_scc1 L_g1_s{m}
            v_xor_b32 v36, v{g+2}, v12
            v_bitop3_b32 v36, v36, v{g+3}, v17 bitop3:0xf6
            v_cmp_ne_u32 vcc, 0, v36
            s_cbranch_vccnz L_g1_r{m}
            s_bitset1_b32 s{SV}, {m}
            s_branch L_g1_s{m}
            """)
            a.label(f"L_g1_r{m}")
            mload(m)
            a.label(f"L_g1_s{m}")
        a(f"""
        s_cmp_eq_u32 s{SV}, 15
        s_cbranch_scc1 L_g1_done
        s_add_u32 s{S_CNT}, s{S_CNT}, 1
        s_cmp_lt_u32 s{S_CNT}, {POLL_LIMIT}
        s_cbranch_scc1 L_g1_loop
        s_waitcnt vmcnt(0)
        """)
        a.label("L_g1_done")
        ap_loads()
        weights(MG)
        between1()
        xor32("v_add_f32", 48, 37)
        a("v_rcp_f32 v48, v48")
        a("s_nop 0")
        for m in range(4):
            a(f"v_mul_f32 v{49+m}, v{49+m}, v48")
        poll("ap", list(range(AGR, AGR+16)), ap_loads, 36, "s_waitcnt vmcnt(0)")
    elif grp:
        MG = MGS[0]
        def gload(m):
            a(f"buffer_load_dwordx4 {vr(AGR+4*m,4)}, v5, {srd(R_WS)}, s{T4} offen offset:{m*1024} sc1")
            a(f"buffer_load_dwordx4 {vr(MG+4*m,4)}, v33, {srd(R_WS)}, s{T5} offen offset:{m*128} sc1")
        for m in range(4): gload(m)
        if not dnlate: between1()
        SV = T3
        a(f"s_mov_b32 s{SV}, 0\ns_mov_b32 s{S_CNT}, 0")
        a.label("L_g1_loop")
        a("s_waitcnt vmcnt(0)")
        for m in range(4):
            a(f"s_bitcmp1_b32 s{SV}, {m}\ns_cbranch_scc1 L_g1_s{m}")
            r = AGR + 4*m; g = MG + 4*m
            for e in range(4): a(f"v_xor_b32 v{r+e}, v{r+e}, v{VT[e]}")
            a(f"""
            v_or3_b32 v36, v{r}, v{r+1}, v{r+2}
            v_or_b32 v36, v36, v{r+3}
            v_and_b32 v36, v36, v{VMSK}
            v_bitop3_b32 v36, v36, v{g+2}, v12 bitop3:0xf6
            v_bitop3_b32 v36, v36, v{g+3}, v17 bitop3:0xf6
            v_cmp_ne_u32 vcc, 0, v36
            s_cbranch_vccnz L_g1_r{m}
            s_bitset1_b32 s{SV}, {m}
            s_branch L_g1_s{m}
            """)
            a.label(f"L_g1_r{m}")
            gload(m)
            a.label(f"L_g1_s{m}")
        a(f"""
        s_cmp_eq_u32 s{SV}, 15
        s_cbranch_scc1 L_g1_done
        s_add_u32 s{S_CNT}, s{S_CNT}, 1
        s_cmp_lt_u32 s{S_CNT}, {POLL_LIMIT}
        s_cbranch_scc1 L_g1_loop
        s_waitcnt vmcnt(0)
        """)
        a.label("L_g1_done")
        weights(MG)
        xor32("v_add_f32", 48, 37)
        a("v_rcp_f32 v48, v48")
        if dnlate: between1()
        else: a("s_nop 0")
        for m in range(4):
            a(f"v_mul_f32 v{49+m}, v{49+m}, v48")
    else:
        ml_loads(0)
        def consume_ml(i):
            ap_loads()
            weights(MGS[i])
        NS1 = int(cfg.get("ns1", 2))
        poll_stag("ml", [list(range(g, g+16)) for g in MGS[:NS1]], ml_loads, 4, 36, int(cfg.get("gap1", 3)), consume_ml, None, 0)
        between1()
        xor32("v_add_f32", 48, 37)
        a("v_rcp_f32 v48, v48")
        a("s_nop 0")
        for m in range(4):
            a(f"v_mul_f32 v{49+m}, v{49+m}, v48")
        poll("ap", list(range(AGR, AGR+16)), ap_loads, 36, "s_waitcnt vmcnt(0)")
    stamp()
    for e in range(4):
        a(f"v_mul_f32 v{44+e}, v49, v{AGR+e}")
    for m in range(1, 4):
        for e in range(4):
            a(f"v_fmac_f32 v{44+e}, v{49+m}, v{AGR+4*m+e}")
    xorN(32, "v_add_f32", [44,45,46,47], [36,37,38,39])
    a(f"""
    v_cvt_pk_bf16_f32 v42, v44, v45
    v_cvt_pk_bf16_f32 v43, v46, v47
    s_mul_i32 s{T2}, s{S_WAVE}, {Q_STR}
    v_lshlrev_b32 v41, 3, v1
    v_add_u32 v41, s{T2}, v41
    s_mov_b32 exec_lo, -1
    s_mov_b32 exec_hi, 0
    ds_write_b64 v41, v[42:43] offset:{L_OB}
    s_mov_b64 exec, -1
    """)
    if int(cfg.get("hwbar", 1)):
        a("s_waitcnt lgkmcnt(0)\ns_barrier")
    else:
        barrier(F_CB)
    OF = 172
    for kk in range(4):
        a(f"ds_read_b128 {vr(OF+4*kk,4)}, v35 offset:{L_OB+kk*64}")
    for kk in range(4):
        a(f"s_waitcnt lgkmcnt({3-kk})")
        a(f"v_mfma_f32_16x16x32_bf16 {vr(DN2,4)}, {vr(WOF+4*kk,4)}, {vr(OF+4*kk,4)}, {vr(DN2,4)}")
    a("s_nop 7")
    tag(range(DN2, DN2+4))
    a(f"""
    s_mov_b64 exec, s[{M_H4}:{M_H4+1}]
    """)
    dual = int(cfg.get("dual", 1))
    if dual:
        a(f"s_add_u32 s{T0}, s{SOP}, {OPA_OFF - OP_OFF}")
        a(f"buffer_store_dwordx4 {vr(DN2,4)}, v13, {srd(R_WS)}, s{T0} offen")
    a(f"""
    buffer_store_dwordx4 {vr(DN2,4)}, v13, {srd(R_WS)}, s{SOP} offen sc1
    s_mov_b64 exec, -1
    """)
    stamp()
    a(f"""
    s_cmp_lg_u32 s{S_HKV}, 0
    s_cbranch_scc1 L_end
    s_lshl_b32 s{T0}, s{S_S}, 2
    s_add_u32 s{T0}, s{T0}, s{S_B}
    s_lshl_b32 s{T0}, s{T0}, 13
    s_lshl_b32 s{T1}, s{S_WAVE}, 6
    s_add_u32 s{T0}, s{T0}, s{T1}
    s_add_u32 s{T0}, s{T0}, {OP_OFF}
    s_add_u32 s{T1}, s{T0}, 4096                  ; heads 16..31
    s_lshl_b32 s{T2}, s{S_B}, 10
    s_lshl_b32 s{T3}, s{S_S}, 7
    s_add_u32 s{T2}, s{T2}, s{T3}
    s_lshl_b32 s{T3}, s{S_WAVE}, 5
    s_add_u32 s{T2}, s{T2}, s{T3}
    v_lshrrev_b32 v32, 2, v1
    v_lshlrev_b32 v32, 8, v32
    v_lshl_add_u32 v32, v4, 4, v32                ; (l>>2)*256 + (l&3)*16
    v_lshlrev_b32 v33, 3, v4                      ; (l&3)*8
    """)
    FGS = [224, 232, 240]
    NS2 = int(cfg.get("ns2", 2))
    if dual:
        a(f"s_add_u32 s{T4}, s{T0}, {OPA_OFF - OP_OFF}\ns_add_u32 s{T5}, s{T1}, {OPA_OFF - OP_OFF}")
    def fin_loads(i=0):
        b0, b1 = (T0, T1)
        if dual and i % 2 == 0: b0, b1 = T4, T5
        a(f"buffer_load_dwordx4 {vr(FGS[i],4)}, v32, {srd(R_WS)}, s{b0} offen sc1")
        a(f"buffer_load_dwordx4 {vr(FGS[i]+4,4)}, v32, {srd(R_WS)}, s{b1} offen sc1")
    FG = 44
    def consume2(i):
        f = FGS[i]
        for e in range(4):
            a(f"v_add_f32 v{FG+e}, v{f+e}, v{f+4+e}")
    if dual:
        def aloads(i):
            a(f"buffer_load_dwordx4 {vr(FGS[i],4)}, v32, {srd(R_WS)}, s{T4} offen sc1")
            a(f"buffer_load_dwordx4 {vr(FGS[i]+4,4)}, v32, {srd(R_WS)}, s{T5} offen sc1")
        aloads(0); aloads(2)
        a(f"s_mov_b32 s{S_CNT}, 0")
        a.label("L_fa_loop")
        for i in (0, 2):
            a("s_waitcnt vmcnt(2)")
            check(list(range(FGS[i], FGS[i]+8)), 38)
            a(f"s_cbranch_vccz L_fin_ok{i}")
            aloads(i)
        a(f"""
        s_add_u32 s{S_CNT}, s{S_CNT}, 1
        s_cmp_lt_u32 s{S_CNT}, {int(cfg.get("fastn", 10))}
        s_cbranch_scc1 L_fa_loop
        s_waitcnt vmcnt(0)
        """)
        fin_loads(0); fin_loads(1)
        a(f"s_mov_b32 s{S_CNT}, 0")
        a.label("L_fin_loop")
        for i in (0, 1):
            a("s_waitcnt vmcnt(2)")
            check(list(range(FGS[i], FGS[i]+8)), 38)
            a(f"s_cbranch_vccz L_fin_ok{i}")
            fin_loads(i)
        a(f"""
        s_add_u32 s{S_CNT}, s{S_CNT}, 1
        s_cmp_lt_u32 s{S_CNT}, {POLL_LIMIT}
        s_cbranch_scc1 L_fin_loop
        s_waitcnt vmcnt(0)
        """)
        for i in (0, 1, 2):
            a.label(f"L_fin_ok{i}")
            consume2(i)
            if i != 2: a("s_branch L_fin_done")
        a.label("L_fin_done")
    else:
        fin_loads(0)
        poll_stag("fin", [list(range(f, f+8)) for f in FGS[:NS2]], fin_loads, 2, 38, int(cfg.get("gap2", 3)), consume2)
    stamp()
    for ctl in ("row_ror:4", "row_ror:8"):
        a("s_nop 1")
        for e in range(4):
            a(f"v_add_f32_dpp v{FG+e}, v{FG+e}, v{FG+e} {ctl} row_mask:0xf bank_mask:0xf")
    a("s_nop 0")
    xorN(16, "v_add_f32", [FG, FG+1, FG+2, FG+3], [38,39,40,41])
    xorN(32, "v_add_f32", [FG, FG+1, FG+2, FG+3], [38,39,40,41])
    a(f"""
    v_lshlrev_b32 v40, 16, v26
    v_and_b32 v41, 0xffff0000, v26
    v_lshlrev_b32 v42, 16, v27
    v_and_b32 v43, 0xffff0000, v27
    v_add_f32 v40, v40, v{FG}
    v_add_f32 v41, v41, v{FG+1}
    v_add_f32 v42, v42, v{FG+2}
    v_add_f32 v43, v43, v{FG+3}
    v_cvt_pk_bf16_f32 v40, v40, v41
    v_cvt_pk_bf16_f32 v41, v42, v43
    s_mov_b64 exec, 15
    buffer_store_dwordx2 v[40:41], v33, {srd(R_OUT)}, s{T2} offen
    s_mov_b64 exec, -1
    s_cmp_lg_u32 s{S_WAVE}, 0
    s_cbranch_scc1 L_end
    s_cmp_lg_u32 s2, 0
    s_cbranch_scc1 L_end
    s_add_u32 s{S_EP}, s{S_EP}, 1
    v_mov_b32 v40, s{S_EP}
    v_mov_b32 v41, 0
    s_mov_b32 s{T1}, {EP_OFF}
    s_mov_b64 exec, 1
    buffer_store_dword v40, v41, {srd(R_WS)}, s{T1} offen sc1
    s_mov_b64 exec, -1
    """)
    a.label("L_end")
    if stamps:
        a(f"s_cmp_lg_u32 s{S_WAVE}, 0\ns_cbranch_scc1 L_exit")
        a(f"s_memrealtime s[{STAMP_REGS[NSTAMP-1]}:{STAMP_REGS[NSTAMP-1]+1}]")
        a(f"s_mov_b32 s{STAMP_REGS[12]}, s{S_CNT}\ns_mov_b32 s{STAMP_REGS[12]+1}, 0")
        a(f"""
        s_waitcnt lgkmcnt(0)
        s_add_u32 s{R_WS}, s{R_WS}, {STAMP_OFF}
        s_addc_u32 s{R_WS+1}, s{R_WS+1}, 0
        s_lshl_b32 s{T0}, s2, 1
        s_add_u32 s{T0}, s{T0}, s{S_ROLE}
        s_mul_i32 s{T0}, s{T0}, {NSTAMP*8}
        v_mov_b32 v2, s{T0}
        s_mov_b64 exec, 1
        """)
        for i in range(NSTAMP):
            r = STAMP_REGS[i]
            a(f"v_mov_b32 v4, s{r}\nv_mov_b32 v5, s{r+1}\nbuffer_store_dwordx2 v[4:5], v2, {srd(R_WS)}, 0 offen offset:{i*8}\ns_nop 1")
        print("stamps: X used", x_stamps, "Q used", nstamp[0])
    a.label("L_exit")
    a("s_endpgm")
    launch = f"grid=(256,1,1) block=(512,1,1) lds={L_END}"
    return file_text([launch], a.text(), [descriptor(kn, 256, 102)])

if __name__ == "__main__":
    out = sys.argv[1] if len(sys.argv) > 1 else "cdna_kernels/" + NAME + ".s"
    cfg = dict(kv.split("=") for kv in sys.argv[2:] if "=" in kv)
    open(out, "w").write(gen(stamps=("stamps" in sys.argv), cfg=cfg))
    print("wrote", out, "LDS", L_END)
```

```python
import sys
from asmlib import *

QP_OFF = 0x000000
GU_OFF = 0x040000
AP_OFF = 0x080000
ML_OFF = 0x100000
OP_OFF = 0x110000
OPA_OFF = 0x150000
EP_OFF = 0x1F0000
WS_SIZE = 0x200000
STAMP_OFF = 268435456 - (1 << 20)
import os
TAGMASK = int(os.environ.get('TAGMASK', '0x0F'), 0)

P_STR = 1040
Q_STR = 272
H_STR = 144
L_FL = 0
L_P = 64
L_XQ = L_P + 4 * P_STR
L_XG = L_XQ + 4 * Q_STR
L_Q = L_XG + 4 * Q_STR
L_OB = L_Q + 4 * Q_STR
L_H = L_OB + 4 * Q_STR
L_WM = L_H + 4 * H_STR
L_WL = L_WM + 256
L_DNP = L_WL + 256
L_SMALL_END = L_DNP + 1024
L_T0 = 11264
assert L_SMALL_END <= L_T0
L_RING = L_T0 + 16384
L_END = L_RING + 131072
L_GUT = L_RING + 98304
L_DNT = L_GUT + 16384
F_LPROG, F_CB, F_XB, F_QR, F_DR, F_P0, F_KC, F_R3 = 0, 16, 20, 24, 28, 32, 36, 40

LOG2E = 0x3FB8AA3B
SCALE = 0x3DB504F3
POLL_LIMIT = 20000
SPIN_LIMIT = 200000

S_WAVE, S_B, S_HKV, S_S, S_H = 28, 29, 30, 31, 32
T0, T1, T2, T3, T4, T5, T6 = 33, 34, 35, 36, 37, 38, 39
R_X, R_K, R_V, R_WQ, R_GU, R_DN, R_WO, R_WS, R_OUT = 40, 44, 48, 52, 56, 60, 64, 68, 76
S_EP = 72
S_PROG = 73
S_ROLE = 74
M_H4 = 80
M_16 = 82
M_T = 84
S_CNT = 86
S_SP = 87
STAMP_REGS = [90, 92, 94, 96, 98, 100, 4, 6, 8, 10, 12, 14, 16, 18]
NSTAMP = 14

def srd(r): return f"s[{r}:{r+3}]"
def vr(a, n): return f"v[{a}:{a+n-1}]"

def gen(stamps=False, nt=True, cfg=None):
    cfg = cfg or {}
    a = Asm()
    kn = NAME + "_kernel"
    NT = " nt" if nt else ""
    if "ldflags" in cfg: NT = (" " + cfg["ldflags"].replace("+", " ")) if cfg["ldflags"] != "none" else ""
    D = int(cfg.get("D", 12))
    nstamp = [0]; uid = [0]
    dnlate = int(cfg.get("dnlate", 0))
    t0seq = int(cfg.get("t0seq", 0))
    def lab(p):
        uid[0] += 1
        return f"L_{p}_{uid[0]}"
    def stamp():
        if stamps:
            i = nstamp[0]; nstamp[0] += 1
            assert i < NSTAMP
            r = STAMP_REGS[i]
            a(f"s_memrealtime s[{r}:{r+1}]")
    def xor16(op, v, t):
        a(f"v_mov_b32 v{t}, v{v}\ns_nop 1\nv_permlane16_swap_b32 v{v}, v{t}\ns_nop 0\n{op} v{v}, v{v}, v{t}")
    def xor32(op, v, t):
        a(f"v_mov_b32 v{t}, v{v}\ns_nop 1\nv_permlane32_swap_b32 v{v}, v{t}\ns_nop 0\n{op} v{v}, v{v}, v{t}")
    def xorN(kind, op, regs, tmps):
        for v, t in zip(regs, tmps): a(f"v_mov_b32 v{t}, v{v}")
        a("s_nop 1")
        for v, t in zip(regs, tmps): a(f"v_permlane{kind}_swap_b32 v{v}, v{t}")
        a("s_nop 0")
        for v, t in zip(regs, tmps): a(f"{op} v{v}, v{v}, v{t}")
    def wave_sum(v, t):
        for ctl in ["quad_perm:[1,0,3,2]", "quad_perm:[2,3,0,1]", "row_half_mirror", "row_mirror"]:
            a(f"s_nop 1\nv_add_f32_dpp v{v}, v{v}, v{v} {ctl} row_mask:0xf bank_mask:0xf")
        a("s_nop 0")
        xor16("v_add_f32", v, t)
        xor32("v_add_f32", v, t)
    def rne(dst, src):
        a(f"v_cvt_pk_bf16_f32 v{dst}, v{src}, v{src}\nv_lshlrev_b32 v{dst}, 16, v{dst}")

    VF, VONE, VS = 14, 15, 252
    VTAG, VMSK = 6, 7
    VT = [6, 8, 13, 112]
    def spin_ge(off, val, four=False, keep=None):
        l0, l1 = lab("sp"), lab("spd")
        if keep is not None:
            a(f"s_cmp_ge_u32 s{keep}, {val}\ns_cbranch_scc1 {l1}")
        dst = keep if keep is not None else T6
        a(f"s_mov_b32 s{S_SP}, 0")
        a.label(l0)
        if four:
            a(f"ds_read_b128 {vr(VS,4)}, v{VF} offset:{off}\ns_waitcnt lgkmcnt(0)")
            a(f"v_min_u32 v{VS}, v{VS}, v{VS+1}\nv_min3_u32 v{VS}, v{VS}, v{VS+2}, v{VS+3}")
        else:
            a(f"ds_read_b32 v{VS}, v{VF} offset:{off}\ns_waitcnt lgkmcnt(0)")
        a(f"""
        s_nop 0
        v_readfirstlane_b32 s{dst}, v{VS}
        s_add_u32 s{S_SP}, s{S_SP}, 1
        s_cmp_ge_u32 s{dst}, {val}
        s_cbranch_scc1 {l1}
        s_cmp_ge_u32 s{S_SP}, {SPIN_LIMIT}
        s_cbranch_scc1 {l1}
        s_sleep 1
        s_branch {l0}
        """)
        a.label(l1)
    def flag_add(off):
        a(f"s_mov_b64 exec, 1\nds_add_u32 v{VF}, v{VONE} offset:{off}\ns_mov_b64 exec, -1")
    nb = {F_CB: 0, F_XB: 0}
    def b_arrive(f):
        nb[f] += 1
        flag_add(f)
        return nb[f]
    def b_wait(f, n):
        spin_ge(f, 4 * n)
    def barrier(f):
        b_wait(f, b_arrive(f))
    split3 = int(cfg.get("split3", 0))
    PIECES = ["V0", "V1", "V2", "V3a", "V3b", "WO"] if split3 else ["V0", "V1", "V2", "V3", "WO"]
    pidx = {p: i + 1 for i, p in enumerate(PIECES)}
    def wait_piece(p):
        spin_ge(F_LPROG, pidx[p], four=True, keep=S_PROG)
    def tag(regs):
        for i, r in enumerate(regs): a(f"v_bfi_b32 v{r}, v{VMSK}, v{VT[i % 4]}, v{r}")
    def poll(name, regs, loads, acc, first_wait, backoff=0):
        a(f"s_mov_b32 s{S_CNT}, 0\n{first_wait}")
        a.label(f"L_{name}_chk")
        check(regs, acc)
        a(f"""
        s_cbranch_vccz L_{name}_ok
        s_add_u32 s{S_CNT}, s{S_CNT}, 1
        s_cmp_ge_u32 s{S_CNT}, {POLL_LIMIT}
        s_cbranch_scc1 L_{name}_ok
        """)
        if backoff: a(f"s_sleep {backoff}")
        loads()
        a(f"s_waitcnt vmcnt(0)\ns_branch L_{name}_chk")
        a.label(f"L_{name}_ok")
    def check(regs, acc, per=4):
        for i, r in enumerate(regs):
            a(f"v_xor_b32 v{r}, v{r}, v{VT[i % per]}")
        rs = list(regs)
        a(f"v_or3_b32 v{acc}, v{rs[0]}, v{rs[1]}, v{rs[2]}")
        k = 3
        while k + 1 < len(rs):
            a(f"v_or3_b32 v{acc}, v{acc}, v{rs[k]}, v{rs[k+1]}"); k += 2
        if k < len(rs):
            a(f"v_or_b32 v{acc}, v{acc}, v{rs[k]}")
        a(f"v_and_b32 v{acc}, v{acc}, v{VMSK}\nv_cmp_ne_u32 vcc, 0, v{acc}")
    def check_ml(regs, acc):
        for k in range(0, len(regs), 4):
            if k == 0:
                a(f"v_xor_b32 v{acc}, v{regs[2]}, v12")
            else:
                a(f"v_bitop3_b32 v{acc}, v{acc}, v{regs[k+2]}, v12 bitop3:0xf6")
            a(f"v_bitop3_b32 v{acc}, v{acc}, v{regs[k+3]}, v17 bitop3:0xf6")
        a(f"v_cmp_ne_u32 vcc, 0, v{acc}")
    def poll_stag(name, sets, loads, nloads, acc, gap, consume, between=None, per=4):
        n = len(sets)
        for i in range(1, n):
            if gap: a(f"s_sleep {gap}")
            loads(i)
        if between: between()
        a(f"s_mov_b32 s{S_CNT}, 0")
        a.label(f"L_{name}_loop")
        for i in range(n):
            a(f"s_waitcnt vmcnt({(n-1)*nloads})")
            (check_ml(sets[i], acc) if per == 0 else check(sets[i], acc, per))
            a(f"s_cbranch_vccz L_{name}_ok{i}")
            loads(i)
        a(f"""
        s_add_u32 s{S_CNT}, s{S_CNT}, 1
        s_cmp_lt_u32 s{S_CNT}, {POLL_LIMIT}
        s_cbranch_scc1 L_{name}_loop
        s_waitcnt vmcnt(0)
        """)
        for i in range(n):
            a.label(f"L_{name}_ok{i}")
            consume(i)
            if i != n - 1: a(f"s_branch L_{name}_done")
        a.label(f"L_{name}_done")
    def tag_setup():
        a(f"""
        v_readfirstlane_b32 s{S_EP}, v{VTAG}
        v_add_u32 v{VTAG}, 1, v{VTAG}
        """)
        for e in (3, 2, 1):
            a(f"v_add_u32 v{VT[e]}, {e * 0x35}, v{VTAG}\nv_and_b32 v{VT[e]}, {TAGMASK}, v{VT[e]}")
        a(f"v_and_b32 v{VTAG}, {TAGMASK}, v{VTAG}")
    def ws_srd():
        a(f"""
        s_mov_b32 s{R_WS}, s26
        s_mov_b32 s{R_WS+1}, s27
        s_mov_b32 s{R_WS+2}, {WS_SIZE}
        s_mov_b32 s{R_WS+3}, 0x20000
        s_mov_b32 s{T1}, {EP_OFF}
        v_mov_b32 v33, 0
        buffer_load_dword v{VTAG}, v33, {srd(R_WS)}, s{T1} offen sc1
        """)
    def common_regs():
        a(f"""
        s_mov_b32 s{M_H4}, 0x000F000F
        s_mov_b32 s{M_H4+1}, 0x000F000F
        s_mov_b32 s{M_16}, 0xFFFF
        s_mov_b32 s{M_16+1}, 0
        v_mov_b32 v{VMSK}, {TAGMASK}
        v_lshrrev_b32 v32, 2, v2
        v_lshl_add_u32 v32, v3, 3, v32
        v_lshlrev_b32 v32, 7, v32
        v_lshl_add_u32 v34, v4, 3, v32
        s_lshl_b32 s{T3}, s{S_WAVE}, 5
        s_add_u32 s{T3}, s{T3}, {L_T0}
        v_add_u32 v34, s{T3}, v34                     ; T0 + (8g+r)*128 + t*32 + c4*8
        v_mul_u32_u24 v35, {Q_STR}, v4
        v_lshl_add_u32 v35, v3, 4, v35                ; (l&3)*272 + g*16
        v_lshlrev_b32 v5, 4, v1                       ; l*16
        """)

    kernel_begin(a, kn)
    a(f"""
    s_cmp_ge_u32 s2, 256
    s_cbranch_scc1 L_exit
    s_load_dwordx16 s[4:19], s[0:1], 0
    s_load_dwordx8 s[20:27], s[0:1], 64
    """)
    stamp()
    for _ in range(int(cfg.get("diag_sleep", 0))): a("s_sleep 100")
    a(f"""
    v_and_b32 v1, 63, v0
    v_lshrrev_b32 v32, 6, v0
    v_and_b32 v2, 15, v1
    v_readfirstlane_b32 s{S_WAVE}, v32
    v_lshrrev_b32 v3, 4, v1
    v_and_b32 v4, 3, v1
    v_mov_b32 v{VF}, {L_FL}
    v_mov_b32 v{VONE}, 1
    s_lshr_b32 s{S_B}, s2, 6
    s_bfe_u32 s{S_HKV}, s2, 0x30003
    s_and_b32 s{S_S}, s2, 7
    s_lshl_b32 s{S_H}, s{S_HKV}, 2
    s_add_u32 s{S_H}, s{S_H}, s{S_B}
    s_mov_b32 s{S_PROG}, 0
    s_cmp_lg_u32 s{S_WAVE}, 0
    s_cbranch_scc1 L_noinit
    v_lshlrev_b32 v32, 2, v1
    v_mov_b32 v33, 0
    s_mov_b64 exec, 0xFFFF
    ds_write_b32 v32, v33 offset:{L_FL}
    s_mov_b64 exec, -1
    s_waitcnt lgkmcnt(0)
    """)
    a.label("L_noinit")
    earlybar = int(cfg.get("earlybar", 0))
    if earlybar: a("s_barrier")
    a(f"""
    s_lshr_b32 s{S_ROLE}, s{S_WAVE}, 2
    s_and_b32 s{S_WAVE}, s{S_WAVE}, 3
    s_cmp_eq_u32 s{S_ROLE}, 0
    s_cbranch_scc1 L_qwave
    """)
    start_stamp = nstamp[0]
    a(f"""
    s_setprio 3
    v_lshlrev_b32 v5, 4, v1
    s_lshl_b32 s{T0}, s{S_WAVE}, 10
    v_lshrrev_b32 v36, 3, v1
    v_and_b32 v37, 7, v1
    v_lshlrev_b32 v37, 4, v37
    v_lshl_add_u32 v22, v36, 13, v37
    s_lshl_b32 s{T2}, s{S_B}, 20
    s_lshl_b32 s{T1}, s{S_HKV}, 10
    s_add_u32 s{T2}, s{T2}, s{T1}
    s_lshl_b32 s{T1}, s{S_S}, 7
    s_add_u32 s{T4}, s{T2}, s{T1}
    s_waitcnt lgkmcnt(0)
    s_mov_b32 s{R_X}, s4
    s_mov_b32 s{R_X+1}, s5
    s_mov_b32 s{R_X+2}, 4096
    s_mov_b32 s{R_X+3}, 0x20000
    buffer_load_dwordx4 v[24:27], v5, {srd(R_X)}, s{T0} offen
    s_add_u32 s{R_WQ}, s10, s{T4}
    s_addc_u32 s{R_WQ+1}, s11, 0
    s_mov_b32 s{R_WQ+2}, {127*8192+128}
    s_mov_b32 s{R_WQ+3}, 0x20000
    """)
    ws_srd()
    def tile_dma(p):
        n_per = 2 if p == "DN" else 4
        stride = {"WQ": 8192, "GU": 3584, "WO": 1024, "DN": 1024}[p]
        vo = {"WQ": 22, "GU": 23, "WO": 21, "DN": 21}[p]
        R = {"WQ": R_WQ, "GU": R_GU, "WO": R_WO, "DN": R_DN}[p]
        LB = L_T0 if t0seq else {"WQ": L_T0, "GU": L_GUT, "WO": L_T0, "DN": (L_RING if dnlate else L_DNT)}[p]
        out = []
        for q in range(n_per):
            def f(q=q):
                if q == 0:
                    a(f"""
                    s_mul_i32 s{T1}, s{S_WAVE}, {n_per*8*stride}
                    s_mul_i32 s{T0}, s{S_WAVE}, {n_per*1024}
                    s_add_u32 s{T0}, s{T0}, {LB}
                    """)
                else:
                    a(f"s_add_u32 s{T1}, s{T1}, {8*stride}\ns_add_u32 s{T0}, s{T0}, 1024")
                a(f"""
                s_mov_b32 m0, s{T0}
                s_nop 0
                buffer_load_dwordx4 v{vo}, {srd(R)}, s{T1} offen{NT} lds
                """)
            out.append(f)
        return out
    for f in tile_dma("WQ"): f()
    if not earlybar: a("s_barrier")
    a(f"""
    v_mul_u32_u24 v23, 3584, v36
    v_add_u32 v23, v23, v37
    v_lshl_add_u32 v21, v36, 10, v37
    s_and_b32 s{T0}, s{S_S}, 1
    s_cmp_eq_u32 s{T0}, 0
    s_cselect_b32 s{T2}, s16, s18
    s_cselect_b32 s{T3}, s17, s19
    s_lshr_b32 s{T0}, s{S_S}, 1
    s_mul_i32 s{T0}, s{T0}, {128*3584}
    s_lshl_b32 s{T1}, s{S_H}, 7
    s_add_u32 s{T0}, s{T0}, s{T1}
    s_add_u32 s{R_GU}, s{T2}, s{T0}
    s_addc_u32 s{R_GU+1}, s{T3}, 0
    s_cmp_lt_u32 s{S_H}, 28
    s_cselect_b32 s{R_GU+2}, {127*3584+128}, 0
    s_mov_b32 s{R_GU+3}, 0x20000
    """)
    gulate = int(cfg.get("gulate", 1))
    if not gulate:
        for f in tile_dma("GU"): f()
    a(f"""
    s_lshl_b32 s{T0}, s{S_H}, 16
    s_lshl_b32 s{T1}, s{S_S}, 7
    s_add_u32 s{T0}, s{T0}, s{T1}
    s_add_u32 s{R_DN}, s20, s{T0}
    s_addc_u32 s{R_DN+1}, s21, 0
    s_cmp_lt_u32 s{S_H}, 28
    s_cselect_b32 s{R_DN+2}, {63*1024+128}, 0
    s_mov_b32 s{R_DN+3}, 0x20000
    """)
    if not dnlate and not gulate:
        for f in tile_dma("DN"): f()
    pret = int(cfg.get("pret", 0))
    if pret:
        a(f"""
        s_lshl_b32 s{T0}, s{S_B}, 16
        s_lshl_b32 s{T1}, s{S_HKV}, 11
        s_add_u32 s{T0}, s{T0}, s{T1}
        s_lshl_b32 s{T1}, s{S_S}, 8
        s_add_u32 s{T0}, s{T0}, s{T1}
        s_lshl_b32 s{T1}, s{S_H}, 13
        s_lshl_b32 s{T2}, s{S_S}, 10
        s_add_u32 s{T1}, s{T1}, s{T2}
        s_add_u32 s{T1}, s{T1}, {GU_OFF}
        s_lshl_b32 s{T2}, s{S_HKV}, 16
        s_lshl_b32 s{T3}, s{S_B}, 12
        s_add_u32 s{T2}, s{T2}, s{T3}
        s_lshl_b32 s{T3}, s{S_S}, 9
        s_add_u32 s{T2}, s{T2}, s{T3}
        s_add_u32 s{T2}, s{T2}, {AP_OFF}
        s_lshl_b32 s{T3}, s{S_S}, 15
        s_lshl_b32 s{T4}, s{S_H}, 8
        s_add_u32 s{T3}, s{T3}, s{T4}
        s_add_u32 s{T3}, s{T3}, {OP_OFF}
        s_lshl_b32 s{T4}, s{S_HKV}, 11
        s_lshl_b32 s{T5}, s{S_B}, 9
        s_add_u32 s{T4}, s{T4}, s{T5}
        s_lshl_b32 s{T5}, s{S_S}, 6
        s_add_u32 s{T4}, s{T4}, s{T5}
        s_add_u32 s{T4}, s{T4}, {ML_OFF}
        s_cmp_eq_u32 s{S_WAVE}, 0
        s_cbranch_scc1 L_pt0
        s_cmp_eq_u32 s{S_WAVE}, 3
        s_cbranch_scc1 L_pt3
        v_lshrrev_b32 v100, 5, v1
        v_and_b32 v101, 31, v1
        v_lshlrev_b32 v100, 14, v100
        v_lshl_add_u32 v100, v101, 4, v100
        s_sub_u32 s{T5}, s{S_WAVE}, 1
        s_lshl_b32 s{T5}, s{T5}, 15
        s_add_u32 s{T2}, s{T2}, s{T5}
        buffer_load_dwordx4 v[104:107], v100, {srd(R_WS)}, s{T2} offen sc1
        buffer_load_dword v108, v100, {srd(R_WS)}, s{T2} offen sc1
        s_branch L_ptd
        """)
        a.label("L_pt0")
        a(f"""
        v_lshlrev_b32 v100, 14, v3
        v_lshl_add_u32 v100, v2, 4, v100
        buffer_load_dwordx4 v[104:107], v100, {srd(R_WS)}, s{T0} offen sc1
        buffer_load_dwordx4 v[108:111], v5, {srd(R_WS)}, s{T1} offen sc1
        s_branch L_ptd
        """)
        a.label("L_pt3")
        a(f"""
        v_lshlrev_b32 v100, 13, v3
        v_lshl_add_u32 v100, v2, 4, v100
        buffer_load_dwordx4 v[104:107], v100, {srd(R_WS)}, s{T3} offen sc1
        v_and_b32 v101, 3, v1
        v_lshlrev_b32 v101, 4, v101
        buffer_load_dwordx4 v[108:111], v101, {srd(R_WS)}, s{T4} offen sc1
        """)
        a.label("L_ptd")
    common_regs()
    npf = int(cfg.get("codepf", 0))
    a(f"""
    s_lshl_b32 s{T0}, s2, 17
    s_add_u32 s{R_V}, s8, s{T0}
    s_addc_u32 s{R_V+1}, s9, 0
    s_mov_b32 s{R_V+2}, 131072
    s_mov_b32 s{R_V+3}, 0x20000
    s_lshl_b32 s{T0}, s{S_H}, 17
    s_lshl_b32 s{T1}, s{S_S}, 7
    s_add_u32 s{T0}, s{T0}, s{T1}
    s_add_u32 s{R_WO}, s12, s{T0}
    s_addc_u32 s{R_WO+1}, s13, 0
    s_mov_b32 s{R_WO+2}, {127*1024+128}
    s_mov_b32 s{R_WO+3}, 0x20000
    """)
    for v in range(2):
        a(f"v_lshlrev_b32 v36, 1, v3\nv_add_u32 v36, {8*v}, v36\nv_xor_b32 v{16+v}, v2, v36\nv_lshlrev_b32 v{16+v}, 4, v{16+v}\nv_lshl_add_u32 v{16+v}, v3, 8, v{16+v}")
    if int(cfg.get("lin", 1)):
        a(f"""
        s_and_b32 s{T0}, s{S_WAVE}, 1
        s_cmp_eq_u32 s{T0}, 1
        s_cselect_b64 vcc, -1, 0
        v_cndmask_b32 v16, v16, v17, vcc
        """)
    SQP, SGU = 78, 79
    a(f"""
    s_lshl_b32 s{T4}, s{S_WAVE}, 2
    s_add_u32 s{T4}, s{T4}, {L_FL + F_LPROG}
    v_mov_b32 v18, s{T4}
    s_lshl_b32 s{SQP}, s{S_B}, 16
    s_lshl_b32 s{T1}, s{S_HKV}, 11
    s_add_u32 s{SQP}, s{SQP}, s{T1}
    s_lshl_b32 s{T1}, s{S_S}, 8
    s_add_u32 s{SQP}, s{SQP}, s{T1}
    s_add_u32 s{SQP}, s{SQP}, {QP_OFF}
    s_lshl_b32 s{SGU}, s{S_H}, 13
    s_lshl_b32 s{T1}, s{S_S}, 10
    s_add_u32 s{SGU}, s{SGU}, s{T1}
    s_add_u32 s{SGU}, s{SGU}, {GU_OFF}
    s_lshl_b32 s{T1}, s{S_WAVE}, 6                ; t*64
    v_lshlrev_b32 v11, 14, v2
    v_lshl_add_u32 v11, v3, 4, v11
    v_add_u32 v11, s{T1}, v11
    v_lshlrev_b32 v12, 8, v2
    v_lshl_add_u32 v12, v3, 4, v12
    v_add_u32 v12, s{T1}, v12
    v_add_u32 v19, {0 if t0seq else L_GUT - L_T0}, v34
    v_add_u32 v20, {0 if t0seq else (L_RING if dnlate else L_DNT) - L_T0}, v34
    s_waitcnt vmcnt({4 if gulate else (8 if dnlate else 10) + (2 if pret else 0)})
    """)
    stamp()
    if npf:
        a(f"""
        s_cmp_ge_u32 s2, {npf}
        s_cbranch_scc1 L_nopf
        s_getpc_b64 s[{M_T}:{M_T+1}]
        """)
        a.label("L_pcref")
        a(f"""
        s_lshl_b32 s{T0}, s{S_WAVE}, 12
        v_add_u32 v100, s{T0}, v5
        s_mov_b32 s{T1}, L_exit-L_pcref-16
        """)
        for k in range(4):
            a(f"""
            v_add_u32 v101, {k*1024}, v100
            v_cmp_gt_u32 vcc, s{T1}, v101
            s_and_saveexec_b64 s[88:89], vcc
            s_cbranch_execz L_pfs{k}
            global_load_dwordx4 v[104:107], v101, s[{M_T}:{M_T+1}]
            """)
            a.label(f"L_pfs{k}")
            a("s_mov_b64 exec, -1")
        a.label("L_nopf")
    tag_setup()
    for e in range(4):
        a(f"v_lshlrev_b32 v{40+2*e}, 16, v{24+e}\nv_and_b32 v{41+2*e}, 0xffff0000, v{24+e}")
    a(f"""
    v_add_f32 v32, v40, v41
    v_add_f32 v33, v42, v43
    v_add_f32 v36, v44, v45
    v_add_f32 v37, v46, v47
    v_add_f32 v32, v32, v33
    v_add_f32 v36, v36, v37
    v_add_f32 v32, v32, v36
    """)
    wave_sum(32, 33)
    a("v_mul_f32 v32, 0x3b000000, v32")
    for e in range(8):
        a(f"v_sub_f32 v{48+e}, v{40+e}, v32")
    a("v_mul_f32 v33, v48, v48\nv_mul_f32 v36, v49, v49")
    for e in range(2, 8, 2):
        a(f"v_fmac_f32 v33, v{48+e}, v{48+e}\nv_fmac_f32 v36, v{49+e}, v{49+e}")
    a("v_add_f32 v33, v33, v36")
    wave_sum(33, 36)
    a("v_mul_f32 v33, 0x3b000000, v33")
    rne(32, 32); rne(33, 33)
    a("v_add_f32 v33, 0x3727c5ac, v33")
    rne(33, 33)
    a("v_sqrt_f32 v33, v33")
    for e in range(8):
        a(f"v_sub_f32 v{48+e}, v{40+e}, v32")
    rne(33, 33)
    a("v_rcp_f32 v33, v33")
    for e in range(0, 8, 2):
        a(f"v_cvt_pk_bf16_f32 v36, v{48+e}, v{49+e}\nv_lshlrev_b32 v{48+e}, 16, v36\nv_and_b32 v{49+e}, 0xffff0000, v36")
    for e in range(8):
        a(f"v_mul_f32 v{48+e}, v{48+e}, v33")
    for e in range(4):
        a(f"v_cvt_pk_bf16_f32 v{44+e}, v{48+2*e}, v{49+2*e}")
    a(f"""
    s_mul_i32 s{T0}, s{S_WAVE}, {Q_STR}
    v_lshlrev_b32 v32, 4, v2
    v_add_u32 v32, s{T0}, v32
    v_cmp_eq_u32 vcc, s{S_B}, v3
    s_and_saveexec_b64 s[{M_T}:{M_T+1}], vcc
    ds_write_b128 v32, v[44:47] offset:{L_XQ}
    s_mov_b64 exec, -1
    s_lshr_b32 s{T1}, s{S_S}, 1
    v_cmp_eq_u32 vcc, s{T1}, v3
    s_and_saveexec_b64 s[{M_T}:{M_T+1}], vcc
    ds_write_b128 v32, v[44:47] offset:{L_XG}
    s_mov_b64 exec, -1
    s_waitcnt vmcnt({0 if gulate else (4 if dnlate else 6) + (2 if pret else 0)})
    """)
    barrier(F_XB)
    stamp()
    WF, XF, DA = 48, 64, 80
    def p1(xoff, voff, sbase, areg):
        for kk in range(4):
            a(f"ds_read_b128 {vr(XF+4*kk,4)}, v35 offset:{xoff+kk*64}")
        for kk in range(4):
            a(f"ds_read_b64_tr_b16 {vr(WF+4*kk,2)}, v{areg} offset:{kk*4096}")
            a(f"ds_read_b64_tr_b16 {vr(WF+4*kk+2,2)}, v{areg} offset:{kk*4096+512}")
        for kk in range(4):
            a(f"s_waitcnt lgkmcnt({6-2*kk})")
            c = "0" if kk == 0 else vr(DA,4)
            a(f"v_mfma_f32_16x16x32_bf16 {vr(DA,4)}, {vr(WF+4*kk,4)}, {vr(XF+4*kk,4)}, {c}")
        a("s_nop 7")
        tag(range(DA, DA+4))
        a(f"""
        s_mov_b64 exec, s[{M_H4}:{M_H4+1}]
        buffer_store_dwordx4 {vr(DA,4)}, v{voff}, {srd(R_WS)}, s{sbase} offen sc1
        s_mov_b64 exec, -1
        """)
    p1(L_XQ, 11, SQP, 34)
    if t0seq:
        barrier(F_XB)
        for f in tile_dma("GU"): f()
    elif gulate:
        for f in tile_dma("GU"): f()
        for f in tile_dma("DN"): f()
    stamp()
    a(f"s_waitcnt vmcnt({0 if gulate else 1 + (2 if pret else 0)})")
    barrier(F_XB)
    p1(L_XG, 12, SGU, 19)
    DF = 84
    def dn_frags():
        for kk in range(2):
            a(f"ds_read_b64_tr_b16 {vr(DF+4*kk,2)}, v20 offset:{kk*4096}")
            a(f"ds_read_b64_tr_b16 {vr(DF+4*kk+2,2)}, v20 offset:{kk*4096+512}")
    if not dnlate and not t0seq: dn_frags()
    xb_tiles = b_arrive(F_XB)
    flag_add(F_R3)
    stamp()
    QG, GG = 24, 92
    a(f"""
    s_lshl_b32 s{T0}, s{S_B}, 14
    s_lshl_b32 s{T1}, s{S_HKV}, 11
    s_add_u32 s{T0}, s{T0}, s{T1}
    s_lshl_b32 s{T1}, s{S_WAVE}, 9
    s_add_u32 s{T5}, s{T0}, s{T1}
    s_add_u32 s{T5}, s{T5}, {QP_OFF}
    v_lshlrev_b32 v38, 16, v3
    v_lshl_add_u32 v38, v2, 4, v38
    s_lshl_b32 s{T4}, s{S_H}, 13
    s_lshl_b32 s{T1}, s{S_WAVE}, 8
    s_add_u32 s{T4}, s{T4}, s{T1}
    s_add_u32 s{T4}, s{T4}, {GU_OFF}
    v_lshlrev_b32 v39, 10, v3
    v_lshl_add_u32 v39, v2, 4, v39
    v_add_u32 v10, 4096, v39
    """)
    def qloads():
        a(f"buffer_load_dwordx4 {vr(QG,4)}, v38, {srd(R_WS)}, s{T5} offen sc1")
        a(f"buffer_load_dwordx4 {vr(QG+4,4)}, v38, {srd(R_WS)}, s{T5} offen offset:256 sc1")
    def gloads():
        a(f"buffer_load_dwordx4 {vr(GG,4)}, v39, {srd(R_WS)}, s{T4} offen sc1")
        a(f"buffer_load_dwordx4 {vr(GG+4,4)}, v10, {srd(R_WS)}, s{T4} offen sc1")
    vml = []
    def issue(tagname): vml.append(tagname)
    def younger(tagname):
        last = max(i for i, t in enumerate(vml) if t == tagname)
        return len(vml) - 1 - last
    signaled = []
    def signal(p):
        a(f"v_mov_b32 v9, {pidx[p]}\nds_write_b32 v18, v9")
        signaled.append(p)
    def try_signals():
        for p in PIECES:
            if p in signaled: continue
            n = {"WO": 4, "V3a": 4, "V3b": 4}.get(p, 8)
            if vml.count(p) == n and younger(p) >= D:
                a(f"s_waitcnt vmcnt({younger(p)})")
                signal(p)
            else:
                break
    lin = int(cfg.get("lin", 1))
    def vstage(st):
        for q in range(8):
            if lin:
                a(f"""
                s_lshl_b32 s{T0}, s{S_WAVE}, 10
                s_add_u32 s{T0}, s{T0}, {st*32768 + q*4096}
                s_add_u32 s{T1}, s{T0}, {L_RING}
                s_mov_b32 m0, s{T1}
                s_nop 0
                buffer_load_dwordx4 v16, {srd(R_V)}, s{T0} offen{NT} lds
                """)
            else:
                if q % 4 == 0:
                    a(f"""
                    s_lshl_b32 s{T0}, s{S_WAVE}, 13
                    s_add_u32 s{T0}, s{T0}, {st*32768 + (q//4)*4096}
                    s_add_u32 s{T1}, s{T0}, {L_RING}
                    s_mov_b32 m0, s{T1}
                    s_nop 0
                    """)
                a(f"buffer_load_dwordx4 v{16 + q % 2}, {srd(R_V)}, s{T0} offen offset:{(q%4)*1024}{NT} lds")
            issue(f"V{st}" if not (split3 and st == 3) else ("V3a" if q < 4 else "V3b"))
            if q % 4 == 3: try_signals()
    qlate = int(cfg.get("qlate", 0))
    def q_finish(first_wait):
        poll("q", list(range(QG, QG+8)), qloads, 41, first_wait)
        stamp()
        xorN(16, "v_add_f32", list(range(QG, QG+8)), list(range(40, 48)))
        xorN(32, "v_add_f32", list(range(QG, QG+8)), list(range(40, 48)))
        a(f"""
        v_cvt_pk_bf16_f32 v42, v{QG}, v{QG+1}
        v_cvt_pk_bf16_f32 v43, v{QG+2}, v{QG+3}
        v_cvt_pk_bf16_f32 v44, v{QG+4}, v{QG+5}
        v_cvt_pk_bf16_f32 v45, v{QG+6}, v{QG+7}
        s_mul_i32 s{T0}, s{S_WAVE}, {Q_STR}
        s_add_u32 s{T0}, s{T0}, {L_Q}
        v_lshlrev_b32 v41, 3, v2
        v_add_u32 v41, s{T0}, v41
        s_mov_b64 exec, s[{M_16}:{M_16+1}]
        ds_write_b64 v41, v[42:43]
        ds_write_b64 v41, v[44:45] offset:128
        s_mov_b64 exec, -1
        """)
        flag_add(F_QR)
    if t0seq:
        qloads(); issue("q"); issue("q")
        a("s_setprio 0")
        spin_ge(F_KC, 4)
        vstage(0)
        q_finish(f"s_waitcnt vmcnt({younger('q')})")
        spin_ge(F_KC, 8)
        vstage(1)
        b_wait(F_XB, xb_tiles)
        for f in tile_dma("DN"):
            f(); issue("DN")
        gloads(); issue("g"); issue("g")
        spin_ge(F_KC, 12)
        vstage(2)
        a(f"s_waitcnt vmcnt({younger('DN')})")
        barrier(F_XB)
        dn_frags()
        xb_dn = b_arrive(F_XB)
        spin_ge(F_KC, 16)
        vstage(3)
        b_wait(F_XB, xb_dn)
    else:
      if qlate:
        a("s_setprio 0")
        spin_ge(F_KC, 4)
        vstage(0)
        a("s_setprio 3")
        qloads(); issue("q"); issue("q")
        a("s_setprio 0")
        spin_ge(F_KC, 8)
        if qlate == 1:
            vstage(1)
            q_finish(f"s_waitcnt vmcnt({younger('q')})")
        else:
            q_finish(f"s_waitcnt vmcnt(0)")
            vstage(1)
      else:
        qloads(); issue("q"); issue("q")
        q_finish("s_waitcnt vmcnt(0)")
        a("s_setprio 0")
        spin_ge(F_KC, 4)
        vstage(0)
        spin_ge(F_KC, 8)
        vstage(1)
      gloads(); issue("g"); issue("g")
      spin_ge(F_KC, 12)
      vstage(2)
      b_wait(F_XB, xb_tiles)
      spin_ge(F_KC, 16)
      vstage(3)
    for f in tile_dma("WO"):
        f(); issue("WO")
    if dnlate:
        spin_ge(F_P0, 4)
        for f in tile_dma("DN"):
            f(); issue("DN")
    try_signals()
    stamp()
    poll("g", list(range(GG, GG+8)), gloads, 44, f"s_waitcnt vmcnt({younger('g')})")
    for e in range(4):
        a(f"v_add_f32 v{GG+e}, v{GG+e}, v{GG+4+e}")
    xorN(32, "v_add_f32", list(range(GG, GG+4)), [44,45,46,47])
    for e in range(4):
        a(f"v_mov_b32 v{GG+4+e}, v{GG+e}")
    a("s_nop 1")
    for e in range(4):
        a(f"v_permlane16_swap_b32 v{GG+e}, v{GG+4+e}")
    a("s_nop 0")
    for e in range(4):
        rne(GG+e, GG+e); rne(GG+4+e, GG+4+e)
    tm = [44, 45, 46, 47]
    for e in range(4): a(f"v_mul_f32 v{tm[e]}, v{GG+e}, v{GG+e}")
    for e in range(4): a(f"v_mul_f32 v{tm[e]}, v{tm[e]}, v{GG+e}")
    for e in range(4): a(f"v_mul_f32 v{tm[e]}, 0x3d372713, v{tm[e]}")
    for e in range(4): a(f"v_add_f32 v{tm[e]}, v{tm[e]}, v{GG+e}")
    for e in range(4): a(f"v_mul_f32 v{tm[e]}, 0xc0135761, v{tm[e]}")
    for e in range(4): a(f"v_exp_f32 v{tm[e]}, v{tm[e]}")
    a("s_nop 0")
    for e in range(4): a(f"v_add_f32 v{tm[e]}, 1.0, v{tm[e]}")
    for e in range(4): a(f"v_rcp_f32 v{tm[e]}, v{tm[e]}")
    a("s_nop 0")
    for e in range(4): a(f"v_mul_f32 v{GG+e}, v{GG+e}, v{tm[e]}")
    for e in range(4): rne(GG+e, GG+e)
    for e in range(4): a(f"v_mul_f32 v{GG+e}, v{GG+e}, v{GG+4+e}")
    a(f"""
    v_cvt_pk_bf16_f32 v44, v{GG}, v{GG+1}
    v_cvt_pk_bf16_f32 v45, v{GG+2}, v{GG+3}
    s_mul_i32 s{T0}, s{S_WAVE}, {H_STR}
    v_lshlrev_b32 v47, 3, v2
    v_add_u32 v47, s{T0}, v47
    s_mov_b64 exec, s[{M_16}:{M_16+1}]
    ds_write_b64 v47, v[44:45] offset:{L_H}
    s_mov_b64 exec, -1
    """)
    if dnlate:
        for p in PIECES:
            if p not in signaled:
                a(f"s_waitcnt vmcnt({younger(p)})"); signal(p)
        a("s_waitcnt vmcnt(0)")
        barrier(F_XB)
        dn_frags()
    else:
        xb_h = b_arrive(F_XB)
        for p in ("V1", "V2"):
            if p not in signaled:
                a(f"s_waitcnt vmcnt({younger(p)})"); signal(p)
        b_wait(F_XB, xb_h)
    a(f"""
    v_mul_u32_u24 v47, {H_STR}, v4
    v_lshl_add_u32 v47, v3, 4, v47
    """)
    HF = 64
    for kk in range(2):
        a(f"ds_read_b128 {vr(HF+4*kk,4)}, v47 offset:{L_H+kk*64}")
    a("s_waitcnt lgkmcnt(0)")
    DN_ACC = 80
    for kk in range(2):
        c = "0" if kk == 0 else vr(DN_ACC,4)
        a(f"v_mfma_f32_16x16x32_bf16 {vr(DN_ACC,4)}, {vr(DF+4*kk,4)}, {vr(HF+4*kk,4)}, {c}")
    a(f"""
    s_lshl_b32 s{T0}, s{S_WAVE}, 8
    v_lshlrev_b32 v47, 2, v4
    v_add_u32 v47, v47, v3
    v_lshlrev_b32 v47, 4, v47                     ; ((l&3)*4+g)*16
    v_add_u32 v47, s{T0}, v47
    s_nop 3
    s_mov_b64 exec, s[{M_H4}:{M_H4+1}]
    ds_write_b128 v47, {vr(DN_ACC,4)} offset:{L_DNP}
    s_mov_b64 exec, -1
    """)
    flag_add(F_DR)
    stamp()
    for p in PIECES:
        if p not in signaled:
            a(f"s_waitcnt vmcnt({younger(p)})"); signal(p)
    stamp()
    a("s_waitcnt lgkmcnt(0)\ns_branch L_end")
    x_stamps = nstamp[0]

    nstamp[0] = start_stamp
    a.label("L_qwave")
    VT[:] = [6, 8, 9, 10]
    a(f"s_setprio {int(cfg.get('qprio', 1))}")
    a(f"""
    s_lshl_b32 s{T0}, s{S_WAVE}, {12 if int(cfg.get("lin", 1)) else 15}
    v_lshlrev_b32 v16, 8, v2
    v_lshl_add_u32 v16, v3, 4, v16
    v_add_u32 v16, s{T0}, v16                     ; K voffset
    s_lshl_b32 s{T0}, s2, 17
    s_waitcnt lgkmcnt(0)
    s_add_u32 s{R_K}, s6, s{T0}
    s_addc_u32 s{R_K+1}, s7, 0
    s_mov_b32 s{R_K+2}, 131072
    s_mov_b32 s{R_K+3}, 0x20000
    """)
    if cfg.get("k0stamp"): stamp()
    if not earlybar: a("s_barrier")
    if cfg.get("k0stamp"): stamp()
    kfirst = int(cfg.get("kfirst", 1))
    if not kfirst: ws_srd()
    KB = 64
    for n in range(4):
        a(f"v_add_u32 v32, {4*n}, v3\nv_xor_b32 v{52+n}, v2, v32\nv_lshlrev_b32 v{52+n}, 4, v{52+n}\nv_lshl_add_u32 v{52+n}, v3, 8, v{52+n}")
    def kdma(T):
        a(f"""
        s_lshl_b32 s{T0}, s{S_WAVE}, 12
        s_add_u32 s{T0}, s{T0}, {T*16384}
        s_add_u32 s{T1}, s{T0}, {L_RING}
        s_mov_b32 m0, s{T1}
        s_nop 0
        """)
        for n in range(4):
            a(f"buffer_load_dwordx4 v{52+n}, {srd(R_K)}, s{T0} offen offset:{n*1024}{NT} lds")
    def kcopy(T):
        for j in range(4):
            r = KB + (T * 4 + j) * 4
            base = (56 if T < 4 else 60) + j
            a(f"ds_read_b128 {vr(r,4)}, v{base} offset:{(T*16384) % 65536}")
        if T % 2 == 1: flag_add(F_KC)
    for T in range(6):
        kdma(T)
        if T == 0 and cfg.get("k0stamp"): stamp()
        if T == 0 and kfirst: ws_srd()
    a(f"""
    s_lshl_b32 s{T0}, s{S_WAVE}, 12
    s_add_u32 s{T0}, s{T0}, {L_RING}
    v_lshlrev_b32 v32, 8, v2
    v_add_u32 v32, s{T0}, v32
    """)
    for j in range(4):
        a(f"v_add_u32 v33, {4*j}, v3\nv_xor_b32 v33, v33, v2\nv_lshl_add_u32 v{56+j}, v33, 4, v32\nv_add_u32 v{60+j}, 65536, v{56+j}")
    a("s_waitcnt vmcnt(16)")
    kcopy(0); kcopy(1)
    if not t0seq: spin_ge(F_R3, 4)
    kdma(6); kdma(7)
    stamp()
    common_regs()
    SAP, SOP, SML = 66, 67, 60
    a(f"""
    s_mov_b32 s{R_X}, s4
    s_mov_b32 s{R_X+1}, s5
    s_mov_b32 s{R_X+2}, 4096
    s_mov_b32 s{R_X+3}, 0x20000
    s_mov_b32 s{R_OUT}, s22
    s_mov_b32 s{R_OUT+1}, s23
    s_mov_b32 s{R_OUT+2}, 4096
    s_mov_b32 s{R_OUT+3}, 0x20000
    s_lshl_b32 s{SAP}, s{S_HKV}, 16
    s_lshl_b32 s{T1}, s{S_B}, 12
    s_add_u32 s{SAP}, s{SAP}, s{T1}
    s_lshl_b32 s{T1}, s{S_S}, 9
    s_add_u32 s{SAP}, s{SAP}, s{T1}
    s_add_u32 s{SAP}, s{SAP}, {AP_OFF}
    s_lshl_b32 s{SOP}, s{S_S}, 15
    s_lshl_b32 s{T1}, s{S_H}, 8
    s_add_u32 s{SOP}, s{SOP}, s{T1}
    s_add_u32 s{SOP}, s{SOP}, {OP_OFF}
    s_lshl_b32 s{SML}, s{S_HKV}, 11
    s_lshl_b32 s{T1}, s{S_B}, 9
    s_add_u32 s{SML}, s{SML}, s{T1}
    s_lshl_b32 s{T1}, s{S_S}, 6
    s_add_u32 s{SML}, s{SML}, s{T1}
    s_add_u32 s{SML}, s{SML}, {ML_OFF}
    s_lshl_b32 s{T1}, s{S_WAVE}, 7                ; cw*128
    v_lshlrev_b32 v11, 14, v2
    v_lshl_add_u32 v11, v3, 4, v11
    v_add_u32 v11, s{T1}, v11
    s_lshl_b32 s{T1}, s{S_WAVE}, 6
    v_lshlrev_b32 v13, 13, v2
    v_lshl_add_u32 v13, v3, 4, v13
    v_add_u32 v13, s{T1}, v13
    """)
    a(f"""
    v_mul_u32_u24 v41, {P_STR}, v4
    v_lshl_add_u32 v41, v3, 4, v41
    v_add_u32 v41, {L_P}, v41
    v_lshrrev_b32 v42, 2, v2
    v_lshl_add_u32 v42, v3, 2, v42                ; key_local
    v_and_b32 v43, 7, v42
    v_lshlrev_b32 v43, 1, v43
    v_lshrrev_b32 v44, 1, v4
    s_lshl_b32 s{T0}, s{S_WAVE}, 2
    v_add_u32 v44, s{T0}, v44
    v_xor_b32 v45, v44, v43
    v_lshlrev_b32 v45, 4, v45
    v_lshl_add_u32 v45, v42, 8, v45
    v_and_b32 v48, 1, v4
    v_lshl_add_u32 v20, v48, 3, v45
    v_add_u32 v20, {L_RING}, v20
    v_add_u32 v21, 65536, v20
    v_add_u32 v44, 2, v44
    v_xor_b32 v45, v44, v43
    v_lshlrev_b32 v45, 4, v45
    v_lshl_add_u32 v45, v42, 8, v45
    v_lshl_add_u32 v22, v48, 3, v45
    v_add_u32 v22, {L_RING}, v22
    v_add_u32 v23, 65536, v22
    v_lshlrev_b32 v40, 2, v2                      ; (l&15)*4
    s_lshl_b32 s{T0}, s{S_WAVE}, 6
    v_add_u32 v39, s{T0}, v40
    s_lshl_b32 s{T0}, s{S_WAVE}, 8
    s_lshr_b32 s{T1}, s{S_WAVE}, 1
    s_lshl_b32 s{T1}, s{T1}, 6
    s_and_b32 s{T2}, s{S_WAVE}, 1
    s_lshl_b32 s{T2}, s{T2}, 3
    s_add_u32 s{T1}, s{T1}, s{T2}
    s_cmp_eq_u32 s{T1}, s{T1}
    s_cselect_b32 s{T0}, s{T1 if int(cfg.get("lin", 1)) else T0}, s{T0}
    v_mul_u32_u24 v38, {P_STR}, v2
    v_lshl_add_u32 v38, v3, 4, v38
    v_add_u32 v38, s{T0}, v38
    """)
    tag_setup()
    a(f"s_add_u32 s{T0}, s{S_EP}, 1\ns_nop 0\nv_mov_b32 v12, s{T0}\nv_not_b32 v17, v12")
    for T in range(2, 8):
        a(f"s_waitcnt vmcnt({4*(7-T)})")
        kcopy(T)
    stamp()
    spin_ge(F_QR, 4)
    QF, SS = 48, 192
    for j in range(4):
        a(f"ds_read_b128 {vr(QF+4*j,4)}, v35 offset:{L_Q+j*64}")
    a("s_waitcnt lgkmcnt(0)")
    for TP in range(4):
        for j in range(4):
            for T in (2*TP, 2*TP+1):
                c = "0" if j == 0 else vr(SS+4*T,4)
                a(f"v_mfma_f32_16x16x32_bf16 {vr(SS+4*T,4)}, {vr(KB+(T*4+j)*4,4)}, {vr(QF+4*j,4)}, {c}")
        if TP > 0:
            for p in range(4*(TP-1), 4*TP):
                x0, x1 = SS + 2*p, SS + 2*p + 1
                a(f"""
                v_cvt_pk_bf16_f32 v42, v{x0}, v{x1}
                v_lshlrev_b32 v{x0}, 16, v42
                v_and_b32 v{x1}, 0xffff0000, v42
                v_mul_f32 v{x0}, 0x{SCALE:x}, v{x0}
                v_mul_f32 v{x1}, 0x{SCALE:x}, v{x1}
                v_cvt_pk_bf16_f32 v42, v{x0}, v{x1}
                v_lshlrev_b32 v{x0}, 16, v42
                v_and_b32 v{x1}, 0xffff0000, v42
                """)
    stamp()
    a("s_nop 7")
    for p in range(12, 16):
        x0, x1 = SS + 2*p, SS + 2*p + 1
        a(f"""
        v_cvt_pk_bf16_f32 v42, v{x0}, v{x1}
        v_lshlrev_b32 v{x0}, 16, v42
        v_and_b32 v{x1}, 0xffff0000, v42
        v_mul_f32 v{x0}, 0x{SCALE:x}, v{x0}
        v_mul_f32 v{x1}, 0x{SCALE:x}, v{x1}
        v_cvt_pk_bf16_f32 v42, v{x0}, v{x1}
        v_lshlrev_b32 v{x0}, 16, v42
        v_and_b32 v{x1}, 0xffff0000, v42
        """)
    a(f"v_max3_f32 v43, v{SS}, v{SS+1}, v{SS+2}\nv_max3_f32 v44, v{SS+3}, v{SS+4}, v{SS+5}")
    for p in range(6, 30, 4):
        a(f"v_max3_f32 v43, v43, v{SS+p}, v{SS+p+1}\nv_max3_f32 v44, v44, v{SS+p+2}, v{SS+p+3}")
    a(f"v_max3_f32 v43, v43, v{SS+30}, v{SS+31}\nv_max_f32 v43, v43, v44")
    xor16("v_max_f32", 43, 42)
    xor32("v_max_f32", 43, 42)
    a(f"""
    s_mov_b64 exec, s[{M_16}:{M_16+1}]
    ds_write_b32 v39, v43 offset:{L_WM}
    s_mov_b64 exec, -1
    """)
    barrier(F_CB)
    for w in range(4):
        a(f"ds_read_b32 v{48+w}, v40 offset:{L_WM+w*64}")
    a(f"""
    s_mov_b32 s{T1}, 0x{LOG2E:x}
    s_waitcnt lgkmcnt(0)
    v_max3_f32 v46, v48, v49, v50
    v_max_f32 v46, v46, v51
    v_mul_f32 v47, s{T1}, v46
    """)
    for p in range(32):
        a(f"v_fma_f32 v{SS+p}, v{SS+p}, s{T1}, -v47")
    for p in range(32):
        a(f"v_exp_f32 v{SS+p}, v{SS+p}")
    PP = 224
    a(f"v_cvt_pk_bf16_f32 v{PP}, v{SS}, v{SS+1}")
    for p in range(1, 16):
        a(f"v_cvt_pk_bf16_f32 v{PP+p}, v{SS+2*p}, v{SS+2*p+1}")
    a(f"s_mov_b64 exec, s[{M_H4}:{M_H4+1}]")
    if int(cfg.get("lin", 1)):
        for i in range(8):
            a(f"ds_write_b64 v38, {vr(PP+2*i,2)} offset:{L_P+i*128}")
    else:
      for st in range(4):
        a(f"ds_write_b128 v38, {vr(PP+4*st,4)} offset:{L_P+st*64}")
    a("s_mov_b64 exec, -1")
    a(f"v_add_f32 v43, v{SS}, v{SS+1}\nv_add_f32 v42, v{SS+2}, v{SS+3}")
    for p in range(4, 32, 2):
        a(f"v_add_f32 v43, v43, v{SS+p}\nv_add_f32 v42, v42, v{SS+p+1}")
    a("v_add_f32 v43, v43, v42")
    xor16("v_add_f32", 43, 42)
    xor32("v_add_f32", 43, 42)
    a(f"""
    s_mov_b64 exec, s[{M_16}:{M_16+1}]
    ds_write_b32 v39, v43 offset:{L_WL}
    s_mov_b64 exec, -1
    """)
    barrier(F_CB)
    stamp()
    for w in range(4):
        a(f"ds_read_b32 v{48+w}, v40 offset:{L_WL+w*64}")
    a(f"""
    s_waitcnt lgkmcnt(0)
    v_add_f32 v47, v48, v49
    v_add_f32 v48, v50, v51
    v_add_f32 v47, v47, v48
    v_mov_b32 v28, v46
    v_mov_b32 v29, v47
    v_mov_b32 v30, v12
    v_mov_b32 v31, v17
    """)
    ACC = 184
    firstpv = [True]
    mlearly = int(cfg.get("mlearly", 1))
    def ml_store(lbl):
        a(f"""
        s_cmp_lg_u32 s{S_WAVE}, 0
        s_cbranch_scc1 {lbl}
        s_mov_b64 exec, 15
        buffer_store_dwordx4 v[28:31], v5, {srd(R_WS)}, s{SML} offen sc1
        s_mov_b64 exec, -1
        """)
        a.label(lbl)
    def pv_part(st, qs):
        n = len(qs)
        for q in qs:
            kb = 4 * st + q
            off = (kb % 8) * 8192
            b0, b1 = (20, 22) if kb < 8 else (21, 23)
            r = 64 + 12 * q
            a(f"ds_read_b128 {vr(r,4)}, v41 offset:{kb*64}")
            a(f"ds_read_b64_tr_b16 {vr(r+4,2)}, v{b0} offset:{off}")
            a(f"ds_read_b64_tr_b16 {vr(r+6,2)}, v{b0} offset:{off+4096}")
            a(f"ds_read_b64_tr_b16 {vr(r+8,2)}, v{b1} offset:{off}")
            a(f"ds_read_b64_tr_b16 {vr(r+10,2)}, v{b1} offset:{off+4096}")
        for k, q in enumerate(qs):
            r = 64 + 12 * q
            a(f"s_waitcnt lgkmcnt({5 * (n - 1 - k)})")
            for dt in range(2):
                c = "0" if firstpv[0] else vr(ACC+4*dt,4)
                a(f"v_mfma_f32_16x16x32_bf16 {vr(ACC+4*dt,4)}, {vr(r+4+4*dt,4)}, {vr(r,4)}, {c}")
            firstpv[0] = False
    def pv(st):
        if st == 3 and split3:
            wait_piece("V3a")
            if mlearly == 2: ml_store("L_mlst_early")
            pv_part(3, [0, 1])
            wait_piece("V3b")
            if mlearly == 1: ml_store("L_mlst_early")
            pv_part(3, [2, 3])
        else:
            wait_piece(f"V{st}")
            if st == 3 and mlearly: ml_store("L_mlst_early")
            pv_part(st, [0, 1, 2, 3])
    pv(0)
    flag_add(F_P0)
    pv(1); pv(2)
    stamp()
    AG, MG, WOF, DN2 = 128, 144, 152, 168
    a(f"""
    s_lshl_b32 s{T4}, s{S_H}, 14
    s_lshl_b32 s{T1}, s{S_WAVE}, 12
    s_add_u32 s{T4}, s{T4}, s{T1}
    s_add_u32 s{T4}, s{T4}, {AP_OFF}
    s_lshl_b32 s{T5}, s{S_HKV}, 11
    s_lshl_b32 s{T2}, s{S_WAVE}, 9
    s_add_u32 s{T5}, s{T5}, s{T2}
    s_lshl_b32 s{T2}, s{S_B}, 4
    s_add_u32 s{T5}, s{T5}, s{T2}
    s_add_u32 s{T5}, s{T5}, {ML_OFF}
    v_lshrrev_b32 v33, 5, v1
    v_lshlrev_b32 v33, 6, v33
    s_lshl_b32 s{T0}, s{S_WAVE}, 8
    v_lshlrev_b32 v47, 2, v4
    v_add_u32 v47, v47, v3
    v_lshlrev_b32 v47, 4, v47
    v_add_u32 v47, s{T0}, v47
    """)
    a(f"""
    v_mov_b32 v24, v47
    s_lshl_b32 s{T2}, s{S_B}, 10
    s_lshl_b32 s{T3}, s{S_S}, 7
    s_add_u32 s{T2}, s{T2}, s{T3}
    s_lshl_b32 s{T3}, s{S_WAVE}, 5
    s_add_u32 s{T2}, s{T2}, s{T3}
    v_lshlrev_b32 v25, 3, v4
    buffer_load_dwordx2 v[26:27], v25, {srd(R_X)}, s{T2} offen
    """)
    pv(3)
    a("s_nop 7")
    tag(range(ACC, ACC+8))
    a(f"""
    s_mov_b64 exec, s[{M_H4}:{M_H4+1}]
    buffer_store_dwordx4 {vr(ACC,4)}, v11, {srd(R_WS)}, s{SAP} offen sc1
    buffer_store_dwordx4 {vr(ACC+4,4)}, v11, {srd(R_WS)}, s{SAP} offen offset:64 sc1
    s_mov_b64 exec, -1
    """)
    if not mlearly: ml_store("L_mlst_done")
    stamp()
    AGR, MS = 128, [(144,), (152,)]
    light = int(cfg.get("light", 1))
    MGS = [192, 208]
    def ml_loads(i=0):
        for m in range(4):
            a(f"buffer_load_dwordx4 {vr(MGS[i]+4*m,4)}, v33, {srd(R_WS)}, s{T5} offen offset:{m*128} sc1")
    def ap_loads(i=0):
        for m in range(4):
            a(f"buffer_load_dwordx4 {vr(AGR+4*m,4)}, v5, {srd(R_WS)}, s{T4} offen offset:{m*1024} sc1")
    grp = int(cfg.get("grp", 0))
    def between1():
        spin_ge(F_DR, 4)
        a(f"ds_read_b128 {vr(DN2,4)}, v24 offset:{L_DNP}")
        wait_piece("WO")
        for kk in range(4):
            a(f"ds_read_b64_tr_b16 {vr(WOF+4*kk,2)}, v34 offset:{kk*4096}")
            a(f"ds_read_b64_tr_b16 {vr(WOF+4*kk+2,2)}, v34 offset:{kk*4096+512}")
    def weights(mg):
        ms = [mg + 4*m for m in range(4)]
        ls = [mg + 4*m + 1 for m in range(4)]
        a(f"""
        v_max3_f32 v36, v{ms[0]}, v{ms[1]}, v{ms[2]}
        v_max_f32 v36, v36, v{ms[3]}
        """)
        xor32("v_max_f32", 36, 37)
        for m in range(4):
            a(f"v_sub_f32 v{49+m}, v{ms[m]}, v36")
        for m in range(4):
            a(f"v_mul_f32 v{49+m}, s{T2}, v{49+m}")
        for m in range(4):
            a(f"v_exp_f32 v{49+m}, v{49+m}")
        a("s_nop 0")
        a(f"v_mul_f32 v48, v49, v{ls[0]}")
        for m in range(1, 4):
            a(f"v_fmac_f32 v48, v{49+m}, v{ls[m]}")
    a(f"s_mov_b32 s{T2}, 0x{LOG2E:x}")
    if grp == 3:
        MG = MGS[0]
        def mload(m):
            a(f"buffer_load_dwordx4 {vr(MG+4*m,4)}, v33, {srd(R_WS)}, s{T5} offen offset:{m*128} sc1")
        def aload(m):
            a(f"buffer_load_dwordx4 {vr(AGR+4*m,4)}, v5, {srd(R_WS)}, s{T4} offen offset:{m*1024} sc1")
        for m in range(4): mload(m)
        for r in range(AGR, AGR+16): a(f"v_mov_b32 v{r}, 0")
        if not dnlate: between1()
        SV, SM = T3, T1
        a(f"s_mov_b32 s{SV}, 0\ns_mov_b32 s{SM}, 0\ns_mov_b32 s{S_CNT}, 0")
        a.label("L_g1_loop")
        a(f"s_waitcnt vmcnt(0)\ns_bcnt1_i32_b32 s{T0}, s{SM}")
        for m in range(4):
            g = MG + 4*m; r = AGR + 4*m
            a(f"""
            s_bitcmp1_b32 s{SV}, {m}
            s_cbranch_scc1 L_g1_s{m}
            s_bitcmp1_b32 s{SM}, {m}
            s_cbranch_scc1 L_g1_a{m}
            v_xor_b32 v36, v{g+2}, v12
            v_bitop3_b32 v36, v36, v{g+3}, v17 bitop3:0xf6
            v_cmp_ne_u32 vcc, 0, v36
            s_cbranch_vccz L_g1_m{m}
            """)
            mload(m)
            a(f"s_cmp_lt_u32 s{T0}, 3\ns_cbranch_scc1 L_g1_s{m}")
            aload(m)
            a(f"s_branch L_g1_s{m}")
            a.label(f"L_g1_m{m}")
            a(f"s_bitset1_b32 s{SM}, {m}")
            a.label(f"L_g1_a{m}")
            for e in range(4): a(f"v_xor_b32 v{r+e}, v{r+e}, v{VT[e]}")
            a(f"""
            v_or3_b32 v36, v{r}, v{r+1}, v{r+2}
            v_or_b32 v36, v36, v{r+3}
            v_and_b32 v36, v36, v{VMSK}
            v_cmp_ne_u32 vcc, 0, v36
            s_cbranch_vccnz L_g1_r{m}
            s_bitset1_b32 s{SV}, {m}
            s_branch L_g1_s{m}
            """)
            a.label(f"L_g1_r{m}")
            aload(m)
            a.label(f"L_g1_s{m}")
        a(f"""
        s_cmp_eq_u32 s{SV}, 15
        s_cbranch_scc1 L_g1_done
        s_add_u32 s{S_CNT}, s{S_CNT}, 1
        s_cmp_lt_u32 s{S_CNT}, {POLL_LIMIT}
        s_cbranch_scc1 L_g1_loop
        s_waitcnt vmcnt(0)
        """)
        a.label("L_g1_done")
        weights(MG)
        xor32("v_add_f32", 48, 37)
        a("v_rcp_f32 v48, v48")
        if dnlate: between1()
        else: a("s_nop 0")
        for m in range(4):
            a(f"v_mul_f32 v{49+m}, v{49+m}, v48")
    elif grp == 2:
        MG = MGS[0]
        def mload(m):
            a(f"buffer_load_dwordx4 {vr(MG+4*m,4)}, v33, {srd(R_WS)}, s{T5} offen offset:{m*128} sc1")
        for m in range(4): mload(m)
        SV = T3
        a(f"s_mov_b32 s{SV}, 0\ns_mov_b32 s{S_CNT}, 0")
        a.label("L_g1_loop")
        a("s_waitcnt vmcnt(0)")
        for m in range(4):
            g = MG + 4*m
            a(f"""
            s_bitcmp1_b32 s{SV}, {m}
            s_cbranch_scc1 L_g1_s{m}
            v_xor_b32 v36, v{g+2}, v12
            v_bitop3_b32 v36, v36, v{g+3}, v17 bitop3:0xf6
            v_cmp_ne_u32 vcc, 0, v36
            s_cbranch_vccnz L_g1_r{m}
            s_bitset1_b32 s{SV}, {m}
            s_branch L_g1_s{m}
            """)
            a.label(f"L_g1_r{m}")
            mload(m)
            a.label(f"L_g1_s{m}")
        a(f"""
        s_cmp_eq_u32 s{SV}, 15
        s_cbranch_scc1 L_g1_done
        s_add_u32 s{S_CNT}, s{S_CNT}, 1
        s_cmp_lt_u32 s{S_CNT}, {POLL_LIMIT}
        s_cbranch_scc1 L_g1_loop
        s_waitcnt vmcnt(0)
        """)
        a.label("L_g1_done")
        ap_loads()
        weights(MG)
        between1()
        xor32("v_add_f32", 48, 37)
        a("v_rcp_f32 v48, v48")
        a("s_nop 0")
        for m in range(4):
            a(f"v_mul_f32 v{49+m}, v{49+m}, v48")
        poll("ap", list(range(AGR, AGR+16)), ap_loads, 36, "s_waitcnt vmcnt(0)")
    elif grp:
        MG = MGS[0]
        def gload(m):
            a(f"buffer_load_dwordx4 {vr(AGR+4*m,4)}, v5, {srd(R_WS)}, s{T4} offen offset:{m*1024} sc1")
            a(f"buffer_load_dwordx4 {vr(MG+4*m,4)}, v33, {srd(R_WS)}, s{T5} offen offset:{m*128} sc1")
        for m in range(4): gload(m)
        if not dnlate: between1()
        SV = T3
        a(f"s_mov_b32 s{SV}, 0\ns_mov_b32 s{S_CNT}, 0")
        a.label("L_g1_loop")
        a("s_waitcnt vmcnt(0)")
        for m in range(4):
            a(f"s_bitcmp1_b32 s{SV}, {m}\ns_cbranch_scc1 L_g1_s{m}")
            r = AGR + 4*m; g = MG + 4*m
            for e in range(4): a(f"v_xor_b32 v{r+e}, v{r+e}, v{VT[e]}")
            a(f"""
            v_or3_b32 v36, v{r}, v{r+1}, v{r+2}
            v_or_b32 v36, v36, v{r+3}
            v_and_b32 v36, v36, v{VMSK}
            v_bitop3_b32 v36, v36, v{g+2}, v12 bitop3:0xf6
            v_bitop3_b32 v36, v36, v{g+3}, v17 bitop3:0xf6
            v_cmp_ne_u32 vcc, 0, v36
            s_cbranch_vccnz L_g1_r{m}
            s_bitset1_b32 s{SV}, {m}
            s_branch L_g1_s{m}
            """)
            a.label(f"L_g1_r{m}")
            gload(m)
            a.label(f"L_g1_s{m}")
        a(f"""
        s_cmp_eq_u32 s{SV}, 15
        s_cbranch_scc1 L_g1_done
        s_add_u32 s{S_CNT}, s{S_CNT}, 1
        s_cmp_lt_u32 s{S_CNT}, {POLL_LIMIT}
        s_cbranch_scc1 L_g1_loop
        s_waitcnt vmcnt(0)
        """)
        a.label("L_g1_done")
        weights(MG)
        xor32("v_add_f32", 48, 37)
        a("v_rcp_f32 v48, v48")
        if dnlate: between1()
        else: a("s_nop 0")
        for m in range(4):
            a(f"v_mul_f32 v{49+m}, v{49+m}, v48")
    else:
        ml_loads(0)
        def consume_ml(i):
            ap_loads()
            weights(MGS[i])
        NS1 = int(cfg.get("ns1", 2))
        poll_stag("ml", [list(range(g, g+16)) for g in MGS[:NS1]], ml_loads, 4, 36, int(cfg.get("gap1", 3)), consume_ml, None, 0)
        between1()
        xor32("v_add_f32", 48, 37)
        a("v_rcp_f32 v48, v48")
        a("s_nop 0")
        for m in range(4):
            a(f"v_mul_f32 v{49+m}, v{49+m}, v48")
        poll("ap", list(range(AGR, AGR+16)), ap_loads, 36, "s_waitcnt vmcnt(0)")
    stamp()
    for e in range(4):
        a(f"v_mul_f32 v{44+e}, v49, v{AGR+e}")
    for m in range(1, 4):
        for e in range(4):
            a(f"v_fmac_f32 v{44+e}, v{49+m}, v{AGR+4*m+e}")
    xorN(32, "v_add_f32", [44,45,46,47], [36,37,38,39])
    a(f"""
    v_cvt_pk_bf16_f32 v42, v44, v45
    v_cvt_pk_bf16_f32 v43, v46, v47
    s_mul_i32 s{T2}, s{S_WAVE}, {Q_STR}
    v_lshlrev_b32 v41, 3, v1
    v_add_u32 v41, s{T2}, v41
    s_mov_b32 exec_lo, -1
    s_mov_b32 exec_hi, 0
    ds_write_b64 v41, v[42:43] offset:{L_OB}
    s_mov_b64 exec, -1
    """)
    if int(cfg.get("hwbar", 1)):
        a("s_waitcnt lgkmcnt(0)\ns_barrier")
    else:
        barrier(F_CB)
    OF = 172
    for kk in range(4):
        a(f"ds_read_b128 {vr(OF+4*kk,4)}, v35 offset:{L_OB+kk*64}")
    for kk in range(4):
        a(f"s_waitcnt lgkmcnt({3-kk})")
        a(f"v_mfma_f32_16x16x32_bf16 {vr(DN2,4)}, {vr(WOF+4*kk,4)}, {vr(OF+4*kk,4)}, {vr(DN2,4)}")
    a("s_nop 7")
    tag(range(DN2, DN2+4))
    a(f"""
    s_mov_b64 exec, s[{M_H4}:{M_H4+1}]
    """)
    dual = int(cfg.get("dual", 1))
    if dual:
        a(f"s_add_u32 s{T0}, s{SOP}, {OPA_OFF - OP_OFF}")
        a(f"buffer_store_dwordx4 {vr(DN2,4)}, v13, {srd(R_WS)}, s{T0} offen")
    a(f"""
    buffer_store_dwordx4 {vr(DN2,4)}, v13, {srd(R_WS)}, s{SOP} offen sc1
    s_mov_b64 exec, -1
    """)
    stamp()
    a(f"""
    s_cmp_lg_u32 s{S_HKV}, 0
    s_cbranch_scc1 L_end
    s_lshl_b32 s{T0}, s{S_S}, 2
    s_add_u32 s{T0}, s{T0}, s{S_B}
    s_lshl_b32 s{T0}, s{T0}, 13
    s_lshl_b32 s{T1}, s{S_WAVE}, 6
    s_add_u32 s{T0}, s{T0}, s{T1}
    s_add_u32 s{T0}, s{T0}, {OP_OFF}
    s_add_u32 s{T1}, s{T0}, 4096                  ; heads 16..31
    s_lshl_b32 s{T2}, s{S_B}, 10
    s_lshl_b32 s{T3}, s{S_S}, 7
    s_add_u32 s{T2}, s{T2}, s{T3}
    s_lshl_b32 s{T3}, s{S_WAVE}, 5
    s_add_u32 s{T2}, s{T2}, s{T3}
    v_lshrrev_b32 v32, 2, v1
    v_lshlrev_b32 v32, 8, v32
    v_lshl_add_u32 v32, v4, 4, v32                ; (l>>2)*256 + (l&3)*16
    v_lshlrev_b32 v33, 3, v4                      ; (l&3)*8
    """)
    FGS = [224, 232, 240]
    NS2 = int(cfg.get("ns2", 2))
    if dual:
        a(f"s_add_u32 s{T4}, s{T0}, {OPA_OFF - OP_OFF}\ns_add_u32 s{T5}, s{T1}, {OPA_OFF - OP_OFF}")
    def fin_loads(i=0):
        b0, b1 = (T0, T1)
        if dual and i % 2 == 0: b0, b1 = T4, T5
        a(f"buffer_load_dwordx4 {vr(FGS[i],4)}, v32, {srd(R_WS)}, s{b0} offen sc1")
        a(f"buffer_load_dwordx4 {vr(FGS[i]+4,4)}, v32, {srd(R_WS)}, s{b1} offen sc1")
    FG = 44
    def consume2(i):
        f = FGS[i]
        for e in range(4):
            a(f"v_add_f32 v{FG+e}, v{f+e}, v{f+4+e}")
    if dual:
        def aloads(i):
            a(f"buffer_load_dwordx4 {vr(FGS[i],4)}, v32, {srd(R_WS)}, s{T4} offen sc1")
            a(f"buffer_load_dwordx4 {vr(FGS[i]+4,4)}, v32, {srd(R_WS)}, s{T5} offen sc1")
        aloads(0); aloads(2)
        a(f"s_mov_b32 s{S_CNT}, 0")
        a.label("L_fa_loop")
        for i in (0, 2):
            a("s_waitcnt vmcnt(2)")
            check(list(range(FGS[i], FGS[i]+8)), 38)
            a(f"s_cbranch_vccz L_fin_ok{i}")
            aloads(i)
        a(f"""
        s_add_u32 s{S_CNT}, s{S_CNT}, 1
        s_cmp_lt_u32 s{S_CNT}, {int(cfg.get("fastn", 10))}
        s_cbranch_scc1 L_fa_loop
        s_waitcnt vmcnt(0)
        """)
        fin_loads(0); fin_loads(1)
        a(f"s_mov_b32 s{S_CNT}, 0")
        a.label("L_fin_loop")
        for i in (0, 1):
            a("s_waitcnt vmcnt(2)")
            check(list(range(FGS[i], FGS[i]+8)), 38)
            a(f"s_cbranch_vccz L_fin_ok{i}")
            fin_loads(i)
        a(f"""
        s_add_u32 s{S_CNT}, s{S_CNT}, 1
        s_cmp_lt_u32 s{S_CNT}, {POLL_LIMIT}
        s_cbranch_scc1 L_fin_loop
        s_waitcnt vmcnt(0)
        """)
        for i in (0, 1, 2):
            a.label(f"L_fin_ok{i}")
            consume2(i)
            if i != 2: a("s_branch L_fin_done")
        a.label("L_fin_done")
    else:
        fin_loads(0)
        poll_stag("fin", [list(range(f, f+8)) for f in FGS[:NS2]], fin_loads, 2, 38, int(cfg.get("gap2", 3)), consume2)
    stamp()
    for ctl in ("row_ror:4", "row_ror:8"):
        a("s_nop 1")
        for e in range(4):
            a(f"v_add_f32_dpp v{FG+e}, v{FG+e}, v{FG+e} {ctl} row_mask:0xf bank_mask:0xf")
    a("s_nop 0")
    xorN(16, "v_add_f32", [FG, FG+1, FG+2, FG+3], [38,39,40,41])
    xorN(32, "v_add_f32", [FG, FG+1, FG+2, FG+3], [38,39,40,41])
    a(f"""
    v_lshlrev_b32 v40, 16, v26
    v_and_b32 v41, 0xffff0000, v26
    v_lshlrev_b32 v42, 16, v27
    v_and_b32 v43, 0xffff0000, v27
    v_add_f32 v40, v40, v{FG}
    v_add_f32 v41, v41, v{FG+1}
    v_add_f32 v42, v42, v{FG+2}
    v_add_f32 v43, v43, v{FG+3}
    v_cvt_pk_bf16_f32 v40, v40, v41
    v_cvt_pk_bf16_f32 v41, v42, v43
    s_mov_b64 exec, 15
    buffer_store_dwordx2 v[40:41], v33, {srd(R_OUT)}, s{T2} offen
    s_mov_b64 exec, -1
    s_cmp_lg_u32 s{S_WAVE}, 0
    s_cbranch_scc1 L_end
    s_cmp_lg_u32 s2, 0
    s_cbranch_scc1 L_end
    s_add_u32 s{S_EP}, s{S_EP}, 1
    v_mov_b32 v40, s{S_EP}
    v_mov_b32 v41, 0
    s_mov_b32 s{T1}, {EP_OFF}
    s_mov_b64 exec, 1
    buffer_store_dword v40, v41, {srd(R_WS)}, s{T1} offen sc1
    s_mov_b64 exec, -1
    """)
    a.label("L_end")
    if stamps:
        a(f"s_cmp_lg_u32 s{S_WAVE}, 0\ns_cbranch_scc1 L_exit")
        a(f"s_memrealtime s[{STAMP_REGS[NSTAMP-1]}:{STAMP_REGS[NSTAMP-1]+1}]")
        a(f"s_mov_b32 s{STAMP_REGS[12]}, s{S_CNT}\ns_mov_b32 s{STAMP_REGS[12]+1}, 0")
        a(f"""
        s_waitcnt lgkmcnt(0)
        s_add_u32 s{R_WS}, s{R_WS}, {STAMP_OFF}
        s_addc_u32 s{R_WS+1}, s{R_WS+1}, 0
        s_lshl_b32 s{T0}, s2, 1
        s_add_u32 s{T0}, s{T0}, s{S_ROLE}
        s_mul_i32 s{T0}, s{T0}, {NSTAMP*8}
        v_mov_b32 v2, s{T0}
        s_mov_b64 exec, 1
        """)
        for i in range(NSTAMP):
            r = STAMP_REGS[i]
            a(f"v_mov_b32 v4, s{r}\nv_mov_b32 v5, s{r+1}\nbuffer_store_dwordx2 v[4:5], v2, {srd(R_WS)}, 0 offen offset:{i*8}\ns_nop 1")
        print("stamps: X used", x_stamps, "Q used", nstamp[0])
    a.label("L_exit")
    a("s_endpgm")
    launch = f"grid=(256,1,1) block=(512,1,1) lds={L_END}"
    return file_text([launch], a.text(), [descriptor(kn, 256, 102)])

if __name__ == "__main__":
    out = sys.argv[1] if len(sys.argv) > 1 else "cdna_kernels/" + NAME + ".s"
    cfg = dict(kv.split("=") for kv in sys.argv[2:] if "=" in kv)
    open(out, "w").write(gen(stamps=("stamps" in sys.argv), cfg=cfg))
    print("wrote", out, "LDS", L_END)
```

```python
import sys
from asmlib import *

QP_OFF = 0x000000
GU_OFF = 0x040000
AP_OFF = 0x080000
ML_OFF = 0x100000
OP_OFF = 0x110000
OPA_OFF = 0x150000
EP_OFF = 0x1F0000
WS_SIZE = 0x200000
STAMP_OFF = 268435456 - (1 << 20)
import os
TAGMASK = int(os.environ.get('TAGMASK', '0x0F'), 0)

P_STR = 1040
Q_STR = 272
H_STR = 144
L_FL = 0
L_P = 64
L_XQ = L_P + 4 * P_STR
L_XG = L_XQ + 4 * Q_STR
L_Q = L_XG + 4 * Q_STR
L_OB = L_Q + 4 * Q_STR
L_H = L_OB + 4 * Q_STR
L_WM = L_H + 4 * H_STR
L_WL = L_WM + 256
L_DNP = L_WL + 256
L_SMALL_END = L_DNP + 1024
L_T0 = 11264
assert L_SMALL_END <= L_T0
L_RING = L_T0 + 16384
L_END = L_RING + 131072
L_GUT = L_RING + 98304
L_DNT = L_GUT + 16384
F_LPROG, F_CB, F_XB, F_QR, F_DR, F_P0, F_KC, F_R3 = 0, 16, 20, 24, 28, 32, 36, 40

LOG2E = 0x3FB8AA3B
SCALE = 0x3DB504F3
POLL_LIMIT = 20000
SPIN_LIMIT = 200000

S_WAVE, S_B, S_HKV, S_S, S_H = 28, 29, 30, 31, 32
S_J, S_CH = 75, 88
T0, T1, T2, T3, T4, T5, T6 = 33, 34, 35, 36, 37, 38, 39
R_X, R_K, R_V, R_WQ, R_GU, R_DN, R_WO, R_WS, R_OUT = 40, 44, 48, 52, 56, 60, 64, 68, 76
S_EP = 72
S_PROG = 73
S_ROLE = 74
M_H4 = 80
M_16 = 82
M_T = 84
S_CNT = 86
S_SP = 87
STAMP_REGS = [90, 92, 94, 96, 98, 100, 4, 6, 8, 10, 12, 14, 16, 18]
NSTAMP = 14

def srd(r): return f"s[{r}:{r+3}]"
def vr(a, n): return f"v[{a}:{a+n-1}]"

def gen(stamps=False, nt=True, cfg=None):
    cfg = cfg or {}
    a = Asm()
    kn = NAME + "_kernel"
    NT = " nt" if nt else ""
    if "ldflags" in cfg: NT = (" " + cfg["ldflags"].replace("+", " ")) if cfg["ldflags"] != "none" else ""
    D = int(cfg.get("D", 12))
    nstamp = [0]; uid = [0]
    dnlate = int(cfg.get("dnlate", 0))
    t0seq = int(cfg.get("t0seq", 1))
    def lab(p):
        uid[0] += 1
        return f"L_{p}_{uid[0]}"
    def stamp():
        if stamps:
            i = nstamp[0]; nstamp[0] += 1
            assert i < NSTAMP
            r = STAMP_REGS[i]
            a(f"s_memrealtime s[{r}:{r+1}]")
    def xor16(op, v, t):
        a(f"v_mov_b32 v{t}, v{v}\ns_nop 1\nv_permlane16_swap_b32 v{v}, v{t}\ns_nop 0\n{op} v{v}, v{v}, v{t}")
    def xor32(op, v, t):
        a(f"v_mov_b32 v{t}, v{v}\ns_nop 1\nv_permlane32_swap_b32 v{v}, v{t}\ns_nop 0\n{op} v{v}, v{v}, v{t}")
    def xorN(kind, op, regs, tmps):
        for v, t in zip(regs, tmps): a(f"v_mov_b32 v{t}, v{v}")
        a("s_nop 1")
        for v, t in zip(regs, tmps): a(f"v_permlane{kind}_swap_b32 v{v}, v{t}")
        a("s_nop 0")
        for v, t in zip(regs, tmps): a(f"{op} v{v}, v{v}, v{t}")
    def wave_sum(v, t):
        for ctl in ["quad_perm:[1,0,3,2]", "quad_perm:[2,3,0,1]", "row_half_mirror", "row_mirror"]:
            a(f"s_nop 1\nv_add_f32_dpp v{v}, v{v}, v{v} {ctl} row_mask:0xf bank_mask:0xf")
        a("s_nop 0")
        xor16("v_add_f32", v, t)
        xor32("v_add_f32", v, t)
    def rne(dst, src):
        a(f"v_cvt_pk_bf16_f32 v{dst}, v{src}, v{src}\nv_lshlrev_b32 v{dst}, 16, v{dst}")

    VF, VONE, VS = 14, 15, 252
    VTAG, VMSK = 6, 7
    VT = [6, 8, 13, 112]
    def spin_ge(off, val, four=False, keep=None):
        l0, l1 = lab("sp"), lab("spd")
        if keep is not None:
            a(f"s_cmp_ge_u32 s{keep}, {val}\ns_cbranch_scc1 {l1}")
        dst = keep if keep is not None else T6
        a(f"s_mov_b32 s{S_SP}, 0")
        a.label(l0)
        if four:
            a(f"ds_read_b128 {vr(VS,4)}, v{VF} offset:{off}\ns_waitcnt lgkmcnt(0)")
            a(f"v_min_u32 v{VS}, v{VS}, v{VS+1}\nv_min3_u32 v{VS}, v{VS}, v{VS+2}, v{VS+3}")
        else:
            a(f"ds_read_b32 v{VS}, v{VF} offset:{off}\ns_waitcnt lgkmcnt(0)")
        a(f"""
        s_nop 0
        v_readfirstlane_b32 s{dst}, v{VS}
        s_add_u32 s{S_SP}, s{S_SP}, 1
        s_cmp_ge_u32 s{dst}, {val}
        s_cbranch_scc1 {l1}
        s_cmp_ge_u32 s{S_SP}, {SPIN_LIMIT}
        s_cbranch_scc1 {l1}
        s_sleep 1
        s_branch {l0}
        """)
        a.label(l1)
    def flag_add(off):
        a(f"s_mov_b64 exec, 1\nds_add_u32 v{VF}, v{VONE} offset:{off}\ns_mov_b64 exec, -1")
    nb = {F_CB: 0, F_XB: 0}
    def b_arrive(f):
        nb[f] += 1
        flag_add(f)
        return nb[f]
    def b_wait(f, n):
        spin_ge(f, 4 * n)
    def barrier(f):
        b_wait(f, b_arrive(f))
    split3 = int(cfg.get("split3", 0))
    PIECES = ["V0", "V1", "V2", "V3a", "V3b", "WO"] if split3 else ["V0", "V1", "V2", "V3", "WO"]
    pidx = {p: i + 1 for i, p in enumerate(PIECES)}
    def wait_piece(p):
        spin_ge(F_LPROG, pidx[p], four=True, keep=S_PROG)
    def tag(regs):
        for i, r in enumerate(regs): a(f"v_bfi_b32 v{r}, v{VMSK}, v{VT[i % 4]}, v{r}")
    def poll(name, regs, loads, acc, first_wait, backoff=0):
        a(f"s_mov_b32 s{S_CNT}, 0\n{first_wait}")
        a.label(f"L_{name}_chk")
        check(regs, acc)
        a(f"""
        s_cbranch_vccz L_{name}_ok
        s_add_u32 s{S_CNT}, s{S_CNT}, 1
        s_cmp_ge_u32 s{S_CNT}, {POLL_LIMIT}
        s_cbranch_scc1 L_{name}_ok
        """)
        if backoff: a(f"s_sleep {backoff}")
        loads()
        a(f"s_waitcnt vmcnt(0)\ns_branch L_{name}_chk")
        a.label(f"L_{name}_ok")
    def check(regs, acc, per=4):
        for i, r in enumerate(regs):
            a(f"v_xor_b32 v{r}, v{r}, v{VT[i % per]}")
        rs = list(regs)
        a(f"v_or3_b32 v{acc}, v{rs[0]}, v{rs[1]}, v{rs[2]}")
        k = 3
        while k + 1 < len(rs):
            a(f"v_or3_b32 v{acc}, v{acc}, v{rs[k]}, v{rs[k+1]}"); k += 2
        if k < len(rs):
            a(f"v_or_b32 v{acc}, v{acc}, v{rs[k]}")
        a(f"v_and_b32 v{acc}, v{acc}, v{VMSK}\nv_cmp_ne_u32 vcc, 0, v{acc}")
    def check_ml(regs, acc):
        for k in range(0, len(regs), 4):
            if k == 0:
                a(f"v_xor_b32 v{acc}, v{regs[2]}, v12")
            else:
                a(f"v_bitop3_b32 v{acc}, v{acc}, v{regs[k+2]}, v12 bitop3:0xf6")
            a(f"v_bitop3_b32 v{acc}, v{acc}, v{regs[k+3]}, v17 bitop3:0xf6")
        a(f"v_cmp_ne_u32 vcc, 0, v{acc}")
    def poll_stag(name, sets, loads, nloads, acc, gap, consume, between=None, per=4):
        n = len(sets)
        for i in range(1, n):
            if gap: a(f"s_sleep {gap}")
            loads(i)
        if between: between()
        a(f"s_mov_b32 s{S_CNT}, 0")
        a.label(f"L_{name}_loop")
        for i in range(n):
            a(f"s_waitcnt vmcnt({(n-1)*nloads})")
            (check_ml(sets[i], acc) if per == 0 else check(sets[i], acc, per))
            a(f"s_cbranch_vccz L_{name}_ok{i}")
            loads(i)
        a(f"""
        s_add_u32 s{S_CNT}, s{S_CNT}, 1
        s_cmp_lt_u32 s{S_CNT}, {POLL_LIMIT}
        s_cbranch_scc1 L_{name}_loop
        s_waitcnt vmcnt(0)
        """)
        for i in range(n):
            a.label(f"L_{name}_ok{i}")
            consume(i)
            if i != n - 1: a(f"s_branch L_{name}_done")
        a.label(f"L_{name}_done")
    def tag_setup():
        a(f"""
        v_readfirstlane_b32 s{S_EP}, v{VTAG}
        v_add_u32 v{VTAG}, 1, v{VTAG}
        """)
        for e in (3, 2, 1):
            a(f"v_add_u32 v{VT[e]}, {e * 0x35}, v{VTAG}\nv_and_b32 v{VT[e]}, {TAGMASK}, v{VT[e]}")
        a(f"v_and_b32 v{VTAG}, {TAGMASK}, v{VTAG}")
    def ws_srd():
        a(f"""
        s_mov_b32 s{R_WS}, s26
        s_mov_b32 s{R_WS+1}, s27
        s_mov_b32 s{R_WS+2}, {WS_SIZE}
        s_mov_b32 s{R_WS+3}, 0x20000
        s_mov_b32 s{T1}, {EP_OFF}
        v_mov_b32 v33, 0
        buffer_load_dword v{VTAG}, v33, {srd(R_WS)}, s{T1} offen sc1
        """)
    def common_regs():
        a(f"""
        s_mov_b32 s{M_H4}, 0x000F000F
        s_mov_b32 s{M_H4+1}, 0x000F000F
        s_mov_b32 s{M_16}, 0xFFFF
        s_mov_b32 s{M_16+1}, 0
        v_mov_b32 v{VMSK}, {TAGMASK}
        v_lshrrev_b32 v32, 2, v2
        v_lshl_add_u32 v32, v3, 3, v32
        v_lshlrev_b32 v32, 7, v32
        v_lshl_add_u32 v34, v4, 3, v32
        s_lshl_b32 s{T3}, s{S_WAVE}, 5
        s_add_u32 s{T3}, s{T3}, {L_T0}
        v_add_u32 v34, s{T3}, v34                     ; T0 + (8g+r)*128 + t*32 + c4*8
        v_mul_u32_u24 v35, {Q_STR}, v4
        v_lshl_add_u32 v35, v3, 4, v35                ; (l&3)*272 + g*16
        v_lshlrev_b32 v5, 4, v1                       ; l*16
        """)

    kernel_begin(a, kn)
    a(f"""
    s_cmp_ge_u32 s2, 256
    s_cbranch_scc1 L_exit
    s_load_dwordx16 s[4:19], s[0:1], 0
    s_load_dwordx8 s[20:27], s[0:1], 64
    """)
    stamp()
    for _ in range(int(cfg.get("diag_sleep", 0))): a("s_sleep 100")
    a(f"""
    v_and_b32 v1, 63, v0
    v_lshrrev_b32 v32, 6, v0
    v_and_b32 v2, 15, v1
    v_readfirstlane_b32 s{S_WAVE}, v32
    v_lshrrev_b32 v3, 4, v1
    v_and_b32 v4, 3, v1
    v_mov_b32 v{VF}, {L_FL}
    v_mov_b32 v{VONE}, 1
    s_lshr_b32 s{S_B}, s2, 6
    s_bfe_u32 s{S_HKV}, s2, 0x30003
    s_and_b32 s{S_J}, s2, 7
    s_lshl_b32 s{S_H}, s{S_HKV}, 2
    s_add_u32 s{S_H}, s{S_H}, s{S_B}
    """)
    rot = int(cfg.get("rot", 1))
    if rot:
        a(f"s_lshr_b32 s{S_S}, s2, 3\ns_mul_i32 s{S_S}, s{S_S}, {rot}\ns_add_u32 s{S_S}, s{S_S}, s2\ns_and_b32 s{S_S}, s{S_S}, 7")
    else:
        a(f"s_and_b32 s{S_S}, s2, 7")
    a(f"""
    s_lshl_b32 s{S_CH}, s{S_B}, 3
    s_add_u32 s{S_CH}, s{S_CH}, s{S_HKV}
    s_lshl_b32 s{S_CH}, s{S_CH}, 3
    s_add_u32 s{S_CH}, s{S_CH}, s{S_S}
    s_mov_b32 s{S_PROG}, 0
    s_cmp_lg_u32 s{S_WAVE}, 0
    s_cbranch_scc1 L_noinit
    v_lshlrev_b32 v32, 2, v1
    v_mov_b32 v33, 0
    s_mov_b64 exec, 0xFFFF
    ds_write_b32 v32, v33 offset:{L_FL}
    s_mov_b64 exec, -1
    s_waitcnt lgkmcnt(0)
    """)
    a.label("L_noinit")
    earlybar = int(cfg.get("earlybar", 0))
    if earlybar: a("s_barrier")
    a(f"""
    s_lshr_b32 s{S_ROLE}, s{S_WAVE}, 2
    s_and_b32 s{S_WAVE}, s{S_WAVE}, 3
    s_cmp_eq_u32 s{S_ROLE}, 0
    s_cbranch_scc1 L_qwave
    """)
    start_stamp = nstamp[0]
    a(f"""
    s_setprio 3
    v_lshlrev_b32 v5, 4, v1
    s_lshl_b32 s{T0}, s{S_WAVE}, 10
    v_lshrrev_b32 v36, 3, v1
    v_and_b32 v37, 7, v1
    v_lshlrev_b32 v37, 4, v37
    v_lshl_add_u32 v22, v36, 13, v37
    s_lshl_b32 s{T2}, s{S_B}, 20
    s_lshl_b32 s{T1}, s{S_HKV}, 10
    s_add_u32 s{T2}, s{T2}, s{T1}
    s_lshl_b32 s{T1}, s{S_S}, 7
    s_add_u32 s{T4}, s{T2}, s{T1}
    s_waitcnt lgkmcnt(0)
    s_mov_b32 s{R_X}, s4
    s_mov_b32 s{R_X+1}, s5
    s_mov_b32 s{R_X+2}, 4096
    s_mov_b32 s{R_X+3}, 0x20000
    buffer_load_dwordx4 v[24:27], v5, {srd(R_X)}, s{T0} offen
    s_add_u32 s{R_WQ}, s10, s{T4}
    s_addc_u32 s{R_WQ+1}, s11, 0
    s_mov_b32 s{R_WQ+2}, {127*8192+128}
    s_mov_b32 s{R_WQ+3}, 0x20000
    """)
    ws_srd()
    def tile_dma(p):
        n_per = 2 if p == "DN" else 4
        stride = {"WQ": 8192, "GU": 3584, "WO": 1024, "DN": 1024}[p]
        vo = {"WQ": 22, "GU": 23, "WO": 21, "DN": 21}[p]
        R = {"WQ": R_WQ, "GU": R_GU, "WO": R_WO, "DN": R_DN}[p]
        LB = L_T0 if t0seq else {"WQ": L_T0, "GU": L_GUT, "WO": L_T0, "DN": (L_RING if dnlate else L_DNT)}[p]
        out = []
        for q in range(n_per):
            def f(q=q):
                if q == 0:
                    a(f"""
                    s_mul_i32 s{T1}, s{S_WAVE}, {n_per*8*stride}
                    s_mul_i32 s{T0}, s{S_WAVE}, {n_per*1024}
                    s_add_u32 s{T0}, s{T0}, {LB}
                    """)
                else:
                    a(f"s_add_u32 s{T1}, s{T1}, {8*stride}\ns_add_u32 s{T0}, s{T0}, 1024")
                a(f"""
                s_mov_b32 m0, s{T0}
                s_nop 0
                buffer_load_dwordx4 v{vo}, {srd(R)}, s{T1} offen{NT} lds
                """)
            out.append(f)
        return out
    for f in tile_dma("WQ"): f()
    if not earlybar: a("s_barrier")
    a(f"""
    v_mul_u32_u24 v23, 3584, v36
    v_add_u32 v23, v23, v37
    v_lshl_add_u32 v21, v36, 10, v37
    s_and_b32 s{T0}, s{S_J}, 1
    s_cmp_eq_u32 s{T0}, 0
    s_cselect_b32 s{T2}, s16, s18
    s_cselect_b32 s{T3}, s17, s19
    s_lshr_b32 s{T0}, s{S_J}, 1
    s_mul_i32 s{T0}, s{T0}, {128*3584}
    s_lshl_b32 s{T1}, s{S_H}, 7
    s_add_u32 s{T0}, s{T0}, s{T1}
    s_add_u32 s{R_GU}, s{T2}, s{T0}
    s_addc_u32 s{R_GU+1}, s{T3}, 0
    s_cmp_lt_u32 s{S_H}, 28
    s_cselect_b32 s{R_GU+2}, {127*3584+128}, 0
    s_mov_b32 s{R_GU+3}, 0x20000
    """)
    gulate = int(cfg.get("gulate", 1))
    if not gulate:
        for f in tile_dma("GU"): f()
    a(f"""
    s_lshl_b32 s{T0}, s{S_H}, 16
    s_lshl_b32 s{T1}, s{S_J}, 7
    s_add_u32 s{T0}, s{T0}, s{T1}
    s_add_u32 s{R_DN}, s20, s{T0}
    s_addc_u32 s{R_DN+1}, s21, 0
    s_cmp_lt_u32 s{S_H}, 28
    s_cselect_b32 s{R_DN+2}, {63*1024+128}, 0
    s_mov_b32 s{R_DN+3}, 0x20000
    """)
    if not dnlate and not gulate:
        for f in tile_dma("DN"): f()
    pret = int(cfg.get("pret", 0))
    if pret:
        a(f"""
        s_lshl_b32 s{T0}, s{S_B}, 16
        s_lshl_b32 s{T1}, s{S_HKV}, 11
        s_add_u32 s{T0}, s{T0}, s{T1}
        s_lshl_b32 s{T1}, s{S_S}, 8
        s_add_u32 s{T0}, s{T0}, s{T1}
        s_lshl_b32 s{T1}, s{S_H}, 13
        s_lshl_b32 s{T2}, s{S_S}, 10
        s_add_u32 s{T1}, s{T1}, s{T2}
        s_add_u32 s{T1}, s{T1}, {GU_OFF}
        s_lshl_b32 s{T2}, s{S_HKV}, 16
        s_lshl_b32 s{T3}, s{S_B}, 12
        s_add_u32 s{T2}, s{T2}, s{T3}
        s_lshl_b32 s{T3}, s{S_S}, 9
        s_add_u32 s{T2}, s{T2}, s{T3}
        s_add_u32 s{T2}, s{T2}, {AP_OFF}
        s_lshl_b32 s{T3}, s{S_S}, 15
        s_lshl_b32 s{T4}, s{S_H}, 8
        s_add_u32 s{T3}, s{T3}, s{T4}
        s_add_u32 s{T3}, s{T3}, {OP_OFF}
        s_lshl_b32 s{T4}, s{S_HKV}, 11
        s_lshl_b32 s{T5}, s{S_B}, 9
        s_add_u32 s{T4}, s{T4}, s{T5}
        s_lshl_b32 s{T5}, s{S_S}, 6
        s_add_u32 s{T4}, s{T4}, s{T5}
        s_add_u32 s{T4}, s{T4}, {ML_OFF}
        s_cmp_eq_u32 s{S_WAVE}, 0
        s_cbranch_scc1 L_pt0
        s_cmp_eq_u32 s{S_WAVE}, 3
        s_cbranch_scc1 L_pt3
        v_lshrrev_b32 v100, 5, v1
        v_and_b32 v101, 31, v1
        v_lshlrev_b32 v100, 14, v100
        v_lshl_add_u32 v100, v101, 4, v100
        s_sub_u32 s{T5}, s{S_WAVE}, 1
        s_lshl_b32 s{T5}, s{T5}, 15
        s_add_u32 s{T2}, s{T2}, s{T5}
        buffer_load_dwordx4 v[104:107], v100, {srd(R_WS)}, s{T2} offen sc1
        buffer_load_dword v108, v100, {srd(R_WS)}, s{T2} offen sc1
        s_branch L_ptd
        """)
        a.label("L_pt0")
        a(f"""
        v_lshlrev_b32 v100, 14, v3
        v_lshl_add_u32 v100, v2, 4, v100
        buffer_load_dwordx4 v[104:107], v100, {srd(R_WS)}, s{T0} offen sc1
        buffer_load_dwordx4 v[108:111], v5, {srd(R_WS)}, s{T1} offen sc1
        s_branch L_ptd
        """)
        a.label("L_pt3")
        a(f"""
        v_lshlrev_b32 v100, 13, v3
        v_lshl_add_u32 v100, v2, 4, v100
        buffer_load_dwordx4 v[104:107], v100, {srd(R_WS)}, s{T3} offen sc1
        v_and_b32 v101, 3, v1
        v_lshlrev_b32 v101, 4, v101
        buffer_load_dwordx4 v[108:111], v101, {srd(R_WS)}, s{T4} offen sc1
        """)
        a.label("L_ptd")
    common_regs()
    npf = int(cfg.get("codepf", 0))
    a(f"""
    s_lshl_b32 s{T0}, s{S_CH}, 17
    s_add_u32 s{R_V}, s8, s{T0}
    s_addc_u32 s{R_V+1}, s9, 0
    s_mov_b32 s{R_V+2}, 131072
    s_mov_b32 s{R_V+3}, 0x20000
    s_lshl_b32 s{T0}, s{S_H}, 17
    s_lshl_b32 s{T1}, s{S_J}, 7
    s_add_u32 s{T0}, s{T0}, s{T1}
    s_add_u32 s{R_WO}, s12, s{T0}
    s_addc_u32 s{R_WO+1}, s13, 0
    s_mov_b32 s{R_WO+2}, {127*1024+128}
    s_mov_b32 s{R_WO+3}, 0x20000
    """)
    for v in range(2):
        a(f"v_lshlrev_b32 v36, 1, v3\nv_add_u32 v36, {8*v}, v36\nv_xor_b32 v{16+v}, v2, v36\nv_lshlrev_b32 v{16+v}, 4, v{16+v}\nv_lshl_add_u32 v{16+v}, v3, 8, v{16+v}")
    if int(cfg.get("lin", 1)):
        a(f"""
        s_and_b32 s{T0}, s{S_WAVE}, 1
        s_cmp_eq_u32 s{T0}, 1
        s_cselect_b64 vcc, -1, 0
        v_cndmask_b32 v16, v16, v17, vcc
        """)
    SQP, SGU = 78, 79
    a(f"""
    s_lshl_b32 s{T4}, s{S_WAVE}, 2
    s_add_u32 s{T4}, s{T4}, {L_FL + F_LPROG}
    v_mov_b32 v18, s{T4}
    s_lshl_b32 s{SQP}, s{S_B}, 16
    s_lshl_b32 s{T1}, s{S_HKV}, 11
    s_add_u32 s{SQP}, s{SQP}, s{T1}
    s_lshl_b32 s{T1}, s{S_S}, 8
    s_add_u32 s{SQP}, s{SQP}, s{T1}
    s_add_u32 s{SQP}, s{SQP}, {QP_OFF}
    s_lshl_b32 s{SGU}, s{S_H}, 13
    s_lshl_b32 s{T1}, s{S_J}, 10
    s_add_u32 s{SGU}, s{SGU}, s{T1}
    s_add_u32 s{SGU}, s{SGU}, {GU_OFF}
    s_lshl_b32 s{T1}, s{S_WAVE}, 6                ; t*64
    v_lshlrev_b32 v11, 14, v2
    v_lshl_add_u32 v11, v3, 4, v11
    v_add_u32 v11, s{T1}, v11
    v_lshlrev_b32 v12, 8, v2
    v_lshl_add_u32 v12, v3, 4, v12
    v_add_u32 v12, s{T1}, v12
    v_add_u32 v19, {0 if t0seq else L_GUT - L_T0}, v34
    v_add_u32 v20, {0 if t0seq else (L_RING if dnlate else L_DNT) - L_T0}, v34
    s_waitcnt vmcnt({4 if gulate else (8 if dnlate else 10) + (2 if pret else 0)})
    """)
    stamp()
    if npf:
        a(f"""
        s_cmp_ge_u32 s2, {npf}
        s_cbranch_scc1 L_nopf
        s_getpc_b64 s[{M_T}:{M_T+1}]
        """)
        a.label("L_pcref")
        a(f"""
        s_lshl_b32 s{T0}, s{S_WAVE}, 12
        v_add_u32 v100, s{T0}, v5
        s_mov_b32 s{T1}, L_exit-L_pcref-16
        """)
        for k in range(4):
            a(f"""
            v_add_u32 v101, {k*1024}, v100
            v_cmp_gt_u32 vcc, s{T1}, v101
            s_and_saveexec_b64 s[88:89], vcc
            s_cbranch_execz L_pfs{k}
            global_load_dwordx4 v[104:107], v101, s[{M_T}:{M_T+1}]
            """)
            a.label(f"L_pfs{k}")
            a("s_mov_b64 exec, -1")
        a.label("L_nopf")
    tag_setup()
    for e in range(4):
        a(f"v_lshlrev_b32 v{40+2*e}, 16, v{24+e}\nv_and_b32 v{41+2*e}, 0xffff0000, v{24+e}")
    a(f"""
    v_add_f32 v32, v40, v41
    v_add_f32 v33, v42, v43
    v_add_f32 v36, v44, v45
    v_add_f32 v37, v46, v47
    v_add_f32 v32, v32, v33
    v_add_f32 v36, v36, v37
    v_add_f32 v32, v32, v36
    """)
    wave_sum(32, 33)
    a("v_mul_f32 v32, 0x3b000000, v32")
    for e in range(8):
        a(f"v_sub_f32 v{48+e}, v{40+e}, v32")
    a("v_mul_f32 v33, v48, v48\nv_mul_f32 v36, v49, v49")
    for e in range(2, 8, 2):
        a(f"v_fmac_f32 v33, v{48+e}, v{48+e}\nv_fmac_f32 v36, v{49+e}, v{49+e}")
    a("v_add_f32 v33, v33, v36")
    wave_sum(33, 36)
    a("v_mul_f32 v33, 0x3b000000, v33")
    rne(32, 32); rne(33, 33)
    a("v_add_f32 v33, 0x3727c5ac, v33")
    rne(33, 33)
    a("v_sqrt_f32 v33, v33")
    for e in range(8):
        a(f"v_sub_f32 v{48+e}, v{40+e}, v32")
    rne(33, 33)
    a("v_rcp_f32 v33, v33")
    for e in range(0, 8, 2):
        a(f"v_cvt_pk_bf16_f32 v36, v{48+e}, v{49+e}\nv_lshlrev_b32 v{48+e}, 16, v36\nv_and_b32 v{49+e}, 0xffff0000, v36")
    for e in range(8):
        a(f"v_mul_f32 v{48+e}, v{48+e}, v33")
    for e in range(4):
        a(f"v_cvt_pk_bf16_f32 v{44+e}, v{48+2*e}, v{49+2*e}")
    a(f"""
    s_mul_i32 s{T0}, s{S_WAVE}, {Q_STR}
    v_lshlrev_b32 v32, 4, v2
    v_add_u32 v32, s{T0}, v32
    v_cmp_eq_u32 vcc, s{S_B}, v3
    s_and_saveexec_b64 s[{M_T}:{M_T+1}], vcc
    ds_write_b128 v32, v[44:47] offset:{L_XQ}
    s_mov_b64 exec, -1
    s_lshr_b32 s{T1}, s{S_J}, 1
    v_cmp_eq_u32 vcc, s{T1}, v3
    s_and_saveexec_b64 s[{M_T}:{M_T+1}], vcc
    ds_write_b128 v32, v[44:47] offset:{L_XG}
    s_mov_b64 exec, -1
    s_waitcnt vmcnt({0 if gulate else (4 if dnlate else 6) + (2 if pret else 0)})
    """)
    barrier(F_XB)
    stamp()
    WF, XF, DA = 48, 64, 80
    def p1(xoff, voff, sbase, areg):
        for kk in range(4):
            a(f"ds_read_b128 {vr(XF+4*kk,4)}, v35 offset:{xoff+kk*64}")
        for kk in range(4):
            a(f"ds_read_b64_tr_b16 {vr(WF+4*kk,2)}, v{areg} offset:{kk*4096}")
            a(f"ds_read_b64_tr_b16 {vr(WF+4*kk+2,2)}, v{areg} offset:{kk*4096+512}")
        for kk in range(4):
            a(f"s_waitcnt lgkmcnt({6-2*kk})")
            c = "0" if kk == 0 else vr(DA,4)
            a(f"v_mfma_f32_16x16x32_bf16 {vr(DA,4)}, {vr(WF+4*kk,4)}, {vr(XF+4*kk,4)}, {c}")
        a("s_nop 7")
        tag(range(DA, DA+4))
        a(f"""
        s_mov_b64 exec, s[{M_H4}:{M_H4+1}]
        buffer_store_dwordx4 {vr(DA,4)}, v{voff}, {srd(R_WS)}, s{sbase} offen sc1
        s_mov_b64 exec, -1
        """)
    p1(L_XQ, 11, SQP, 34)
    if t0seq:
        barrier(F_XB)
        for f in tile_dma("GU"): f()
    elif gulate:
        for f in tile_dma("GU"): f()
        for f in tile_dma("DN"): f()
    stamp()
    a(f"s_waitcnt vmcnt({0 if gulate else 1 + (2 if pret else 0)})")
    barrier(F_XB)
    p1(L_XG, 12, SGU, 19)
    DF = 84
    def dn_frags():
        for kk in range(2):
            a(f"ds_read_b64_tr_b16 {vr(DF+4*kk,2)}, v20 offset:{kk*4096}")
            a(f"ds_read_b64_tr_b16 {vr(DF+4*kk+2,2)}, v20 offset:{kk*4096+512}")
    if not dnlate and not t0seq: dn_frags()
    xb_tiles = b_arrive(F_XB)
    flag_add(F_R3)
    stamp()
    QG, GG = 24, 92
    a(f"""
    s_lshl_b32 s{T0}, s{S_B}, 14
    s_lshl_b32 s{T1}, s{S_HKV}, 11
    s_add_u32 s{T0}, s{T0}, s{T1}
    s_lshl_b32 s{T1}, s{S_WAVE}, 9
    s_add_u32 s{T5}, s{T0}, s{T1}
    s_add_u32 s{T5}, s{T5}, {QP_OFF}
    v_lshlrev_b32 v38, 16, v3
    v_lshl_add_u32 v38, v2, 4, v38
    s_lshl_b32 s{T4}, s{S_H}, 13
    s_lshl_b32 s{T1}, s{S_WAVE}, 8
    s_add_u32 s{T4}, s{T4}, s{T1}
    s_add_u32 s{T4}, s{T4}, {GU_OFF}
    v_lshlrev_b32 v39, 10, v3
    v_lshl_add_u32 v39, v2, 4, v39
    v_add_u32 v10, 4096, v39
    """)
    def qloads():
        a(f"buffer_load_dwordx4 {vr(QG,4)}, v38, {srd(R_WS)}, s{T5} offen sc1")
        a(f"buffer_load_dwordx4 {vr(QG+4,4)}, v38, {srd(R_WS)}, s{T5} offen offset:256 sc1")
    def gloads():
        a(f"buffer_load_dwordx4 {vr(GG,4)}, v39, {srd(R_WS)}, s{T4} offen sc1")
        a(f"buffer_load_dwordx4 {vr(GG+4,4)}, v10, {srd(R_WS)}, s{T4} offen sc1")
    vml = []
    def issue(tagname): vml.append(tagname)
    def younger(tagname):
        last = max(i for i, t in enumerate(vml) if t == tagname)
        return len(vml) - 1 - last
    signaled = []
    def signal(p):
        a(f"v_mov_b32 v9, {pidx[p]}\nds_write_b32 v18, v9")
        signaled.append(p)
    def try_signals():
        for p in PIECES:
            if p in signaled: continue
            n = {"WO": 4, "V3a": 4, "V3b": 4}.get(p, 8)
            if vml.count(p) == n and younger(p) >= D:
                a(f"s_waitcnt vmcnt({younger(p)})")
                signal(p)
            else:
                break
    lin = int(cfg.get("lin", 1))
    def vstage(st):
        for q in range(8):
            if lin:
                a(f"""
                s_lshl_b32 s{T0}, s{S_WAVE}, 10
                s_add_u32 s{T0}, s{T0}, {st*32768 + q*4096}
                s_add_u32 s{T1}, s{T0}, {L_RING}
                s_mov_b32 m0, s{T1}
                s_nop 0
                buffer_load_dwordx4 v16, {srd(R_V)}, s{T0} offen{NT} lds
                """)
            else:
                if q % 4 == 0:
                    a(f"""
                    s_lshl_b32 s{T0}, s{S_WAVE}, 13
                    s_add_u32 s{T0}, s{T0}, {st*32768 + (q//4)*4096}
                    s_add_u32 s{T1}, s{T0}, {L_RING}
                    s_mov_b32 m0, s{T1}
                    s_nop 0
                    """)
                a(f"buffer_load_dwordx4 v{16 + q % 2}, {srd(R_V)}, s{T0} offen offset:{(q%4)*1024}{NT} lds")
            issue(f"V{st}" if not (split3 and st == 3) else ("V3a" if q < 4 else "V3b"))
            if q % 4 == 3: try_signals()
    qlate = int(cfg.get("qlate", 0))
    def q_finish(first_wait):
        poll("q", list(range(QG, QG+8)), qloads, 41, first_wait)
        stamp()
        xorN(16, "v_add_f32", list(range(QG, QG+8)), list(range(40, 48)))
        xorN(32, "v_add_f32", list(range(QG, QG+8)), list(range(40, 48)))
        a(f"""
        v_cvt_pk_bf16_f32 v42, v{QG}, v{QG+1}
        v_cvt_pk_bf16_f32 v43, v{QG+2}, v{QG+3}
        v_cvt_pk_bf16_f32 v44, v{QG+4}, v{QG+5}
        v_cvt_pk_bf16_f32 v45, v{QG+6}, v{QG+7}
        s_mul_i32 s{T0}, s{S_WAVE}, {Q_STR}
        s_add_u32 s{T0}, s{T0}, {L_Q}
        v_lshlrev_b32 v41, 3, v2
        v_add_u32 v41, s{T0}, v41
        s_mov_b64 exec, s[{M_16}:{M_16+1}]
        ds_write_b64 v41, v[42:43]
        ds_write_b64 v41, v[44:45] offset:128
        s_mov_b64 exec, -1
        """)
        flag_add(F_QR)
    if t0seq:
        qloads(); issue("q"); issue("q")
        a("s_setprio 0")
        spin_ge(F_KC, 4)
        vstage(0)
        q_finish(f"s_waitcnt vmcnt({younger('q')})")
        spin_ge(F_KC, 8)
        vstage(1)
        b_wait(F_XB, xb_tiles)
        for f in tile_dma("DN"):
            f(); issue("DN")
        gloads(); issue("g"); issue("g")
        spin_ge(F_KC, 12)
        vstage(2)
        a(f"s_waitcnt vmcnt({younger('DN')})")
        barrier(F_XB)
        dn_frags()
        xb_dn = b_arrive(F_XB)
        spin_ge(F_KC, 16)
        vstage(3)
        b_wait(F_XB, xb_dn)
    else:
      if qlate:
        a("s_setprio 0")
        spin_ge(F_KC, 4)
        vstage(0)
        a("s_setprio 3")
        qloads(); issue("q"); issue("q")
        a("s_setprio 0")
        spin_ge(F_KC, 8)
        if qlate == 1:
            vstage(1)
            q_finish(f"s_waitcnt vmcnt({younger('q')})")
        else:
            q_finish(f"s_waitcnt vmcnt(0)")
            vstage(1)
      else:
        qloads(); issue("q"); issue("q")
        q_finish("s_waitcnt vmcnt(0)")
        a("s_setprio 0")
        spin_ge(F_KC, 4)
        vstage(0)
        spin_ge(F_KC, 8)
        vstage(1)
      gloads(); issue("g"); issue("g")
      spin_ge(F_KC, 12)
      vstage(2)
      b_wait(F_XB, xb_tiles)
      spin_ge(F_KC, 16)
      vstage(3)
    for f in tile_dma("WO"):
        f(); issue("WO")
    if dnlate:
        spin_ge(F_P0, 4)
        for f in tile_dma("DN"):
            f(); issue("DN")
    try_signals()
    stamp()
    poll("g", list(range(GG, GG+8)), gloads, 44, f"s_waitcnt vmcnt({younger('g')})")
    for e in range(4):
        a(f"v_add_f32 v{GG+e}, v{GG+e}, v{GG+4+e}")
    xorN(32, "v_add_f32", list(range(GG, GG+4)), [44,45,46,47])
    for e in range(4):
        a(f"v_mov_b32 v{GG+4+e}, v{GG+e}")
    a("s_nop 1")
    for e in range(4):
        a(f"v_permlane16_swap_b32 v{GG+e}, v{GG+4+e}")
    a("s_nop 0")
    for e in range(4):
        rne(GG+e, GG+e); rne(GG+4+e, GG+4+e)
    tm = [44, 45, 46, 47]
    for e in range(4): a(f"v_mul_f32 v{tm[e]}, v{GG+e}, v{GG+e}")
    for e in range(4): a(f"v_mul_f32 v{tm[e]}, v{tm[e]}, v{GG+e}")
    for e in range(4): a(f"v_mul_f32 v{tm[e]}, 0x3d372713, v{tm[e]}")
    for e in range(4): a(f"v_add_f32 v{tm[e]}, v{tm[e]}, v{GG+e}")
    for e in range(4): a(f"v_mul_f32 v{tm[e]}, 0xc0135761, v{tm[e]}")
    for e in range(4): a(f"v_exp_f32 v{tm[e]}, v{tm[e]}")
    a("s_nop 0")
    for e in range(4): a(f"v_add_f32 v{tm[e]}, 1.0, v{tm[e]}")
    for e in range(4): a(f"v_rcp_f32 v{tm[e]}, v{tm[e]}")
    a("s_nop 0")
    for e in range(4): a(f"v_mul_f32 v{GG+e}, v{GG+e}, v{tm[e]}")
    for e in range(4): rne(GG+e, GG+e)
    for e in range(4): a(f"v_mul_f32 v{GG+e}, v{GG+e}, v{GG+4+e}")
    a(f"""
    v_cvt_pk_bf16_f32 v44, v{GG}, v{GG+1}
    v_cvt_pk_bf16_f32 v45, v{GG+2}, v{GG+3}
    s_mul_i32 s{T0}, s{S_WAVE}, {H_STR}
    v_lshlrev_b32 v47, 3, v2
    v_add_u32 v47, s{T0}, v47
    s_mov_b64 exec, s[{M_16}:{M_16+1}]
    ds_write_b64 v47, v[44:45] offset:{L_H}
    s_mov_b64 exec, -1
    """)
    if dnlate:
        for p in PIECES:
            if p not in signaled:
                a(f"s_waitcnt vmcnt({younger(p)})"); signal(p)
        a("s_waitcnt vmcnt(0)")
        barrier(F_XB)
        dn_frags()
    else:
        xb_h = b_arrive(F_XB)
        for p in ("V1", "V2"):
            if p not in signaled:
                a(f"s_waitcnt vmcnt({younger(p)})"); signal(p)
        b_wait(F_XB, xb_h)
    a(f"""
    v_mul_u32_u24 v47, {H_STR}, v4
    v_lshl_add_u32 v47, v3, 4, v47
    """)
    HF = 64
    for kk in range(2):
        a(f"ds_read_b128 {vr(HF+4*kk,4)}, v47 offset:{L_H+kk*64}")
    a("s_waitcnt lgkmcnt(0)")
    DN_ACC = 80
    for kk in range(2):
        c = "0" if kk == 0 else vr(DN_ACC,4)
        a(f"v_mfma_f32_16x16x32_bf16 {vr(DN_ACC,4)}, {vr(DF+4*kk,4)}, {vr(HF+4*kk,4)}, {c}")
    a(f"""
    s_lshl_b32 s{T0}, s{S_WAVE}, 8
    v_lshlrev_b32 v47, 2, v4
    v_add_u32 v47, v47, v3
    v_lshlrev_b32 v47, 4, v47                     ; ((l&3)*4+g)*16
    v_add_u32 v47, s{T0}, v47
    s_nop 3
    s_mov_b64 exec, s[{M_H4}:{M_H4+1}]
    ds_write_b128 v47, {vr(DN_ACC,4)} offset:{L_DNP}
    s_mov_b64 exec, -1
    """)
    flag_add(F_DR)
    stamp()
    for p in PIECES:
        if p not in signaled:
            a(f"s_waitcnt vmcnt({younger(p)})"); signal(p)
    stamp()
    a("s_waitcnt lgkmcnt(0)\ns_branch L_end")
    x_stamps = nstamp[0]

    nstamp[0] = start_stamp
    a.label("L_qwave")
    VT[:] = [6, 8, 9, 10]
    a(f"s_setprio {int(cfg.get('qprio', 1))}")
    a(f"""
    s_lshl_b32 s{T0}, s{S_WAVE}, {12 if int(cfg.get("lin", 1)) else 15}
    v_lshlrev_b32 v16, 8, v2
    v_lshl_add_u32 v16, v3, 4, v16
    v_add_u32 v16, s{T0}, v16                     ; K voffset
    s_lshl_b32 s{T0}, s{S_CH}, 17
    s_waitcnt lgkmcnt(0)
    s_add_u32 s{R_K}, s6, s{T0}
    s_addc_u32 s{R_K+1}, s7, 0
    s_mov_b32 s{R_K+2}, 131072
    s_mov_b32 s{R_K+3}, 0x20000
    """)
    if cfg.get("k0stamp"): stamp()
    if not earlybar: a("s_barrier")
    if cfg.get("k0stamp"): stamp()
    kfirst = int(cfg.get("kfirst", 1))
    if not kfirst: ws_srd()
    KB = 64
    for n in range(4):
        a(f"v_add_u32 v32, {4*n}, v3\nv_xor_b32 v{52+n}, v2, v32\nv_lshlrev_b32 v{52+n}, 4, v{52+n}\nv_lshl_add_u32 v{52+n}, v3, 8, v{52+n}")
    def kdma(T):
        a(f"""
        s_lshl_b32 s{T0}, s{S_WAVE}, 12
        s_add_u32 s{T0}, s{T0}, {T*16384}
        s_add_u32 s{T1}, s{T0}, {L_RING}
        s_mov_b32 m0, s{T1}
        s_nop 0
        """)
        for n in range(4):
            a(f"buffer_load_dwordx4 v{52+n}, {srd(R_K)}, s{T0} offen offset:{n*1024}{NT} lds")
    def kcopy(T):
        for j in range(4):
            r = KB + (T * 4 + j) * 4
            base = (56 if T < 4 else 60) + j
            a(f"ds_read_b128 {vr(r,4)}, v{base} offset:{(T*16384) % 65536}")
        if T % 2 == 1: flag_add(F_KC)
    for T in range(6):
        kdma(T)
        if T == 0 and cfg.get("k0stamp"): stamp()
        if T == 0 and kfirst: ws_srd()
    a(f"""
    s_lshl_b32 s{T0}, s{S_WAVE}, 12
    s_add_u32 s{T0}, s{T0}, {L_RING}
    v_lshlrev_b32 v32, 8, v2
    v_add_u32 v32, s{T0}, v32
    """)
    for j in range(4):
        a(f"v_add_u32 v33, {4*j}, v3\nv_xor_b32 v33, v33, v2\nv_lshl_add_u32 v{56+j}, v33, 4, v32\nv_add_u32 v{60+j}, 65536, v{56+j}")
    a("s_waitcnt vmcnt(16)")
    kcopy(0); kcopy(1)
    if not t0seq: spin_ge(F_R3, 4)
    kdma(6); kdma(7)
    stamp()
    common_regs()
    SAP, SOP, SML = 66, 67, 60
    a(f"""
    s_mov_b32 s{R_X}, s4
    s_mov_b32 s{R_X+1}, s5
    s_mov_b32 s{R_X+2}, 4096
    s_mov_b32 s{R_X+3}, 0x20000
    s_mov_b32 s{R_OUT}, s22
    s_mov_b32 s{R_OUT+1}, s23
    s_mov_b32 s{R_OUT+2}, 4096
    s_mov_b32 s{R_OUT+3}, 0x20000
    s_lshl_b32 s{SAP}, s{S_HKV}, 16
    s_lshl_b32 s{T1}, s{S_B}, 12
    s_add_u32 s{SAP}, s{SAP}, s{T1}
    s_lshl_b32 s{T1}, s{S_S}, 9
    s_add_u32 s{SAP}, s{SAP}, s{T1}
    s_add_u32 s{SAP}, s{SAP}, {AP_OFF}
    s_lshl_b32 s{SOP}, s{S_J}, 15
    s_lshl_b32 s{T1}, s{S_H}, 8
    s_add_u32 s{SOP}, s{SOP}, s{T1}
    s_add_u32 s{SOP}, s{SOP}, {OP_OFF}
    s_lshl_b32 s{SML}, s{S_HKV}, 11
    s_lshl_b32 s{T1}, s{S_B}, 9
    s_add_u32 s{SML}, s{SML}, s{T1}
    s_lshl_b32 s{T1}, s{S_S}, 6
    s_add_u32 s{SML}, s{SML}, s{T1}
    s_add_u32 s{SML}, s{SML}, {ML_OFF}
    s_lshl_b32 s{T1}, s{S_WAVE}, 7                ; cw*128
    v_lshlrev_b32 v11, 14, v2
    v_lshl_add_u32 v11, v3, 4, v11
    v_add_u32 v11, s{T1}, v11
    s_lshl_b32 s{T1}, s{S_WAVE}, 6
    v_lshlrev_b32 v13, 13, v2
    v_lshl_add_u32 v13, v3, 4, v13
    v_add_u32 v13, s{T1}, v13
    """)
    a(f"""
    v_mul_u32_u24 v41, {P_STR}, v4
    v_lshl_add_u32 v41, v3, 4, v41
    v_add_u32 v41, {L_P}, v41
    v_lshrrev_b32 v42, 2, v2
    v_lshl_add_u32 v42, v3, 2, v42                ; key_local
    v_and_b32 v43, 7, v42
    v_lshlrev_b32 v43, 1, v43
    v_lshrrev_b32 v44, 1, v4
    s_lshl_b32 s{T0}, s{S_WAVE}, 2
    v_add_u32 v44, s{T0}, v44
    v_xor_b32 v45, v44, v43
    v_lshlrev_b32 v45, 4, v45
    v_lshl_add_u32 v45, v42, 8, v45
    v_and_b32 v48, 1, v4
    v_lshl_add_u32 v20, v48, 3, v45
    v_add_u32 v20, {L_RING}, v20
    v_add_u32 v21, 65536, v20
    v_add_u32 v44, 2, v44
    v_xor_b32 v45, v44, v43
    v_lshlrev_b32 v45, 4, v45
    v_lshl_add_u32 v45, v42, 8, v45
    v_lshl_add_u32 v22, v48, 3, v45
    v_add_u32 v22, {L_RING}, v22
    v_add_u32 v23, 65536, v22
    v_lshlrev_b32 v40, 2, v2                      ; (l&15)*4
    s_lshl_b32 s{T0}, s{S_WAVE}, 6
    v_add_u32 v39, s{T0}, v40
    s_lshl_b32 s{T0}, s{S_WAVE}, 8
    s_lshr_b32 s{T1}, s{S_WAVE}, 1
    s_lshl_b32 s{T1}, s{T1}, 6
    s_and_b32 s{T2}, s{S_WAVE}, 1
    s_lshl_b32 s{T2}, s{T2}, 3
    s_add_u32 s{T1}, s{T1}, s{T2}
    s_cmp_eq_u32 s{T1}, s{T1}
    s_cselect_b32 s{T0}, s{T1 if int(cfg.get("lin", 1)) else T0}, s{T0}
    v_mul_u32_u24 v38, {P_STR}, v2
    v_lshl_add_u32 v38, v3, 4, v38
    v_add_u32 v38, s{T0}, v38
    """)
    tag_setup()
    a(f"s_add_u32 s{T0}, s{S_EP}, 1\ns_nop 0\nv_mov_b32 v12, s{T0}\nv_not_b32 v17, v12")
    for T in range(2, 8):
        a(f"s_waitcnt vmcnt({4*(7-T)})")
        kcopy(T)
    stamp()
    spin_ge(F_QR, 4)
    QF, SS = 48, 192
    for j in range(4):
        a(f"ds_read_b128 {vr(QF+4*j,4)}, v35 offset:{L_Q+j*64}")
    a("s_waitcnt lgkmcnt(0)")
    for TP in range(4):
        for j in range(4):
            for T in (2*TP, 2*TP+1):
                c = "0" if j == 0 else vr(SS+4*T,4)
                a(f"v_mfma_f32_16x16x32_bf16 {vr(SS+4*T,4)}, {vr(KB+(T*4+j)*4,4)}, {vr(QF+4*j,4)}, {c}")
        if TP > 0:
            for p in range(4*(TP-1), 4*TP):
                x0, x1 = SS + 2*p, SS + 2*p + 1
                a(f"""
                v_cvt_pk_bf16_f32 v42, v{x0}, v{x1}
                v_lshlrev_b32 v{x0}, 16, v42
                v_and_b32 v{x1}, 0xffff0000, v42
                v_mul_f32 v{x0}, 0x{SCALE:x}, v{x0}
                v_mul_f32 v{x1}, 0x{SCALE:x}, v{x1}
                v_cvt_pk_bf16_f32 v42, v{x0}, v{x1}
                v_lshlrev_b32 v{x0}, 16, v42
                v_and_b32 v{x1}, 0xffff0000, v42
                """)
    stamp()
    a("s_nop 7")
    for p in range(12, 16):
        x0, x1 = SS + 2*p, SS + 2*p + 1
        a(f"""
        v_cvt_pk_bf16_f32 v42, v{x0}, v{x1}
        v_lshlrev_b32 v{x0}, 16, v42
        v_and_b32 v{x1}, 0xffff0000, v42
        v_mul_f32 v{x0}, 0x{SCALE:x}, v{x0}
        v_mul_f32 v{x1}, 0x{SCALE:x}, v{x1}
        v_cvt_pk_bf16_f32 v42, v{x0}, v{x1}
        v_lshlrev_b32 v{x0}, 16, v42
        v_and_b32 v{x1}, 0xffff0000, v42
        """)
    a(f"v_max3_f32 v43, v{SS}, v{SS+1}, v{SS+2}\nv_max3_f32 v44, v{SS+3}, v{SS+4}, v{SS+5}")
    for p in range(6, 30, 4):
        a(f"v_max3_f32 v43, v43, v{SS+p}, v{SS+p+1}\nv_max3_f32 v44, v44, v{SS+p+2}, v{SS+p+3}")
    a(f"v_max3_f32 v43, v43, v{SS+30}, v{SS+31}\nv_max_f32 v43, v43, v44")
    xor16("v_max_f32", 43, 42)
    xor32("v_max_f32", 43, 42)
    a(f"""
    s_mov_b64 exec, s[{M_16}:{M_16+1}]
    ds_write_b32 v39, v43 offset:{L_WM}
    s_mov_b64 exec, -1
    """)
    barrier(F_CB)
    for w in range(4):
        a(f"ds_read_b32 v{48+w}, v40 offset:{L_WM+w*64}")
    a(f"""
    s_mov_b32 s{T1}, 0x{LOG2E:x}
    s_waitcnt lgkmcnt(0)
    v_max3_f32 v46, v48, v49, v50
    v_max_f32 v46, v46, v51
    v_mul_f32 v47, s{T1}, v46
    """)
    for p in range(32):
        a(f"v_fma_f32 v{SS+p}, v{SS+p}, s{T1}, -v47")
    for p in range(32):
        a(f"v_exp_f32 v{SS+p}, v{SS+p}")
    PP = 224
    a(f"v_cvt_pk_bf16_f32 v{PP}, v{SS}, v{SS+1}")
    for p in range(1, 16):
        a(f"v_cvt_pk_bf16_f32 v{PP+p}, v{SS+2*p}, v{SS+2*p+1}")
    a(f"s_mov_b64 exec, s[{M_H4}:{M_H4+1}]")
    if int(cfg.get("lin", 1)):
        for i in range(8):
            a(f"ds_write_b64 v38, {vr(PP+2*i,2)} offset:{L_P+i*128}")
    else:
      for st in range(4):
        a(f"ds_write_b128 v38, {vr(PP+4*st,4)} offset:{L_P+st*64}")
    a("s_mov_b64 exec, -1")
    a(f"v_add_f32 v43, v{SS}, v{SS+1}\nv_add_f32 v42, v{SS+2}, v{SS+3}")
    for p in range(4, 32, 2):
        a(f"v_add_f32 v43, v43, v{SS+p}\nv_add_f32 v42, v42, v{SS+p+1}")
    a("v_add_f32 v43, v43, v42")
    xor16("v_add_f32", 43, 42)
    xor32("v_add_f32", 43, 42)
    a(f"""
    s_mov_b64 exec, s[{M_16}:{M_16+1}]
    ds_write_b32 v39, v43 offset:{L_WL}
    s_mov_b64 exec, -1
    """)
    barrier(F_CB)
    stamp()
    for w in range(4):
        a(f"ds_read_b32 v{48+w}, v40 offset:{L_WL+w*64}")
    a(f"""
    s_waitcnt lgkmcnt(0)
    v_add_f32 v47, v48, v49
    v_add_f32 v48, v50, v51
    v_add_f32 v47, v47, v48
    v_mov_b32 v28, v46
    v_mov_b32 v29, v47
    v_mov_b32 v30, v12
    v_mov_b32 v31, v17
    """)
    ACC = 184
    firstpv = [True]
    mlearly = int(cfg.get("mlearly", 1))
    def ml_store(lbl):
        a(f"""
        s_cmp_lg_u32 s{S_WAVE}, 0
        s_cbranch_scc1 {lbl}
        s_mov_b64 exec, 15
        buffer_store_dwordx4 v[28:31], v5, {srd(R_WS)}, s{SML} offen sc1
        s_mov_b64 exec, -1
        """)
        a.label(lbl)
    def pv_part(st, qs):
        n = len(qs)
        for q in qs:
            kb = 4 * st + q
            off = (kb % 8) * 8192
            b0, b1 = (20, 22) if kb < 8 else (21, 23)
            r = 64 + 12 * q
            a(f"ds_read_b128 {vr(r,4)}, v41 offset:{kb*64}")
            a(f"ds_read_b64_tr_b16 {vr(r+4,2)}, v{b0} offset:{off}")
            a(f"ds_read_b64_tr_b16 {vr(r+6,2)}, v{b0} offset:{off+4096}")
            a(f"ds_read_b64_tr_b16 {vr(r+8,2)}, v{b1} offset:{off}")
            a(f"ds_read_b64_tr_b16 {vr(r+10,2)}, v{b1} offset:{off+4096}")
        for k, q in enumerate(qs):
            r = 64 + 12 * q
            a(f"s_waitcnt lgkmcnt({5 * (n - 1 - k)})")
            for dt in range(2):
                c = "0" if firstpv[0] else vr(ACC+4*dt,4)
                a(f"v_mfma_f32_16x16x32_bf16 {vr(ACC+4*dt,4)}, {vr(r+4+4*dt,4)}, {vr(r,4)}, {c}")
            firstpv[0] = False
    def pv(st):
        if st == 3 and split3:
            wait_piece("V3a")
            if mlearly == 2: ml_store("L_mlst_early")
            pv_part(3, [0, 1])
            wait_piece("V3b")
            if mlearly == 1: ml_store("L_mlst_early")
            pv_part(3, [2, 3])
        else:
            wait_piece(f"V{st}")
            if st == 3 and mlearly: ml_store("L_mlst_early")
            pv_part(st, [0, 1, 2, 3])
    pv(0)
    flag_add(F_P0)
    pv(1); pv(2)
    stamp()
    AG, MG, WOF, DN2 = 128, 144, 152, 168
    a(f"""
    s_lshl_b32 s{T4}, s{S_H}, 14
    s_lshl_b32 s{T1}, s{S_WAVE}, 12
    s_add_u32 s{T4}, s{T4}, s{T1}
    s_add_u32 s{T4}, s{T4}, {AP_OFF}
    s_lshl_b32 s{T5}, s{S_HKV}, 11
    s_lshl_b32 s{T2}, s{S_WAVE}, 9
    s_add_u32 s{T5}, s{T5}, s{T2}
    s_lshl_b32 s{T2}, s{S_B}, 4
    s_add_u32 s{T5}, s{T5}, s{T2}
    s_add_u32 s{T5}, s{T5}, {ML_OFF}
    v_lshrrev_b32 v33, 5, v1
    v_lshlrev_b32 v33, 6, v33
    s_lshl_b32 s{T0}, s{S_WAVE}, 8
    v_lshlrev_b32 v47, 2, v4
    v_add_u32 v47, v47, v3
    v_lshlrev_b32 v47, 4, v47
    v_add_u32 v47, s{T0}, v47
    """)
    a(f"""
    v_mov_b32 v24, v47
    s_lshl_b32 s{T2}, s{S_B}, 10
    s_lshl_b32 s{T3}, s{S_J}, 7
    s_add_u32 s{T2}, s{T2}, s{T3}
    s_lshl_b32 s{T3}, s{S_WAVE}, 5
    s_add_u32 s{T2}, s{T2}, s{T3}
    v_lshlrev_b32 v25, 3, v4
    buffer_load_dwordx2 v[26:27], v25, {srd(R_X)}, s{T2} offen
    """)
    pv(3)
    a("s_nop 7")
    tag(range(ACC, ACC+8))
    a(f"""
    s_mov_b64 exec, s[{M_H4}:{M_H4+1}]
    buffer_store_dwordx4 {vr(ACC,4)}, v11, {srd(R_WS)}, s{SAP} offen sc1
    buffer_store_dwordx4 {vr(ACC+4,4)}, v11, {srd(R_WS)}, s{SAP} offen offset:64 sc1
    s_mov_b64 exec, -1
    """)
    if not mlearly: ml_store("L_mlst_done")
    stamp()
    AGR, MS = 128, [(144,), (152,)]
    light = int(cfg.get("light", 1))
    MGS = [192, 208]
    def ml_loads(i=0):
        for m in range(4):
            a(f"buffer_load_dwordx4 {vr(MGS[i]+4*m,4)}, v33, {srd(R_WS)}, s{T5} offen offset:{m*128} sc1")
    def ap_loads(i=0):
        for m in range(4):
            a(f"buffer_load_dwordx4 {vr(AGR+4*m,4)}, v5, {srd(R_WS)}, s{T4} offen offset:{m*1024} sc1")
    grp = int(cfg.get("grp", 0))
    def between1():
        spin_ge(F_DR, 4)
        a(f"ds_read_b128 {vr(DN2,4)}, v24 offset:{L_DNP}")
        wait_piece("WO")
        for kk in range(4):
            a(f"ds_read_b64_tr_b16 {vr(WOF+4*kk,2)}, v34 offset:{kk*4096}")
            a(f"ds_read_b64_tr_b16 {vr(WOF+4*kk+2,2)}, v34 offset:{kk*4096+512}")
    def weights(mg):
        ms = [mg + 4*m for m in range(4)]
        ls = [mg + 4*m + 1 for m in range(4)]
        a(f"""
        v_max3_f32 v36, v{ms[0]}, v{ms[1]}, v{ms[2]}
        v_max_f32 v36, v36, v{ms[3]}
        """)
        xor32("v_max_f32", 36, 37)
        for m in range(4):
            a(f"v_sub_f32 v{49+m}, v{ms[m]}, v36")
        for m in range(4):
            a(f"v_mul_f32 v{49+m}, s{T2}, v{49+m}")
        for m in range(4):
            a(f"v_exp_f32 v{49+m}, v{49+m}")
        a("s_nop 0")
        a(f"v_mul_f32 v48, v49, v{ls[0]}")
        for m in range(1, 4):
            a(f"v_fmac_f32 v48, v{49+m}, v{ls[m]}")
    a(f"s_mov_b32 s{T2}, 0x{LOG2E:x}")
    if grp == 3:
        MG = MGS[0]
        def mload(m):
            a(f"buffer_load_dwordx4 {vr(MG+4*m,4)}, v33, {srd(R_WS)}, s{T5} offen offset:{m*128} sc1")
        def aload(m):
            a(f"buffer_load_dwordx4 {vr(AGR+4*m,4)}, v5, {srd(R_WS)}, s{T4} offen offset:{m*1024} sc1")
        for m in range(4): mload(m)
        for r in range(AGR, AGR+16): a(f"v_mov_b32 v{r}, 0")
        if not dnlate: between1()
        SV, SM = T3, T1
        a(f"s_mov_b32 s{SV}, 0\ns_mov_b32 s{SM}, 0\ns_mov_b32 s{S_CNT}, 0")
        a.label("L_g1_loop")
        a(f"s_waitcnt vmcnt(0)\ns_bcnt1_i32_b32 s{T0}, s{SM}")
        for m in range(4):
            g = MG + 4*m; r = AGR + 4*m
            a(f"""
            s_bitcmp1_b32 s{SV}, {m}
            s_cbranch_scc1 L_g1_s{m}
            s_bitcmp1_b32 s{SM}, {m}
            s_cbranch_scc1 L_g1_a{m}
            v_xor_b32 v36, v{g+2}, v12
            v_bitop3_b32 v36, v36, v{g+3}, v17 bitop3:0xf6
            v_cmp_ne_u32 vcc, 0, v36
            s_cbranch_vccz L_g1_m{m}
            """)
            mload(m)
            a(f"s_cmp_lt_u32 s{T0}, 3\ns_cbranch_scc1 L_g1_s{m}")
            aload(m)
            a(f"s_branch L_g1_s{m}")
            a.label(f"L_g1_m{m}")
            a(f"s_bitset1_b32 s{SM}, {m}")
            a.label(f"L_g1_a{m}")
            for e in range(4): a(f"v_xor_b32 v{r+e}, v{r+e}, v{VT[e]}")
            a(f"""
            v_or3_b32 v36, v{r}, v{r+1}, v{r+2}
            v_or_b32 v36, v36, v{r+3}
            v_and_b32 v36, v36, v{VMSK}
            v_cmp_ne_u32 vcc, 0, v36
            s_cbranch_vccnz L_g1_r{m}
            s_bitset1_b32 s{SV}, {m}
            s_branch L_g1_s{m}
            """)
            a.label(f"L_g1_r{m}")
            aload(m)
            a.label(f"L_g1_s{m}")
        a(f"""
        s_cmp_eq_u32 s{SV}, 15
        s_cbranch_scc1 L_g1_done
        s_add_u32 s{S_CNT}, s{S_CNT}, 1
        s_cmp_lt_u32 s{S_CNT}, {POLL_LIMIT}
        s_cbranch_scc1 L_g1_loop
        s_waitcnt vmcnt(0)
        """)
        a.label("L_g1_done")
        weights(MG)
        xor32("v_add_f32", 48, 37)
        a("v_rcp_f32 v48, v48")
        if dnlate: between1()
        else: a("s_nop 0")
        for m in range(4):
            a(f"v_mul_f32 v{49+m}, v{49+m}, v48")
    elif grp == 2:
        MG = MGS[0]
        def mload(m):
            a(f"buffer_load_dwordx4 {vr(MG+4*m,4)}, v33, {srd(R_WS)}, s{T5} offen offset:{m*128} sc1")
        for m in range(4): mload(m)
        SV = T3
        a(f"s_mov_b32 s{SV}, 0\ns_mov_b32 s{S_CNT}, 0")
        a.label("L_g1_loop")
        a("s_waitcnt vmcnt(0)")
        for m in range(4):
            g = MG + 4*m
            a(f"""
            s_bitcmp1_b32 s{SV}, {m}
            s_cbranch_scc1 L_g1_s{m}
            v_xor_b32 v36, v{g+2}, v12
            v_bitop3_b32 v36, v36, v{g+3}, v17 bitop3:0xf6
            v_cmp_ne_u32 vcc, 0, v36
            s_cbranch_vccnz L_g1_r{m}
            s_bitset1_b32 s{SV}, {m}
            s_branch L_g1_s{m}
            """)
            a.label(f"L_g1_r{m}")
            mload(m)
            a.label(f"L_g1_s{m}")
        a(f"""
        s_cmp_eq_u32 s{SV}, 15
        s_cbranch_scc1 L_g1_done
        s_add_u32 s{S_CNT}, s{S_CNT}, 1
        s_cmp_lt_u32 s{S_CNT}, {POLL_LIMIT}
        s_cbranch_scc1 L_g1_loop
        s_waitcnt vmcnt(0)
        """)
        a.label("L_g1_done")
        ap_loads()
        weights(MG)
        between1()
        xor32("v_add_f32", 48, 37)
        a("v_rcp_f32 v48, v48")
        a("s_nop 0")
        for m in range(4):
            a(f"v_mul_f32 v{49+m}, v{49+m}, v48")
        poll("ap", list(range(AGR, AGR+16)), ap_loads, 36, "s_waitcnt vmcnt(0)")
    elif grp:
        MG = MGS[0]
        def gload(m):
            a(f"buffer_load_dwordx4 {vr(AGR+4*m,4)}, v5, {srd(R_WS)}, s{T4} offen offset:{m*1024} sc1")
            a(f"buffer_load_dwordx4 {vr(MG+4*m,4)}, v33, {srd(R_WS)}, s{T5} offen offset:{m*128} sc1")
        for m in range(4): gload(m)
        if not dnlate: between1()
        SV = T3
        a(f"s_mov_b32 s{SV}, 0\ns_mov_b32 s{S_CNT}, 0")
        a.label("L_g1_loop")
        a("s_waitcnt vmcnt(0)")
        for m in range(4):
            a(f"s_bitcmp1_b32 s{SV}, {m}\ns_cbranch_scc1 L_g1_s{m}")
            r = AGR + 4*m; g = MG + 4*m
            for e in range(4): a(f"v_xor_b32 v{r+e}, v{r+e}, v{VT[e]}")
            a(f"""
            v_or3_b32 v36, v{r}, v{r+1}, v{r+2}
            v_or_b32 v36, v36, v{r+3}
            v_and_b32 v36, v36, v{VMSK}
            v_bitop3_b32 v36, v36, v{g+2}, v12 bitop3:0xf6
            v_bitop3_b32 v36, v36, v{g+3}, v17 bitop3:0xf6
            v_cmp_ne_u32 vcc, 0, v36
            s_cbranch_vccnz L_g1_r{m}
            s_bitset1_b32 s{SV}, {m}
            s_branch L_g1_s{m}
            """)
            a.label(f"L_g1_r{m}")
            gload(m)
            a.label(f"L_g1_s{m}")
        a(f"""
        s_cmp_eq_u32 s{SV}, 15
        s_cbranch_scc1 L_g1_done
        s_add_u32 s{S_CNT}, s{S_CNT}, 1
        s_cmp_lt_u32 s{S_CNT}, {POLL_LIMIT}
        s_cbranch_scc1 L_g1_loop
        s_waitcnt vmcnt(0)
        """)
        a.label("L_g1_done")
        weights(MG)
        xor32("v_add_f32", 48, 37)
        a("v_rcp_f32 v48, v48")
        if dnlate: between1()
        else: a("s_nop 0")
        for m in range(4):
            a(f"v_mul_f32 v{49+m}, v{49+m}, v48")
    else:
        ml_loads(0)
        def consume_ml(i):
            ap_loads()
            weights(MGS[i])
        NS1 = int(cfg.get("ns1", 2))
        poll_stag("ml", [list(range(g, g+16)) for g in MGS[:NS1]], ml_loads, 4, 36, int(cfg.get("gap1", 3)), consume_ml, None, 0)
        between1()
        xor32("v_add_f32", 48, 37)
        a("v_rcp_f32 v48, v48")
        a("s_nop 0")
        for m in range(4):
            a(f"v_mul_f32 v{49+m}, v{49+m}, v48")
        poll("ap", list(range(AGR, AGR+16)), ap_loads, 36, "s_waitcnt vmcnt(0)")
    stamp()
    for e in range(4):
        a(f"v_mul_f32 v{44+e}, v49, v{AGR+e}")
    for m in range(1, 4):
        for e in range(4):
            a(f"v_fmac_f32 v{44+e}, v{49+m}, v{AGR+4*m+e}")
    xorN(32, "v_add_f32", [44,45,46,47], [36,37,38,39])
    a(f"""
    v_cvt_pk_bf16_f32 v42, v44, v45
    v_cvt_pk_bf16_f32 v43, v46, v47
    s_mul_i32 s{T2}, s{S_WAVE}, {Q_STR}
    v_lshlrev_b32 v41, 3, v1
    v_add_u32 v41, s{T2}, v41
    s_mov_b32 exec_lo, -1
    s_mov_b32 exec_hi, 0
    ds_write_b64 v41, v[42:43] offset:{L_OB}
    s_mov_b64 exec, -1
    """)
    if int(cfg.get("hwbar", 1)):
        a("s_waitcnt lgkmcnt(0)\ns_barrier")
    else:
        barrier(F_CB)
    OF = 172
    for kk in range(4):
        a(f"ds_read_b128 {vr(OF+4*kk,4)}, v35 offset:{L_OB+kk*64}")
    for kk in range(4):
        a(f"s_waitcnt lgkmcnt({3-kk})")
        a(f"v_mfma_f32_16x16x32_bf16 {vr(DN2,4)}, {vr(WOF+4*kk,4)}, {vr(OF+4*kk,4)}, {vr(DN2,4)}")
    a("s_nop 7")
    tag(range(DN2, DN2+4))
    a(f"""
    s_mov_b64 exec, s[{M_H4}:{M_H4+1}]
    """)
    dual = int(cfg.get("dual", 1))
    if dual:
        a(f"s_add_u32 s{T0}, s{SOP}, {OPA_OFF - OP_OFF}")
        a(f"buffer_store_dwordx4 {vr(DN2,4)}, v13, {srd(R_WS)}, s{T0} offen")
    a(f"""
    buffer_store_dwordx4 {vr(DN2,4)}, v13, {srd(R_WS)}, s{SOP} offen sc1
    s_mov_b64 exec, -1
    """)
    stamp()
    a(f"""
    s_cmp_lg_u32 s{S_HKV}, 0
    s_cbranch_scc1 L_end
    s_lshl_b32 s{T0}, s{S_J}, 2
    s_add_u32 s{T0}, s{T0}, s{S_B}
    s_lshl_b32 s{T0}, s{T0}, 13
    s_lshl_b32 s{T1}, s{S_WAVE}, 6
    s_add_u32 s{T0}, s{T0}, s{T1}
    s_add_u32 s{T0}, s{T0}, {OP_OFF}
    s_add_u32 s{T1}, s{T0}, 4096                  ; heads 16..31
    s_lshl_b32 s{T2}, s{S_B}, 10
    s_lshl_b32 s{T3}, s{S_J}, 7
    s_add_u32 s{T2}, s{T2}, s{T3}
    s_lshl_b32 s{T3}, s{S_WAVE}, 5
    s_add_u32 s{T2}, s{T2}, s{T3}
    v_lshrrev_b32 v32, 2, v1
    v_lshlrev_b32 v32, 8, v32
    v_lshl_add_u32 v32, v4, 4, v32                ; (l>>2)*256 + (l&3)*16
    v_lshlrev_b32 v33, 3, v4                      ; (l&3)*8
    """)
    FGS = [224, 232, 240]
    NS2 = int(cfg.get("ns2", 2))
    if dual:
        a(f"s_add_u32 s{T4}, s{T0}, {OPA_OFF - OP_OFF}\ns_add_u32 s{T5}, s{T1}, {OPA_OFF - OP_OFF}")
    def fin_loads(i=0):
        b0, b1 = (T0, T1)
        if dual and i % 2 == 0: b0, b1 = T4, T5
        a(f"buffer_load_dwordx4 {vr(FGS[i],4)}, v32, {srd(R_WS)}, s{b0} offen sc1")
        a(f"buffer_load_dwordx4 {vr(FGS[i]+4,4)}, v32, {srd(R_WS)}, s{b1} offen sc1")
    FG = 44
    def consume2(i):
        f = FGS[i]
        for e in range(4):
            a(f"v_add_f32 v{FG+e}, v{f+e}, v{f+4+e}")
    if dual:
        def aloads(i):
            a(f"buffer_load_dwordx4 {vr(FGS[i],4)}, v32, {srd(R_WS)}, s{T4} offen sc1")
            a(f"buffer_load_dwordx4 {vr(FGS[i]+4,4)}, v32, {srd(R_WS)}, s{T5} offen sc1")
        aloads(0); aloads(2)
        a(f"s_mov_b32 s{S_CNT}, 0")
        a.label("L_fa_loop")
        for i in (0, 2):
            a("s_waitcnt vmcnt(2)")
            check(list(range(FGS[i], FGS[i]+8)), 38)
            a(f"s_cbranch_vccz L_fin_ok{i}")
            aloads(i)
        a(f"""
        s_add_u32 s{S_CNT}, s{S_CNT}, 1
        s_cmp_lt_u32 s{S_CNT}, {int(cfg.get("fastn", 10))}
        s_cbranch_scc1 L_fa_loop
        s_waitcnt vmcnt(0)
        """)
        fin_loads(0); fin_loads(1)
        a(f"s_mov_b32 s{S_CNT}, 0")
        a.label("L_fin_loop")
        for i in (0, 1):
            a("s_waitcnt vmcnt(2)")
            check(list(range(FGS[i], FGS[i]+8)), 38)
            a(f"s_cbranch_vccz L_fin_ok{i}")
            fin_loads(i)
        a(f"""
        s_add_u32 s{S_CNT}, s{S_CNT}, 1
        s_cmp_lt_u32 s{S_CNT}, {POLL_LIMIT}
        s_cbranch_scc1 L_fin_loop
        s_waitcnt vmcnt(0)
        """)
        for i in (0, 1, 2):
            a.label(f"L_fin_ok{i}")
            consume2(i)
            if i != 2: a("s_branch L_fin_done")
        a.label("L_fin_done")
    else:
        fin_loads(0)
        poll_stag("fin", [list(range(f, f+8)) for f in FGS[:NS2]], fin_loads, 2, 38, int(cfg.get("gap2", 3)), consume2)
    stamp()
    for ctl in ("row_ror:4", "row_ror:8"):
        a("s_nop 1")
        for e in range(4):
            a(f"v_add_f32_dpp v{FG+e}, v{FG+e}, v{FG+e} {ctl} row_mask:0xf bank_mask:0xf")
    a("s_nop 0")
    xorN(16, "v_add_f32", [FG, FG+1, FG+2, FG+3], [38,39,40,41])
    xorN(32, "v_add_f32", [FG, FG+1, FG+2, FG+3], [38,39,40,41])
    a(f"""
    v_lshlrev_b32 v40, 16, v26
    v_and_b32 v41, 0xffff0000, v26
    v_lshlrev_b32 v42, 16, v27
    v_and_b32 v43, 0xffff0000, v27
    v_add_f32 v40, v40, v{FG}
    v_add_f32 v41, v41, v{FG+1}
    v_add_f32 v42, v42, v{FG+2}
    v_add_f32 v43, v43, v{FG+3}
    v_cvt_pk_bf16_f32 v40, v40, v41
    v_cvt_pk_bf16_f32 v41, v42, v43
    s_mov_b64 exec, 15
    buffer_store_dwordx2 v[40:41], v33, {srd(R_OUT)}, s{T2} offen
    s_mov_b64 exec, -1
    s_cmp_lg_u32 s{S_WAVE}, 0
    s_cbranch_scc1 L_end
    s_cmp_lg_u32 s2, 0
    s_cbranch_scc1 L_end
    s_add_u32 s{S_EP}, s{S_EP}, 1
    v_mov_b32 v40, s{S_EP}
    v_mov_b32 v41, 0
    s_mov_b32 s{T1}, {EP_OFF}
    s_mov_b64 exec, 1
    buffer_store_dword v40, v41, {srd(R_WS)}, s{T1} offen sc1
    s_mov_b64 exec, -1
    """)
    a.label("L_end")
    if stamps:
        a(f"s_cmp_lg_u32 s{S_WAVE}, 0\ns_cbranch_scc1 L_exit")
        a(f"s_memrealtime s[{STAMP_REGS[NSTAMP-1]}:{STAMP_REGS[NSTAMP-1]+1}]")
        a(f"s_mov_b32 s{STAMP_REGS[12]}, s{S_CNT}\ns_mov_b32 s{STAMP_REGS[12]+1}, 0")
        a(f"""
        s_waitcnt lgkmcnt(0)
        s_add_u32 s{R_WS}, s{R_WS}, {STAMP_OFF}
        s_addc_u32 s{R_WS+1}, s{R_WS+1}, 0
        s_lshl_b32 s{T0}, s2, 1
        s_add_u32 s{T0}, s{T0}, s{S_ROLE}
        s_mul_i32 s{T0}, s{T0}, {NSTAMP*8}
        v_mov_b32 v2, s{T0}
        s_mov_b64 exec, 1
        """)
        for i in range(NSTAMP):
            r = STAMP_REGS[i]
            a(f"v_mov_b32 v4, s{r}\nv_mov_b32 v5, s{r+1}\nbuffer_store_dwordx2 v[4:5], v2, {srd(R_WS)}, 0 offen offset:{i*8}\ns_nop 1")
        print("stamps: X used", x_stamps, "Q used", nstamp[0])
    a.label("L_exit")
    a("s_endpgm")
    launch = f"grid=(256,1,1) block=(512,1,1) lds={L_END}"
    return file_text([launch], a.text(), [descriptor(kn, 256, 102)])

if __name__ == "__main__":
    out = sys.argv[1] if len(sys.argv) > 1 else "cdna_kernels/" + NAME + ".s"
    cfg = dict(kv.split("=") for kv in sys.argv[2:] if "=" in kv)
    open(out, "w").write(gen(stamps=("stamps" in sys.argv), cfg=cfg))
    print("wrote", out, "LDS", L_END)
```
